```python
import torch

def _softmax(x, axis=-1):
    return torch.softmax(x, dim=axis)

def _gelu(x):
    return torch.nn.functional.gelu(x, approximate='tanh')

def _silu(x):
    return torch.nn.functional.silu(x)

def _sigmoid(x):
    return torch.sigmoid(x)

def _layernorm(x, axis=-1, eps=1e-05):
    m = x.mean(dim=axis, keepdim=True)
    v = x.var(dim=axis, keepdim=True, unbiased=False)
    return (x - m) / torch.sqrt(v + eps)

def _scatter_add(tgt, idx, src, axis=0):
    return tgt.clone().index_add_(axis, idx, src)

def _segment_sum(src, seg, n):
    out = torch.zeros((n,) + src.shape[1:], dtype=src.dtype)
    return out.index_add_(0, seg, src)

def _pad(x, pw):
    flat = tuple((v for pair in reversed(pw) for v in pair))
    return torch.nn.functional.pad(x, flat)
kernel_name = 'sequential_preLN__memory_aug_recurrent_mem_tr__glu_gated_bilinear__prompt'

def setup_inputs():

    _w = lambda a: (lambda t: t.to(torch.bfloat16) if t.is_floating_point() else t)(torch.as_tensor(a))

    def _A_setup():
        B, S, Dm = (1, 2048, 512)
        H, Dh = (32, 128)
        M, seg = (8, 32)
        seg = min(seg, S)
        S = S // seg * seg
        return {'x': _w((lambda *s: torch.randn(*s, dtype=torch.bfloat16) * 0.05)(B, S, Dm)), 'mem0': _w((lambda *s: torch.randn(*s, dtype=torch.bfloat16) * 0.2)(B, M, Dm)), 'Wq': _w((lambda *s: torch.randn(*s, dtype=torch.bfloat16) * 1.6)(Dm, H, Dh) * Dm ** (-0.5)), 'Wk': _w((lambda *s: torch.randn(*s, dtype=torch.bfloat16) * 1.6)(Dm, H, Dh) * Dm ** (-0.5)), 'Wv': _w((lambda *s: torch.randn(*s, dtype=torch.bfloat16) * 0.2)(Dm, H, Dh) * Dm ** (-0.5)), 'Wo': _w((lambda *s: torch.randn(*s, dtype=torch.bfloat16) * 0.2)(H, Dh, Dm) * (H * Dh) ** (-0.5)), 'seg_len': seg}
    _A_in = _A_setup()

    def _B_setup():
        B, S, D, F = (1, 2048, 512, 1376)
        return {'x': _w((lambda *s: torch.randn(*s, dtype=torch.bfloat16) * 0.05)(B, S, D)), 'w_gate': _w((lambda *s: torch.randn(*s, dtype=torch.bfloat16) * 0.2)(D, F) * D ** (-0.5)), 'w_up': _w((lambda *s: torch.randn(*s, dtype=torch.bfloat16) * 0.2)(D, F) * D ** (-0.5)), 'w_down': _w((lambda *s: torch.randn(*s, dtype=torch.bfloat16) * 0.2)(F, D) * F ** (-0.5))}
    _B_in = _B_setup()
    return {'A_x': _A_in['x'], 'A_mem0': _A_in['mem0'], 'A_Wq': _A_in['Wq'], 'A_Wk': _A_in['Wk'], 'A_Wv': _A_in['Wv'], 'A_Wo': _A_in['Wo'], 'A_seg_len': _A_in['seg_len'], 'B_x': _B_in['x'], 'B_w_gate': _B_in['w_gate'], 'B_w_up': _B_in['w_up'], 'B_w_down': _B_in['w_down']}

def reference(A_x, A_mem0, A_Wq, A_Wk, A_Wv, A_Wo, A_seg_len, B_x, B_w_gate, B_w_up, B_w_down):

    def _A_ref(x, mem0, Wq, Wk, Wv, Wo, seg_len):
        B, S, Dm = x.shape
        H, Dh = (Wq.shape[1], Wq.shape[2])
        M = mem0.shape[1]
        scale = Dh ** (-0.5)
        n_seg = S // seg_len
        L = M + seg_len
        idx = torch.arange(L)
        mask = (idx[:, None] < M) | (idx[:, None] >= idx[None, :])
        mem = mem0
        outs = []
        for s in range(n_seg):
            xs = x[:, s * seg_len:(s + 1) * seg_len, :].clone()
            h = torch.concatenate([mem, xs], axis=1)
            q = torch.einsum('btd,dhe->bhte', h, Wq)
            k = torch.einsum('btd,dhe->bhte', h, Wk)
            v = torch.einsum('btd,dhe->bhte', h, Wv)
            scores = torch.einsum('bhqe,bhke->bhqk', q, k) * scale
            scores = torch.where(mask[None, None], scores, -1000000000.0)
            p = _softmax(scores, axis=-1)
            o = torch.einsum('bhqk,bhke->bhqe', p, v)
            o = torch.einsum('bhte,hed->btd', o, Wo)
            mem = o[:, :M, :].clone()
            outs.append(o[:, M:, :])
        return torch.concatenate(outs, axis=1)

    def _B_ref(x, w_gate, w_up, w_down):
        g = torch.einsum('bsd,df->bsf', x, w_gate)
        u = torch.einsum('bsd,df->bsf', x, w_up)
        h = g * u
        return torch.einsum('bsf,fd->bsd', h, w_down)
    x = A_x
    h = x + _A_ref(_layernorm(x, axis=-1), A_mem0, A_Wq, A_Wk, A_Wv, A_Wo, A_seg_len)
    h2 = h + _B_ref(_layernorm(h, axis=-1), B_w_gate, B_w_up, B_w_down)
    return h2
```

```python
import re

def _regs(tok):
    tok = tok.strip()
    neg = tok.lstrip('-')
    if neg.startswith('abs(') or neg.startswith('|'):
        neg = neg.replace('abs(', '').replace(')', '').replace('|', '')
    tok = neg
    m = re.fullmatch(r'([vas])\[(\d+):(\d+)\]', tok)
    if m:
        return [(m.group(1), i) for i in range(int(m.group(2)), int(m.group(3)) + 1)]
    m = re.fullmatch(r'([vas])(\d+)', tok)
    if m:
        return [(m.group(1), int(m.group(2)))]
    if tok == 'vcc': return [('vcc', 0), ('vcc', 1)]
    if tok == 'vcc_lo': return [('vcc', 0)]
    if tok == 'vcc_hi': return [('vcc', 1)]
    if tok == 'exec': return [('exec', 0), ('exec', 1)]
    if tok == 'exec_lo': return [('exec', 0)]
    if tok == 'exec_hi': return [('exec', 1)]
    if tok == 'm0': return [('m0', 0)]
    return []

TRANS = ('v_exp_f32', 'v_log_f32', 'v_rcp_f32', 'v_rsq_f32', 'v_sqrt_f32', 'v_sin_f32', 'v_cos_f32', 'v_rcp_iflag_f32')

class Inst:
    __slots__ = ('text', 'op', 'kind', 'dst', 'src', 'passes', 'dpp', 'srcC', 'nst', 'storedata', 'opsel')
    def __init__(self, text):
        self.text = text
        body = text.split(';')[0].strip()
        parts = body.split(None, 1)
        self.op = op = parts[0]
        rest = parts[1] if len(parts) > 1 else ''
        ops, depth, cur = [], 0, ''
        for ch in rest:
            if ch in '[(': depth += 1
            if ch in '])': depth -= 1
            if ch == ',' and depth == 0:
                ops.append(cur.strip()); cur = ''
            else:
                cur += ch
        if cur.strip(): ops.append(cur.strip())
        mods = ''
        if ops:
            last = ops[-1].split(None, 1)
            if len(last) > 1:
                ops[-1] = last[0]; mods = last[1]
        self.dst, self.src = [], []
        self.passes = 0; self.dpp = False; self.srcC = []; self.nst = 1; self.storedata = []; self.opsel = False
        R = lambda i: _regs(ops[i]) if i < len(ops) else []
        allsrc = lambda a: [r for i in range(a, len(ops)) for r in _regs(ops[i])]
        base = re.sub(r'_(e32|e64|dpp|sdwa)$', '', op)
        if op.startswith('v_mfma') or op.startswith('v_smfmac'):
            self.kind = 'mfma'
            self.dst = R(0)
            if op.startswith('v_smfmac'):
                self.src = R(0) + R(1) + R(2) + R(3); self.srcC = R(0)
            else:
                self.src = R(1) + R(2) + R(3); self.srcC = R(3)
            self.passes = 8 if '32x32' in op else 4
        elif op.startswith('v_'):
            self.kind = 'valu'
            self.dpp = ('_dpp' in op) or ('row_' in mods) or ('quad_perm' in mods)
            if base.startswith('v_permlane') and 'swap' in base:
                self.dst = R(0) + R(1); self.src = R(0) + R(1); self.kind = 'permlane'
            elif base.startswith('v_cmp'):
                self.dst = R(0); self.src = allsrc(1)
                if base.startswith('v_cmpx'): self.dst = self.dst + [('exec', 0), ('exec', 1)]
            elif base in ('v_add_co_u32', 'v_sub_co_u32', 'v_subrev_co_u32'):
                self.dst = R(0) + R(1); self.src = allsrc(2)
            elif base in ('v_addc_co_u32', 'v_subb_co_u32'):
                self.dst = R(0) + R(1); self.src = allsrc(2)
            elif base in ('v_readfirstlane_b32', 'v_readlane_b32'):
                self.dst = R(0); self.src = allsrc(1); self.kind = 'readlane'
            elif base in ('v_fmac_f32', 'v_pk_fmac_f16', 'v_dot2c_f32_bf16', 'v_writelane_b32'):
                self.dst = R(0); self.src = R(0) + allsrc(1)
            elif base == 'v_cndmask_b32':
                self.dst = R(0); self.src = allsrc(1)
                if len(ops) == 3: self.src += [('vcc', 0), ('vcc', 1)]
            else:
                self.dst = R(0); self.src = allsrc(1)
            if self.dpp and base in ('v_mov_b32',) :
                self.src = self.src + R(0)
            if base in TRANS: self.kind = 'trans'
        elif op.startswith('ds_'):
            self.kind = 'ds'
            if op.startswith('ds_read') or op.startswith('ds_bpermute') or op.startswith('ds_swizzle'):
                self.dst = R(0); self.src = allsrc(1)
            else:
                self.src = allsrc(0)
        elif op.startswith('buffer_') or op.startswith('global_'):
            self.kind = 'vmem'
            lds = (' lds' in (' ' + mods)) or '_lds_' in op
            if op in ('buffer_wbl2', 'buffer_inv'):
                pass
            elif 'load' in op:
                if lds:
                    self.src = allsrc(0) + [('m0', 0)]
                else:
                    self.dst = R(0); self.src = allsrc(1)
            elif 'atomic' in op:
                ret = 'sc0' in mods
                if op.startswith('buffer_'):
                    self.src = allsrc(0); self.dst = R(0) if ret else []
                else:
                    if ret: self.dst = R(0); self.src = allsrc(1)
                    else: self.src = allsrc(0)
            else:
                self.src = allsrc(0)
                d = R(0) if op.startswith('buffer_') else R(1)
                if 'x4' in op or 'x3' in op: self.storedata = d
        elif op in ("COALCODE", "MASKCODE", "RDCODE"):
            self.kind = "ctl"
        elif op.startswith("s_"):
            self.kind = 'salu'
            if op in ('s_waitcnt', 's_barrier', 's_nop', 's_sleep', 's_setprio', 's_endpgm', 's_branch') or op.startswith('s_cbranch'):
                self.kind = 'ctl'
                if op == 's_nop': self.nst = int(ops[0], 0) + 1
            elif op.startswith('s_cmp'):
                self.src = allsrc(0)
            elif op.startswith('s_load') or op.startswith('s_memtime') or op.startswith('s_memrealtime') or op.startswith('s_buffer_load'):
                self.kind = 'smem'; self.dst = R(0); self.src = allsrc(1)
            elif 'saveexec' in op:
                self.dst = R(0) + [('exec', 0), ('exec', 1)]; self.src = allsrc(1) + [('exec', 0), ('exec', 1)]
            else:
                self.dst = R(0); self.src = allsrc(1)
        else:
            raise ValueError('unknown op ' + text)

class Prog:
    def __init__(self, auto=True):
        self.lines = []
        self.hist = []
        self.lgkm = []
        self.vm = []
        self.auto = auto
        self.nops = 0
        self.log = []
        self.count = 0
        self.vmissued = 0
    def raw(self, text):
        self.lines.append(text)
    def comment(self, text):
        self.lines.append('    ; ' + text)
    def label(self, name, align=None):
        if align is not None: self.lines.append('.p2align %d' % align)
        self.lines.append(name + ':')
    def _advance(self, n):
        self.hist = [(i, a + n) for (i, a) in self.hist if a + n < 24]
    def _push(self, inst):
        self.lines.append('    ' + inst.text)
        self.count += 1
        self._advance(inst.nst)
        self.hist.append((inst, 0))
    def _need(self, inst):
        need = 0
        S = set(inst.src); D = set(inst.dst)
        isvalu = inst.kind in ('valu', 'trans', 'permlane', 'readlane')
        for (p, age) in self.hist:
            PD = set(p.dst)
            pvalu = p.kind in ('valu', 'trans', 'permlane', 'readlane')
            req = 0
            if p.kind == 'mfma':
                w = 8 if p.passes == 4 else 12
                if inst.kind == 'mfma':
                    if PD & (S - set(inst.srcC)): req = max(req, w)
                    c = set(inst.srcC)
                    if PD & c:
                        if c == PD and p.passes == inst.passes: pass
                        else: req = max(req, 6 if p.passes == 4 else 10)
                    if (PD & D) and not (set(inst.srcC) == PD): req = max(req, 6 if p.passes == 4 else 10)
                elif isvalu or inst.kind in ('vmem', 'ds'):
                    if PD & (S | D): req = max(req, w)
                if isvalu and (set(p.srcC) & D): req = max(req, 3 if p.passes == 4 else 7)
            if pvalu:
                vd = {r for r in PD if r[0] in 'va'}
                sd = {r for r in PD if r[0] in ('s', 'vcc')}
                if inst.kind == 'mfma' and (vd & S): req = max(req, 2)
                if inst.kind == 'mfma' and ('exec', 0) in PD: req = max(req, 4)
                if inst.dpp and (vd & S): req = max(req, 2)
                if inst.dpp and ('exec', 0) in PD: req = max(req, 5)
                if inst.kind == 'permlane' and (vd & S): req = max(req, 2)
                if inst.kind == 'readlane' and (vd & S): req = max(req, 1)
                if inst.kind == 'vmem' and (sd & S): req = max(req, 5)
                if isvalu and (sd & S): req = max(req, 2)
                if p.kind == 'trans' and isvalu and inst.kind != 'trans' and (vd & S): req = max(req, 1)
                if p.kind == 'trans' and inst.kind in ('mfma',) and (vd & S): req = max(req, 2)
                if p.kind == 'readlane' and inst.kind == 'salu' and (sd & S): req = max(req, 1)
            if p.kind == 'salu' and ('m0', 0) in PD and inst.kind == 'vmem' and ('m0', 0) in S: req = max(req, 1)
            if p.storedata and (set(p.storedata) & D):
                req = max(req, 2 if isvalu else 1)
            need = max(need, req - age)
        return need
    def _autowait(self, inst):
        touched = set(inst.src) | set(inst.dst)
        lg = vmn = None
        for i in range(len(self.lgkm) - 1, -1, -1):
            if self.lgkm[i] & touched:
                lg = len(self.lgkm) - 1 - i; break
        for i in range(len(self.vm) - 1, -1, -1):
            if self.vm[i] & touched:
                vmn = len(self.vm) - 1 - i; break
        if lg is not None or vmn is not None:
            self.wait(vm=vmn, lgkm=lg)
    def wait(self, vm=None, lgkm=None):
        t = []
        if vm is not None:
            vm = min(vm, 63)
            t.append('vmcnt(%d)' % vm)
            if len(self.vm) > vm: self.vm = self.vm[len(self.vm) - vm:] if vm else []
        if lgkm is not None:
            lgkm = min(lgkm, 15)
            t.append('lgkmcnt(%d)' % lgkm)
            if len(self.lgkm) > lgkm: self.lgkm = self.lgkm[len(self.lgkm) - lgkm:] if lgkm else []
        self._push(Inst('s_waitcnt ' + ' '.join(t)))
    def __call__(self, text):
        for t in text.strip().split('\n'):
            t = t.strip()
            if not t or t.startswith(';'):
                if t: self.lines.append('    ' + t)
                continue
            self.emit(t)
    def emit(self, text):
        inst = Inst(text)
        if inst.op == 's_waitcnt':
            vm = re.search(r'vmcnt\((\d+)\)', text); lg = re.search(r'lgkmcnt\((\d+)\)', text)
            return self.wait(vm=int(vm.group(1)) if vm else None, lgkm=int(lg.group(1)) if lg else None)
        if self.auto:
            self._autowait(inst)
            n = self._need(inst)
            if n > 0:
                self.nops += n
                self.log.append((len(self.lines), n, text))
                while n > 0:
                    k = min(n, 16)
                    self._push(Inst('s_nop %d' % (k - 1)))
                    n -= k
        self._push(inst)
        if inst.kind == 'ds': self.lgkm.append(set(inst.dst))
        elif inst.kind == 'smem': self.lgkm.append(set(inst.dst));
        elif inst.kind == 'vmem':
            self.vm.append(set(inst.dst)); self.vmissued += 1
    def forget(self):
        self.lgkm = []; self.vm = []
    def clear_hazards(self, n=12):
        mx = 0
        for (p, age) in self.hist:
            if p.kind == 'mfma': mx = max(mx, (8 if p.passes == 4 else 12) - age)
            elif p.kind in ('valu', 'trans', 'permlane', 'readlane'): mx = max(mx, 5 - age if any(r[0] in ('s','vcc','exec') for r in p.dst) else 2 - age)
        if mx > 0: self.emit('s_nop %d' % (mx - 1))
    def text(self):
        return '\n'.join(self.lines) + '\n'

def v(a, n=1): return 'v%d' % a if n == 1 else 'v[%d:%d]' % (a, a + n - 1)
def a(x, n=1): return 'a%d' % x if n == 1 else 'a[%d:%d]' % (x, x + n - 1)
def s(x, n=1): return 's%d' % x if n == 1 else 's[%d:%d]' % (x, x + n - 1)
```

```python
from asmlib import *
from layout import *

VX_L = 0
KX_L = 8192
M_IMG, M_RS = 16384, 1088
Q_IMG = 25088
K_IMG = 27136
W_L = 32768
CHAIN_LDS = W_L + 4 * 32768

vLane = 0
vL16, vIdxQ, vIdxO, vMrd, vWrd0, vWrd1, vQwr, vKwr, vQtr, vKtr, vVX, vPst, vMst, vMld, vMwr, vTouch, vPld, vNeg1, vDummy = range(1, 20)
vFlag = vDummy
vFlagOff = 21
vT0, vT1, vT2 = 22, 23, 20
MF = 24
LAND = 56
AQK = 104
AV = 120
WQK = 128

sW = 3
SRD_WS = 4
SRD_T = 8
sH, sStep, sTag = 12, 13, 15
sPst = 16
sPld = 20
sMrd, sMwr, sMpo = 21, 22, 23
sKX, sVX, sKXn = 24, 25, 26
sKM, sVM = 27, 28
sCnt = 29
sTmp, sTmp2, sTmp3 = 30, 31, 32
sScale = 33
sM0kx, sM0vx = 34, 35
sFlagOff = 36
sW10 = 37
sScale2 = 76
sNfail = 78
sKVoff, sKVneed, sKVbase = 88, 89, 90
vKVf = 0
sTagN = 14
sMwrOld = 18
sMaskA = 8
sFlagVal = 79
sDBG = 38
sStamp = 40
sAcc = 44
SPIN_MAX = 200000

LDSCH = [0, 1, 6, 7]

def smf(p, acc, A, B, idx):
    p('v_smfmac_f32_16x16x64_bf16 %s, %s, %s, %s' % (v(acc, 4), v(A, 4), B, v(idx)))

def w_lds_addr(u, half):
    slot, T = u >> 2, u & 3
    off = slot * 32768 + T * 2048 + half * 1024
    return (vWrd0, off) if slot < 2 else (vWrd1, off - 65536)

def read_w(p, u, land, half):
    r, off = w_lds_addr(u, half)
    p('ds_read_b128 %s, %s offset:%d' % (v(LAND + land * 8 + half * 4, 4), v(r), off))

RAW = [60, 62, 64, 66, 68, 70, 72, 74, 88, 90, 92, 94, 96, 98, 100]
def lstamp(p, k, enable):
    if enable == 'light': p.raw('    s_memtime s[%d:%d]' % (RAW[k], RAW[k] + 1))
    if enable == 'real': p.raw('    s_memrealtime s[%d:%d]' % (RAW[k], RAW[k] + 1))
def lstamp_save(p, enable):
    if enable not in ('light', 'real'): return
    p.raw('    s_cmp_eq_u32 %s, 31' % s(sStep))
    for k in range(15): p.raw('    s_cselect_b32 %s, s%d, %s' % (s(sAcc + k), RAW[k], s(sAcc + k)))
def stamp(p, k, enable):
    if enable in ('light', 'real'): return
    if not enable or (enable == 'total' and k != 4): return
    if enable == 'abs':
        p.raw('    s_memtime %s' % s(sStamp + 2, 2))
        p.raw('    s_waitcnt lgkmcnt(0)')
        p.lgkm = []
        p.raw('    s_cmp_eq_u32 %s, 30' % s(sStep))
        p.raw('    s_cselect_b32 %s, %s, %s' % (s(sAcc + k), s(sStamp + 2), s(sAcc + k)))
        return
    if k > 4: return
    p.raw('    s_memtime %s' % s(sStamp + 2, 2))
    p.raw('    s_waitcnt lgkmcnt(0)')
    p.lgkm = []
    p.raw('    s_sub_u32 %s, %s, %s' % (s(sTmp3), s(sStamp + 2), s(sStamp)))
    p.raw('    s_add_u32 %s, %s, %s' % (s(sAcc + k), s(sAcc + k), s(sTmp3)))
    p.raw('    s_mov_b32 %s, %s' % (s(sStamp), s(sStamp + 2)))


def optint(opt, name, default):
    return int(opt[opt.index(name) + 1]) if name in opt else default
def delay(p, cycles):
    n = cycles // 4
    while n > 0:
        k = min(n, 16); p('s_nop %d' % (k - 1)); n -= k

def chain_setup(p):
    p('s_load_dwordx2 s[4:5], s[0:1], %d' % KA_WS)
    p('s_load_dwordx2 %s, s[0:1], %d' % (s(sDBG, 2), KA_DBG))
    p('v_lshrrev_b32 v1, 6, v0')
    p('v_readfirstlane_b32 %s, v1' % s(sW))
    p('v_and_b32 v0, 63, v0')
    p('s_waitcnt lgkmcnt(0)')
    p('s_mov_b32 s6, 0x%x' % WS_SIZE)
    p('s_mov_b32 s7, 0x20000')
    L = v(vLane)
    t0, t1, t2 = v(vT0), v(vT1), v(vT2)
    p('v_lshlrev_b32 %s, 4, %s' % (v(vL16), L))
    p('v_bfe_u32 %s, %s, 1, 1' % (t0, L))
    p('v_mov_b32 %s, 0x4444' % t1)
    p('v_mov_b32 %s, 0xeeee' % t2)
    p('v_cmp_eq_u32 vcc, 1, %s' % t0)
    p('v_cndmask_b32 %s, %s, %s, vcc' % (v(vIdxQ), t1, t2))
    p('v_bfe_u32 %s, %s, 3, 1' % (t0, L))
    p('v_cmp_eq_u32 vcc, 1, %s' % t0)
    p('v_cndmask_b32 %s, %s, %s, vcc' % (v(vIdxO), t1, t2))
    p('v_bfe_u32 %s, %s, 2, 2' % (t0, L))
    p('v_lshlrev_b32 %s, 1, %s' % (t0, t0))
    p('v_and_b32 %s, 1, %s' % (t1, L))
    p('v_add_u32 %s, %s, %s' % (t0, t0, t1))
    p('v_mul_u32_u24 %s, %d, %s' % (t0, M_RS, t0))
    p('v_lshrrev_b32 %s, 4, %s' % (t1, L))
    p('v_lshlrev_b32 %s, 5, %s' % (t1, t1))
    p('v_add_u32 %s, %s, %s' % (t0, t0, t1))
    p('v_bfe_u32 %s, %s, 1, 1' % (t1, L))
    p('v_lshlrev_b32 %s, 4, %s' % (t1, t1))
    p('v_add_u32 %s, %s, %s' % (t0, t0, t1))
    p('v_add_u32 %s, %d, %s' % (v(vMrd), M_IMG, t0))
    p('s_lshl_b32 %s, %s, 13' % (s(sTmp), s(sW)))
    p('s_add_u32 %s, %s, %d' % (s(sTmp), s(sTmp), W_L))
    p('v_add_u32 %s, %s, %s' % (v(vWrd0), s(sTmp), v(vL16)))
    p('v_add_u32 %s, 0x10000, %s' % (v(vWrd1), v(vWrd0)))
    p('v_and_b32 %s, 15, %s' % (t0, L))
    p('s_lshl_b32 %s, %s, 5' % (s(sTmp), s(sW)))
    p('v_add_u32 %s, %s, %s' % (t0, s(sTmp), t0))
    p('v_lshrrev_b32 %s, 4, %s' % (t1, L))
    p('v_lshlrev_b32 %s, 4, %s' % (t2, t0))
    p('v_lshl_add_u32 %s, %s, 2, %s' % (t2, t1, t2))
    p('v_add_u32 %s, %d, %s' % (v(vQwr), Q_IMG, t2))
    p('v_lshlrev_b32 %s, 5, %s' % (t2, t0))
    p('v_lshl_add_u32 %s, %s, 3, %s' % (t2, t1, t2))
    p('v_add_u32 %s, %d, %s' % (v(vKwr), K_IMG, t2))
    p('v_lshrrev_b32 %s, 2, %s' % (t0, L))
    p('v_and_b32 %s, 1, %s' % (t1, L))
    p('v_lshlrev_b32 %s, 4, %s' % (t2, t0))
    p('v_lshl_add_u32 %s, %s, 3, %s' % (t2, t1, t2))
    p('v_add_u32 %s, %d, %s' % (v(vQtr), Q_IMG, t2))
    p('v_and_b32 %s, 3, %s' % (t1, L))
    p('v_lshlrev_b32 %s, 5, %s' % (t2, t0))
    p('v_lshl_add_u32 %s, %s, 3, %s' % (t2, t1, t2))
    p('v_add_u32 %s, %d, %s' % (v(vKtr), K_IMG, t2))
    p('s_lshl_b32 %s, %s, 11' % (s(sTmp), s(sW)))
    p('s_add_u32 %s, %s, %d' % (s(sM0vx), s(sTmp), VX_L))
    p('s_add_u32 %s, %s, %d' % (s(sM0kx), s(sTmp), KX_L))
    p('v_add_u32 %s, %s, %s' % (v(vVX), s(sM0vx), v(vL16)))
    p('v_lshrrev_b32 %s, 5, %s' % (t0, L))
    p('v_lshlrev_b32 %s, 2, %s' % (t0, t0))
    p('v_bfe_u32 %s, %s, 2, 2' % (t1, L))
    p('v_add_u32 %s, %s, %s' % (t0, t0, t1))
    p('s_lshl_b32 %s, %s, 3' % (s(sTmp), s(sW)))
    p('v_add_u32 %s, %s, %s' % (t0, s(sTmp), t0))
    p('v_lshlrev_b32 %s, 13, %s' % (t0, t0))
    p('v_bfe_u32 %s, %s, 4, 1' % (t1, L))
    p('v_lshlrev_b32 %s, 2, %s' % (t1, t1))
    p('v_and_b32 %s, 3, %s' % (t2, L))
    p('v_add_u32 %s, %s, %s' % (t1, t1, t2))
    p('v_lshlrev_b32 %s, 4, %s' % (t1, t1))
    p('s_lshl_b32 %s, %s, 7' % (s(sTmp), s(sH)))
    p('v_add3_u32 %s, %s, %s, %s' % (v(vPst), t0, t1, s(sTmp)))
    p('v_bfe_u32 %s, %s, 2, 1' % (t0, L))
    p('s_and_b32 %s, %s, 2' % (s(sTmp), s(sW)))
    p('v_add_u32 %s, %s, %s' % (t0, s(sTmp), t0))
    p('v_lshlrev_b32 %s, 5, %s' % (t0, t0))
    p('v_add_u32 %s, %s, %s' % (t0, s(sH), t0))
    p('v_lshlrev_b32 %s, 6, %s' % (t0, t0))
    p('v_and_b32 %s, 3, %s' % (t1, L))
    p('v_lshlrev_b32 %s, 1, %s' % (t1, t1))
    p('s_and_b32 %s, %s, 1' % (s(sTmp), s(sW)))
    p('v_add_u32 %s, %s, %s' % (t1, s(sTmp), t1))
    p('v_lshl_add_u32 %s, %s, 3, %s' % (t0, t1, t0))
    p('v_bfe_u32 %s, %s, 4, 1' % (t1, L))
    p('v_lshl_add_u32 %s, %s, 2, %s' % (t0, t1, t0))
    p('v_and_b32 %s, 0x28, %s' % (t1, L))
    p('v_mov_b32 %s, 0x%x' % (t2, OOB))
    p('v_cmp_eq_u32 vcc, 0, %s' % t1)
    p('v_cndmask_b32 %s, %s, %s, vcc' % (v(vMst), t2, t0))
    p('v_lshrrev_b32 %s, 2, %s' % (t0, L))
    p('v_lshlrev_b32 %s, 7, %s' % (t0, t0))
    p('v_and_b32 %s, 3, %s' % (t1, L))
    p('v_lshl_add_u32 %s, %s, 4, %s' % (t0, t1, t0))
    p('s_and_b32 %s, %s, 1' % (s(sTmp), s(sW)))
    p('s_lshl_b32 %s, %s, 6' % (s(sTmp), s(sTmp)))
    p('v_add_u32 %s, %s, %s' % (v(vPld), s(sTmp), t0))
    p('s_lshl_b32 %s, %s, 11' % (s(sTmp), s(sW)))
    p('v_add_u32 %s, %s, %s' % (v(vMld), s(sTmp), v(vL16)))
    p('v_and_b32 %s, 3, %s' % (t0, L))
    p('v_mul_u32_u24 %s, %d, %s' % (t0, M_RS, t0))
    p('v_lshrrev_b32 %s, 2, %s' % (t1, L))
    p('v_lshl_add_u32 %s, %s, 3, %s' % (t0, t1, t0))
    p('s_lshl_b32 %s, %s, 8' % (s(sTmp), s(sW)))
    p('s_add_u32 %s, %s, %d' % (s(sTmp), s(sTmp), M_IMG))
    p('v_add_u32 %s, %s, %s' % (v(vMwr), s(sTmp), t0))
    p('v_and_b32 %s, 31, %s' % (t0, L))
    p('v_lshlrev_b32 %s, 6, %s' % (t0, t0))
    p('s_lshl_b32 %s, %s, 11' % (s(sTmp), s(sW)))
    p('v_add_u32 %s, %s, %s' % (t0, s(sTmp), t0))
    p('v_lshrrev_b32 %s, 5, %s' % (t1, L))
    p('v_mul_u32_u24 %s, 0x100, %s' % (t1, t1))
    p('v_lshlrev_b32 %s, 16, %s' % (t1, t1))
    p('v_add_u32 %s, %s, %s' % (v(vTouch), t0, t1))
    p('v_mov_b32 %s, -1' % v(vNeg1))
    p('s_mov_b32 %s, 0x3e0293ee' % s(sScale))
    p('s_mov_b32 %s, 0x3e0293ee' % s(sScale2))
    p('s_mov_b32 %s, 0x3e0293ee' % s(sScale2 + 1))
    p('s_mov_b32 %s, 0' % s(sNfail))

def chain_load_weights(p):
    vD = [24, 25, 26, 27]
    vE = [28, 29, 30, 31]
    vA0, vA1, vAo = 32, 33, 34
    L = v(vLane); t0, t1, t2 = v(vT0), v(vT1), v(vT2)
    p('s_load_dwordx4 s[48:51], s[0:1], %d' % KA_WQ)
    p('s_load_dwordx4 s[52:55], s[0:1], %d' % KA_WV)
    for q in range(4):
        p('v_bfe_u32 %s, %s, 4, 1' % (t0, L))
        p('v_lshlrev_b32 %s, 1, %s' % (t0, t0))
        p('v_and_b32 %s, 15, %s' % (t1, L))
        p('v_xor_b32 %s, %s, %s' % (t0, t0, t1))
        p('v_xor_b32 %s, %d, %s' % (t0, 4 * (q & 1) + 8 * (q >> 1), t0))
        p('v_lshlrev_b32 %s, 4, %s' % (t0, t0))
        p('v_lshrrev_b32 %s, 4, %s' % (t1, L))
        p('v_lshl_add_u32 %s, %s, 13, %s' % (v(vD[q]), t1, t0))
    p('s_lshr_b32 %s, %s, 1' % (s(sTmp), s(sW)))
    p('s_lshl_b32 %s, %s, 3' % (s(sTmp), s(sTmp)))
    for q in range(2):
        p('v_xor_b32 %s, %d, %s' % (t0, 4 * q, L))
        p('v_xor_b32 %s, %s, %s' % (t0, s(sTmp), t0))
        p('v_lshlrev_b32 %s, 4, %s' % (v(vE[q]), t0))
    for t, reg in ((0, vA0), (1, vA1)):
        p('v_bfe_u32 %s, %s, 5, 1' % (t0, L))
        p('v_lshlrev_b32 %s, 4, %s' % (t0, t0))
        p('v_bfe_u32 %s, %s, 4, 1' % (t1, L))
        p('v_lshl_add_u32 %s, %s, 2, %s' % (t0, t1, t0))
        p('v_bfe_u32 %s, %s, 3, 1' % (t1, L))
        p('v_lshl_add_u32 %s, %s, 3, %s' % (t0, t1, t0))
        p('v_bfe_u32 %s, %s, 2, 1' % (t1, L))
        p('v_add_u32 %s, %s, %s' % (t0, t0, t1))
        p('v_lshlrev_b32 %s, 8, %s' % (v(reg), t0))
        p('v_bfe_u32 %s, %s, 2, 1' % (t0, L))
        p('v_lshlrev_b32 %s, 1, %s' % (t0, t0))
        p('v_bfe_u32 %s, %s, 4, 1' % (t1, L))
        p('v_lshl_add_u32 %s, %s, 2, %s' % (t0, t1, t0))
        p('v_bfe_u32 %s, %s, 3, 1' % (t1, L))
        p('v_lshl_add_u32 %s, %s, 3, %s' % (t0, t1, t0))
        p('v_bfe_u32 %s, %s, 1, 1' % (t1, L))
        p('s_lshl_b32 %s, %s, 2' % (s(sTmp), s(sW)))
        p('s_add_u32 %s, %s, %d' % (s(sTmp), s(sTmp), 2 * t))
        p('v_add_u32 %s, %s, %s' % (t1, s(sTmp), t1))
        p('v_xor_b32 %s, %s, %s' % (t0, t0, t1))
        p('v_lshlrev_b32 %s, 4, %s' % (t0, t0))
        p('v_and_b32 %s, 1, %s' % (t1, L))
        p('v_lshl_add_u32 %s, %s, 3, %s' % (t0, t1, t0))
        p('v_add_u32 %s, %s, %s' % (v(reg), v(reg), t0))
    p('v_bfe_u32 %s, %s, 4, 1' % (t0, L))
    p('v_lshlrev_b32 %s, 4, %s' % (t0, t0))
    p('v_bfe_u32 %s, %s, 5, 1' % (t1, L))
    p('v_lshl_add_u32 %s, %s, 2, %s' % (t0, t1, t0))
    p('v_bfe_u32 %s, %s, 2, 1' % (t1, L))
    p('v_add_u32 %s, %s, %s' % (t0, t0, t1))
    p('v_lshlrev_b32 %s, 10, %s' % (v(vAo), t0))
    p('v_bfe_u32 %s, %s, 2, 1' % (t0, L))
    p('v_lshlrev_b32 %s, 2, %s' % (t0, t0))
    p('v_bfe_u32 %s, %s, 4, 1' % (t1, L))
    p('v_lshl_add_u32 %s, %s, 3, %s' % (t0, t1, t0))
    p('v_bfe_u32 %s, %s, 3, 1' % (t1, L))
    p('v_lshlrev_b32 %s, 1, %s' % (t1, t1))
    p('v_bfe_u32 %s, %s, 1, 1' % (t2, L))
    p('v_add_u32 %s, %s, %s' % (t1, t1, t2))
    p('s_lshl_b32 %s, %s, 2' % (s(sTmp), s(sW)))
    p('v_add_u32 %s, %s, %s' % (t1, s(sTmp), t1))
    p('v_xor_b32 %s, %s, %s' % (t0, t0, t1))
    p('v_lshlrev_b32 %s, 4, %s' % (t0, t0))
    p('v_and_b32 %s, 1, %s' % (t1, L))
    p('v_lshl_add_u32 %s, %s, 3, %s' % (t0, t1, t0))
    p('v_add_u32 %s, %s, %s' % (v(vAo), v(vAo), t0))
    p('s_waitcnt lgkmcnt(0)')
    for k, (lo, base) in enumerate(((48, 56), (50, 60), (52, 64), (54, 68))):
        p('s_mov_b32 s%d, s%d' % (base, lo))
        p('s_mov_b32 s%d, s%d' % (base + 1, lo + 1))
        p('s_mov_b32 s%d, 0x400000' % (base + 2))
        p('s_mov_b32 s%d, 0x20000' % (base + 3))
    p('s_cmp_lt_u32 %s, 2' % s(sW))
    p('s_cselect_b32 s72, s56, s60')
    p('s_cselect_b32 s73, s57, s61')
    p('s_mov_b32 s74, 0x400000')
    p('s_mov_b32 s75, 0x20000')
    slot_base = lambda n: [W_L + 3 * 32768, 0, W_L, W_L + 32768, W_L + 2 * 32768][n % 5]
    QKCH = [2, 3, 4, 5] + LDSCH
    def issue(n):
        base = slot_base(n)
        sOff, sM = sTmp, sTmp2
        if n < 4:
            p('s_lshl_b32 %s, %s, 5' % (s(sOff), s(sW)))
            p('s_add_u32 %s, %s, %d' % (s(sOff), s(sOff), 128 * n))
            p('s_lshl_b32 %s, %s, 13' % (s(sOff), s(sOff)))
            p('s_lshl_b32 %s, %s, 8' % (s(sTmp3), s(sH)))
            p('s_add_u32 %s, %s, %s' % (s(sOff), s(sOff), s(sTmp3)))
            p('s_lshl_b32 %s, %s, 13' % (s(sM), s(sW)))
            p('s_add_u32 %s, %s, %d' % (s(sM), s(sM), base))
            for k in range(8):
                p('s_mov_b32 m0, %s' % s(sM))
                p('s_add_u32 %s, %s, 1024' % (s(sM), s(sM)))
                p('buffer_load_dwordx4 %s, s[64:67], %s offen lds' % (v(vD[k & 3]), s(sOff)))
                p('s_add_u32 %s, %s, %d' % (s(sOff), s(sOff), 4 * 8192))
        elif n < 8:
            ec = n - 4
            p('s_lshl_b32 %s, %s, 7' % (s(sOff), s(sH)))
            p('s_lshl_b32 %s, %s, 3' % (s(sTmp3), s(sW)))
            p('s_add_u32 %s, %s, %s' % (s(sOff), s(sOff), s(sTmp3)))
            p('s_add_u32 %s, %s, %d' % (s(sOff), s(sOff), 32 * ec))
            p('s_lshl_b32 %s, %s, 10' % (s(sOff), s(sOff)))
            p('s_lshl_b32 %s, %s, 13' % (s(sM), s(sW)))
            p('s_add_u32 %s, %s, %d' % (s(sM), s(sM), base))
            for k in range(8):
                p('s_mov_b32 m0, %s' % s(sM))
                p('s_add_u32 %s, %s, 1024' % (s(sM), s(sM)))
                p('buffer_load_dwordx4 %s, s[68:71], %s offen lds' % (v(vE[k & 1]), s(sOff)))
                p('s_add_u32 %s, %s, 1024' % (s(sOff), s(sOff)))
        else:
            ch = QKCH[n - 8]
            p('s_and_b32 %s, %s, 1' % (s(sOff), s(sW)))
            p('s_lshl_b32 %s, %s, 5' % (s(sOff), s(sOff)))
            p('s_add_u32 %s, %s, %d' % (s(sOff), s(sOff), 64 * ch))
            p('s_lshl_b32 %s, %s, 13' % (s(sOff), s(sOff)))
            p('s_lshl_b32 %s, %s, 8' % (s(sTmp3), s(sH)))
            p('s_add_u32 %s, %s, %s' % (s(sOff), s(sOff), s(sTmp3)))
            p('s_lshl_b32 %s, %s, 13' % (s(sM), s(sW)))
            p('s_add_u32 %s, %s, %d' % (s(sM), s(sM), base))
            for k in range(8):
                p('s_mov_b32 m0, %s' % s(sM))
                p('s_add_u32 %s, %s, 1024' % (s(sM), s(sM)))
                p('buffer_load_dwordx4 %s, s[72:75], %s offen lds' % (v(vD[k & 3]), s(sOff)))
                p('s_add_u32 %s, %s, %d' % (s(sOff), s(sOff), 4 * 8192))
    def consume(n):
        base = slot_base(n)
        va0, va1, vao = 36, 37, 38
        if n < 4:
            p('v_add_u32 %s, %d, %s' % (v(va0), base, v(vA0)))
            p('v_add_u32 %s, %d, %s' % (v(va1), base, v(vA1)))
            for cc in range(2):
                c = 2 * n + cc
                for t in range(2):
                    for r in (0, 2, 4, 6):
                        off = (cc * 64 + 32 * (r >> 2) + 2 * ((r >> 1) & 1)) * 256
                        p('ds_read_b64_tr_b16 %s, %s offset:%d' % (a((c * 2 + t) * 8 + r, 2), v(va0 if t == 0 else va1), off))
        elif n < 8:
            ec = n - 4
            p('v_add_u32 %s, %d, %s' % (v(vao), base, v(vAo)))
            for wv in range(4):
                if wv < 3:
                    p('s_cmp_lg_u32 %s, %d' % (s(sW), wv))
                    p('s_cbranch_scc1 L_WO%d_%d' % (ec, wv + 1))
                for pp in range(4):
                    for r in (0, 2, 4, 6):
                        off = (8 * (r >> 2) + 2 * ((r >> 1) & 1)) * 1024 + pp * 256
                        p('ds_read_b64_tr_b16 %s, %s offset:%d' % (a(128 + (pp * 4 + (ec ^ wv)) * 8 + r, 2), v(vao), off))
                if wv < 3:
                    p('s_branch L_WO%d_E' % ec)
                    p.label('L_WO%d_%d' % (ec, wv + 1))
            p.label('L_WO%d_E' % ec)
        else:
            p('v_add_u32 %s, %d, %s' % (v(va0), base, v(vA0)))
            p('v_add_u32 %s, %d, %s' % (v(va1), base, v(vA1)))
            j = n - 8
            for T in range(4):
                mat, t = T >> 1, T & 1
                for r in (0, 2, 4, 6):
                    off = (mat * 64 + 32 * (r >> 2) + 2 * ((r >> 1) & 1)) * 256
                    dst = WQK + (j * 4 + T) * 8 + r if j < 4 else LAND + T * 8 + r
                    p('ds_read_b64_tr_b16 %s, %s offset:%d' % (v(dst, 2), v(va0 if t == 0 else va1), off))
    for n in range(5): issue(n)
    for n in range(16):
        inflight = min(16, n + 5) - n - 1
        p.wait(vm=8 * inflight)
        p('s_barrier')
        consume(n)
        p.wait(lgkm=0)
        p('s_barrier')
        if n >= 12:
            slot = n - 12
            r = vWrd0 if slot < 2 else vWrd1
            for T in range(4):
                for half in range(2):
                    off = slot * 32768 + T * 2048 + half * 1024 - (0 if slot < 2 else 65536)
                    p('ds_write_b128 %s, %s offset:%d' % (v(r), v(LAND + T * 8 + half * 4, 4), off))
        if n + 5 < 16: issue(n + 5)
    p.wait(lgkm=0)


def chain_init_globals(p):
    L = v(vLane); t0, t1, t2 = v(vT0), v(vT1), v(vT2)
    for r in range(4): p('v_mov_b32 %s, 0' % v(MF + r))
    p('s_lshl_b32 %s, %s, 13' % (s(sTmp), s(sH)))
    p('s_lshl_b32 %s, %s, 11' % (s(sTmp2), s(sW)))
    p('s_add_u32 %s, %s, %s' % (s(sTmp), s(sTmp), s(sTmp2)))
    p('s_add_u32 %s, %s, 0x%x' % (s(sTmp), s(sTmp), WS_PART))
    p('s_add_u32 %s, %s, 0x40000' % (s(sTmp2), s(sTmp)))
    for k in range(2):
        p('buffer_store_dwordx4 %s, %s, s[4:7], %s offen offset:%d' % (v(MF, 4), v(vL16), s(sTmp), k * 1024))
        p('buffer_store_dwordx4 %s, %s, s[4:7], %s offen offset:%d' % (v(MF, 4), v(vL16), s(sTmp2), k * 1024))
    for slot in range(3):
        p('s_mov_b32 %s, 0x%x' % (s(sTmp), WS_M + slot * 8192))
        p('buffer_store_dword %s, %s, s[4:7], %s offen' % (v(vNeg1), v(vMst), s(sTmp)))

def chain_init_mem0(p):
    L = v(vLane); t0, t1, t2 = v(vT0), v(vT1), v(vT2)
    p('s_load_dwordx2 s[48:49], s[0:1], %d' % KA_MEM0)
    p('v_lshrrev_b32 %s, 3, %s' % (t0, L))
    p('v_and_b32 %s, 7, %s' % (t1, L))
    p('v_lshlrev_b32 %s, 4, %s' % (t1, t1))
    p('s_lshl_b32 %s, %s, 8' % (s(sTmp), s(sW)))
    p('v_add_u32 %s, %s, %s' % (t1, s(sTmp), t1))
    p('v_lshl_add_u32 %s, %s, 10, %s' % (t2, t0, t1))
    p('v_mul_u32_u24 %s, %d, %s' % (t0, M_RS, t0))
    p('v_add_u32 %s, %s, %s' % (t0, t0, t1))
    p('v_add_u32 %s, %d, %s' % (t0, M_IMG, t0))
    p('s_waitcnt lgkmcnt(0)')
    p('s_mov_b32 s50, 8192')
    p('s_mov_b32 s51, 0x20000')
    p('buffer_load_dwordx4 %s, %s, s[48:51], 0 offen' % (v(MF + 4, 4), t2))
    p('buffer_load_dwordx4 %s, %s, s[48:51], 0 offen offset:128' % (v(MF + 8, 4), t2))
    p('ds_write_b128 %s, %s' % (t0, v(MF + 4, 4)))
    p('ds_write_b128 %s, %s offset:128' % (t0, v(MF + 8, 4)))
    p.wait(vm=0, lgkm=0)

def chain_init_comm(p):
    chain_init_globals(p)
    chain_init_mem0(p)

def chain_loop(p, nsteps=64, stamps=False, opt=()):
    L = v(vLane); t0, t1, t2 = v(vT0), v(vT1), v(vT2)
    SC = '' if 'nosc1' in opt else ' sc1'
    p('s_mov_b32 %s, 0' % s(sStep))
    p('s_mov_b32 %s, 0' % s(sFlagVal))
    p('s_mov_b32 %s, 1' % s(sTag))
    for P in range(2):
        p('s_mov_b32 %s, 0x%x' % (s(sPst + P), WS_PART + P * 4096))
    p('s_lshl_b32 %s, %s, 13' % (s(sPld), s(sH)))
    p('s_lshr_b32 %s, %s, 1' % (s(sTmp), s(sW)))
    p('s_lshl_b32 %s, %s, 12' % (s(sTmp), s(sTmp)))
    p('s_add_u32 %s, %s, %s' % (s(sPld), s(sPld), s(sTmp)))
    p('s_add_u32 %s, %s, 0x%x' % (s(sPld), s(sPld), WS_PART))
    p('s_mov_b32 %s, 0x%x' % (s(sMrd), WS_M))
    p('s_mov_b32 %s, 0x%x' % (s(sMwr), WS_M + 8192))
    p('s_mov_b32 %s, 0x%x' % (s(sMpo), WS_M + 16384))
    p('s_lshl_b32 %s, %s, 13' % (s(sTmp), s(sH)))
    p('s_lshl_b32 %s, %s, 11' % (s(sTmp2), s(sW)))
    p('s_add_u32 %s, %s, %s' % (s(sKX), s(sTmp), s(sTmp2)))
    p('s_add_u32 %s, %s, 0x%x' % (s(sVX), s(sKX), WS_VX))
    p('s_add_u32 %s, %s, 0x%x' % (s(sKXn), s(sTmp), 32 * 8192))
    p('s_lshl_b32 %s, %s, 12' % (s(sTmp), s(sH)))
    p('s_lshl_b32 %s, %s, 10' % (s(sTmp2), s(sW)))
    p('s_add_u32 %s, %s, %s' % (s(sTmp), s(sTmp), s(sTmp2)))
    p('s_add_u32 %s, %s, 0x%x' % (s(sKM), s(sTmp), WS_KM - 32 * 4096))
    p('s_add_u32 %s, %s, 0x%x' % (s(sVM), s(sTmp), WS_VM - 32 * 4096))
    p('s_lshl_b32 %s, %s, 7' % (s(sTmp), s(sH)))
    p('s_add_u32 %s, %s, 0x%x' % (s(sFlagOff), s(sTmp), WS_FLAG))
    p('s_lshl_b32 %s, %s, 10' % (s(sW10), s(sW)))
    p('v_or_b32 %s, %s, %s' % (t0, s(sW), L))
    p('v_mov_b32 %s, 0x%x' % (t1, OOB))
    p('v_cmp_eq_u32 vcc, 0, %s' % t0)
    p('v_cndmask_b32 %s, %s, 0, vcc' % (v(vFlagOff), t1))
    if 'kvflags' in opt:
        p('s_lshl_b32 %s, %s, 9' % (s(sTmp), s(sH)))
        p('s_add_u32 %s, %s, 0x%x' % (s(sKVbase), s(sTmp), WS_QFLAG))
        p('s_mov_b32 %s, %s' % (s(sKVoff), s(sKVbase)))
        p('s_mov_b32 %s, 0' % s(sCnt))
        p.label('L_KV0')
        p('buffer_load_dword %s, off, s[4:7], %s sc1' % (v(vKVf), s(sKVoff)))
        p.wait(vm=0)
        p('v_readfirstlane_b32 %s, %s' % (s(sTmp), v(vKVf)))
        p('s_add_u32 %s, %s, 1' % (s(sCnt), s(sCnt)))
        p('s_cmp_gt_u32 %s, %d' % (s(sCnt), SPIN_MAX * 4))
        p('s_cbranch_scc1 L_BAIL')
        p('s_cmp_lt_u32 %s, 2' % s(sTmp))
        p('s_cbranch_scc1 L_KV0')
        p('s_mov_b32 %s, 3' % s(sKVneed))
        p('s_mov_b32 %s, 0' % s(sCnt))
        p.forget()
    p('s_mov_b32 m0, %s' % s(sM0kx))
    p('s_nop 0')
    p('buffer_load_dwordx4 %s, s[4:7], %s offen lds' % (v(vL16), s(sKX)))
    p('buffer_load_dwordx4 %s, s[4:7], %s offen offset:1024 lds' % (v(vL16), s(sKX)))
    PRE = [(0, 0), (0, 1), (0, 2), (0, 3), (1, 0), (1, 1)]
    REF = [(2, 0), (2, 1), (3, 0), (3, 1), (1, 2), (1, 3), (2, 2), (2, 3), (3, 2), (3, 3)]
    def rd_w(st, land, half): read_w(p, st[0] * 4 + st[1], land, half)
    for u in range(6):
        rd_w(PRE[u], u, 0); rd_w(PRE[u], u, 1)
    for r in range(0, 24, 2): p('v_mov_b64 %s, 0' % v(AQK + r, 2))
    p.wait(vm=0, lgkm=0)
    if stamps:
        for k in range(15): p('s_mov_b32 %s, 0' % s(sAcc + k))
        p.raw('    s_memtime %s' % s(sStamp, 2)); p.raw('    s_waitcnt lgkmcnt(0)')
    p('s_barrier')
    p('s_branch L_T0')
    p.label('L_STEP', align=6)
    p.forget()
    G = MF
    p('buffer_load_dwordx4 %s, %s, s[4:7], %s offen sc1' % (v(G, 4), v(vMld), s(sMrd)))
    p('buffer_load_dwordx4 %s, %s, s[4:7], %s offen offset:1024 sc1' % (v(G + 4, 4), v(vMld), s(sMrd)))
    p.label('L_GCHECK')
    p.wait(vm=0)
    stamp(p, 10, stamps)
    p('v_max3_u32 %s, %s, %s, %s' % (t0, v(G), v(G + 1), v(G + 2)))
    p('v_max3_u32 %s, %s, %s, %s' % (t1, v(G + 3), v(G + 4), v(G + 5)))
    p('v_max3_u32 %s, %s, %s, %s' % (t0, t0, v(G + 6), v(G + 7)))
    p('v_max_u32 %s, %s, %s' % (t0, t0, t1))
    p('v_cmp_eq_u32 vcc, -1, %s' % t0)
    p('s_cbranch_vccnz L_GFAIL')
    lstamp(p, 14, stamps)
    for k in range(2):
        for hh in range(2):
            p('ds_write_b64 %s, %s offset:%d' % (v(vMwr), v(G + 4 * k + 2 * hh, 2), hh * 4 * M_RS + k * 128))
    p.wait(lgkm=0)
    stamp(p, 0, stamps)
    p('s_barrier')
    p.label('L_T0')
    p.forget()
    lstamp_save(p, stamps)
    lstamp(p, 0, stamps)
    stamp(p, 5, stamps)
    def rd_m(c): p('ds_read_b128 %s, %s offset:%d' % (v(MF + 4 * c, 4), v(vMrd), c * 128))
    for c in (0, 1, 2, 6): rd_m(c)
    PUB = MF + 16
    VA = MF + 20
    p('s_mov_b32 m0, %s' % s(sM0vx))
    p('v_mov_b32 %s, %s' % (v(vFlag), s(sFlagVal)))
    p('buffer_load_dwordx4 %s, s[4:7], %s offen lds' % (v(vL16), s(sVX)))
    p('buffer_load_dwordx4 %s, s[4:7], %s offen offset:1024 lds' % (v(vL16), s(sVX)))
    if 'nopub' not in opt:
        p('buffer_store_dwordx4 %s, %s, s[4:7], %s offen%s' % (v(PUB, 4), v(vL16), s(sKM), SC))
        p('buffer_store_dwordx4 %s, %s, s[4:7], %s offen%s' % (v(VA, 4), v(vL16), s(sVM), SC))
    NV0 = len(p.vm)
    lstamp(p, 1, stamps)
    def U(i): return (LDSCH[PRE[i][0]], PRE[i][1], v(LAND + i * 8, 8))
    def F(i): return (LDSCH[REF[i][0]], REF[i][1], v(LAND + (i % 6) * 8, 8))
    def R(c, T): return (c, T, v(WQK + ((c - 2) * 4 + T) * 8, 8))
    order = [U(0), U(1), U(2), U(3), U(4), U(5), R(2, 0), R(2, 1), F(0), R(3, 0), F(1), R(3, 1), F(2), R(4, 0), R(4, 1), F(3),
             R(5, 0), R(5, 1), F(4), R(2, 2), F(5), R(2, 3), F(6), R(3, 2), F(7), R(3, 3), F(8), R(4, 2), F(9), R(5, 2), R(4, 3), R(5, 3)]
    def refill(j, half):
        def rf(): rd_w(REF[j], j % 6, half)
        return rf
    fill = [refill(0, 0), refill(0, 1), lambda: rd_m(3), refill(1, 0), refill(1, 1), lambda: rd_m(7),
            refill(2, 0), refill(2, 1), lambda: rd_m(4), refill(3, 0), refill(3, 1), lambda: rd_m(5)]
    for j in range(4, 10): fill += [refill(j, 0), refill(j, 1)]
    def fold_add(T): p('v_pk_add_f32 %s, %s, %s' % (v(AQK + 4 * T, 2), v(AQK + 4 * T, 2), v(AQK + 4 * T + 2, 2)))
    def fold_cvt(T): p('v_cvt_pk_bf16_f32 %s, %s, %s' % (v(AQK + 4 * T), v(AQK + 4 * T), v(AQK + 4 * T + 1)))
    def fold_wr(T):
        if T < 2: p('ds_write_b32 %s, %s offset:%d' % (v(vQwr), v(AQK + 4 * T), T * 256))
        else: p('ds_write2_b32 %s, %s, %s offset0:%d offset1:%d' % (v(vKwr), v(AQK + 4 * T), v(AQK + 4 * T), (T - 2) * 128, (T - 2) * 128 + 1))
    fill += [lambda: fold_add(0), lambda: fold_add(1), lambda: fold_cvt(0), lambda: fold_cvt(1), lambda: fold_wr(0), lambda: fold_wr(1)]
    for n, (c, T, B) in enumerate(order):
        smf(p, AQK + 4 * T, MF + 4 * c, B, vIdxQ)
        if n < len(fill): fill[n]()
    stamp(p, 6, stamps)
    lstamp(p, 2, stamps)
    p('buffer_store_dword %s, %s, s[4:7], %s offen' % (v(vNeg1), v(vMst), s(sMpo)))
    p('buffer_store_dword %s, %s, s[4:7], %s offen%s' % (v(vFlag), v(vFlagOff), s(sFlagOff), SC))
    if 'samekv' in opt: pass
    elif 'notouch' not in opt: p('buffer_load_dword %s, %s, s[4:7], %s offen' % (v(vDummy), v(vTouch), s(sKXn)))
    if 'kvflags' in opt: p('buffer_load_dword %s, off, s[4:7], %s sc1' % (v(vKVf), s(sKVoff)))
    fold_add(2); fold_cvt(2); fold_wr(2)
    fold_add(3); fold_cvt(3); fold_wr(3)
    XF = LAND
    QR = LAND + 32
    KR = LAND + 40
    for ks in range(4):
        for jt in range(2): p('ds_read_b128 %s, %s offset:%d' % (v(XF + ks * 8 + jt * 4, 4), v(vL16), KX_L + jt * 4096 + ks * 1024))
    vq = [(c, t) for c in range(8) for t in range(2)]
    def vs(k=1):
        for _ in range(k):
            if vq and 'nov' in opt: vq.pop(0)
            elif vq:
                c, t = vq.pop(0)
                smf(p, AV + 4 * t, MF + 4 * c, a((c * 2 + t) * 8, 8), vIdxQ)
    vs(2)
    lstamp(p, 3, stamps)
    p.wait(lgkm=8)
    stamp(p, 1, stamps)
    p('s_barrier')
    lstamp(p, 4, stamps)
    SA = AQK
    def rd_q(ks):
        for hh in range(2): p('ds_read_b64_tr_b16 %s, %s offset:%d' % (v(QR + 4 * (ks & 1) + 2 * hh, 2), v(vQtr), ks * 512 + hh * 256))
    def rd_k(ks):
        for hh in range(2): p('ds_read_b64_tr_b16 %s, %s offset:%d' % (v(KR + 4 * (ks & 1) + 2 * hh, 2), v(vKtr), ks * 1024 + hh * 512))
    rd_q(0); rd_k(0); rd_q(1); rd_k(1)
    vs(4)
    for ks in range(4):
        C = lambda r: '0' if ks == 0 else v(r, 4)
        for jt in range(2):
            p('v_mfma_f32_16x16x32_bf16 %s, %s, %s, %s' % (v(SA + 4 * jt, 4), v(XF + ks * 8 + jt * 4, 4), v(QR + 4 * (ks & 1), 4), C(SA + 4 * jt)))
        p('v_mfma_f32_16x16x32_bf16 %s, %s, %s, %s' % (v(SA + 8, 4), v(KR + 4 * (ks & 1), 4), v(QR + 4 * (ks & 1), 4), C(SA + 8)))
        if ks < 2: rd_q(ks + 2); rd_k(ks + 2)
    stamp(p, 7, stamps)
    lstamp(p, 5, stamps)
    VXF = LAND
    p.wait(vm=len(p.vm) - 2)
    for t in range(2): p('ds_read_b128 %s, %s offset:%d' % (v(VXF + 4 * t, 4), v(vVX), t * 1024))
    vs(1)
    X = SA
    mx = vT0
    p('v_max3_f32 %s, %s, %s, %s' % (v(mx), v(X), v(X + 1), v(X + 2)))
    p('v_max3_f32 %s, %s, %s, %s' % (v(vT1), v(X + 3), v(X + 4), v(X + 5)))
    p('v_max3_f32 %s, %s, %s, %s' % (v(mx), v(mx), v(X + 6), v(X + 7)))
    p('v_max3_f32 %s, %s, %s, %s' % (v(vT1), v(vT1), v(X + 8), v(X + 9)))
    p('v_max_f32 %s, %s, %s' % (v(mx), v(mx), v(vT1)))
    p('v_mov_b32 %s, %s' % (v(vT1), v(mx)))
    vs(1)
    p('v_permlane16_swap_b32 %s, %s' % (v(vT1), v(mx)))
    p('v_max_f32 %s, %s, %s' % (v(mx), v(mx), v(vT1)))
    p('v_mov_b32 %s, %s' % (v(vT1), v(mx)))
    vs(2)
    p('v_permlane32_swap_b32 %s, %s' % (v(vT1), v(mx)))
    p('v_max_f32 %s, %s, %s' % (v(mx), v(mx), v(vT1)))
    p('v_mul_f32 %s, %s, %s' % (v(mx), s(sScale), v(mx)))
    for r in range(0, 10, 2):
        p('v_pk_fma_f32 %s, %s, %s, %s op_sel_hi:[1,0,0] neg_lo:[0,0,1] neg_hi:[0,0,1]' % (v(X + r, 2), v(X + r, 2), s(sScale2, 2), v(mx, 2)))
    vs(len(vq))
    lstamp(p, 6, stamps)
    PX = LAND + 8
    PM = LAND + 12
    for r in range(0, 10): p('v_exp_f32 %s, %s' % (v(X + r), v(X + r)))
    for t in range(2):
        p('v_cvt_pk_bf16_f32 %s, %s, %s' % (v(VA + 2 * t), v(AV + 4 * t), v(AV + 4 * t + 1)))
        p('v_cvt_pk_bf16_f32 %s, %s, %s' % (v(VA + 2 * t + 1), v(AV + 4 * t + 2), v(AV + 4 * t + 3)))
    for r in range(4): p('v_cvt_pk_bf16_f32 %s, %s, %s' % (v(PX + r), v(X + 2 * r), v(X + 2 * r + 1)))
    p('v_cvt_pk_bf16_f32 %s, %s, %s' % (v(PM), v(X + 8), v(X + 9)))
    p('v_cvt_pk_bf16_f32 %s, %s, %s' % (v(PM + 1), v(X + 8), v(X + 9)))
    stamp(p, 8, stamps)
    lstamp(p, 7, stamps)
    OA = LAND + 24
    p('v_mfma_f32_16x16x32_bf16 %s, %s, %s, 0' % (v(OA, 4), v(VXF, 4), v(PX, 4)))
    p('v_pk_add_f32 %s, %s, %s' % (v(X, 2), v(X, 2), v(X + 2, 2)))
    p('v_pk_add_f32 %s, %s, %s' % (v(X + 4, 2), v(X + 4, 2), v(X + 6, 2)))
    p('v_mfma_f32_16x16x32_bf16 %s, %s, %s, 0' % (v(OA + 4, 4), v(VXF + 4, 4), v(PX, 4)))
    p('v_pk_add_f32 %s, %s, %s' % (v(X, 2), v(X, 2), v(X + 8, 2)))
    p('v_pk_add_f32 %s, %s, %s' % (v(X, 2), v(X, 2), v(X + 4, 2)))
    p('v_mfma_f32_16x16x16_bf16 %s, %s, %s, %s' % (v(OA, 4), v(VA, 2), v(PM, 2), v(OA, 4)))
    p('v_add_f32 %s, %s, %s' % (v(X), v(X), v(X + 1)))
    p('v_mov_b32 %s, %s' % (v(X + 1), v(X)))
    p('v_mfma_f32_16x16x16_bf16 %s, %s, %s, %s' % (v(OA + 4, 4), v(VA + 2, 2), v(PM, 2), v(OA + 4, 4)))
    p('v_add_u32 %s, %s, %s' % (t2, s(sW10), v(vKtr)))
    for hh in range(2): p('ds_read_b64_tr_b16 %s, %s offset:%d' % (v(PUB + 2 * hh, 2), t2, hh * 512))
    p('v_permlane16_swap_b32 %s, %s' % (v(X + 1), v(X)))
    p('v_add_f32 %s, %s, %s' % (v(X), v(X), v(X + 1)))
    p('v_mov_b32 %s, %s' % (v(X + 1), v(X)))
    p('s_cmp_eq_u32 %s, %d' % (s(sStep), nsteps - 1))
    p('s_cbranch_scc1 L_DONE')
    p('v_permlane32_swap_b32 %s, %s' % (v(X + 1), v(X)))
    p('v_add_f32 %s, %s, %s' % (v(X), v(X), v(X + 1)))
    p('v_rcp_f32 %s, %s' % (v(vT0), v(X)))
    WA = AQK
    for r in range(0, 16, 2): p('v_mov_b64 %s, 0' % v(WA + r, 2))
    OF = LAND + 32
    for t in range(2):
        for hh in range(2):
            p('v_pk_mul_f32 %s, %s, %s op_sel_hi:[1,0]' % (v(OA + 4 * t + 2 * hh, 2), v(OA + 4 * t + 2 * hh, 2), v(vT0, 2)))
    for t in range(2):
        for hh in range(2):
            p('v_cvt_pk_bf16_f32 %s, %s, %s' % (v(OF + 2 * t + hh), v(OA + 4 * t + 2 * hh), v(OA + 4 * t + 2 * hh + 1)))
    p('ds_write_b128 %s, %s' % (v(vVX), v(OF, 4)))
    lstamp(p, 8, stamps)
    smf(p, WA + 0, OF, a(128 + 0 * 32, 8), vIdxO)
    p('v_xor_b32 %s, 0x800, %s' % (v(VXF), v(vVX)))
    smf(p, WA + 4, OF, a(128 + 1 * 32, 8), vIdxO)
    p('v_xor_b32 %s, 0x1000, %s' % (v(VXF + 1), v(vVX)))
    smf(p, WA + 8, OF, a(128 + 2 * 32, 8), vIdxO)
    p('v_xor_b32 %s, 0x1800, %s' % (v(VXF + 2), v(vVX)))
    p.wait(lgkm=0)
    stamp(p, 2, stamps)
    p('s_barrier')
    lstamp(p, 9, stamps)
    for j in range(1, 4): p('ds_read_b128 %s, %s' % (v(OF + 4 * j, 4), v(VXF + j - 1)))
    smf(p, WA + 12, OF, a(128 + 3 * 32, 8), vIdxO)
    if 'samekv' not in opt: p('s_add_u32 %s, %s, %d' % (s(sKX), s(sKX), 32 * 8192))
    p('s_mov_b32 m0, %s' % s(sM0kx))
    if 'samekv' not in opt: p('s_add_u32 %s, %s, %d' % (s(sVX), s(sVX), 32 * 8192))
    if 'nokxdma' not in opt:
        p('buffer_load_dwordx4 %s, s[4:7], %s offen lds' % (v(vL16), s(sKX)))
        p('buffer_load_dwordx4 %s, s[4:7], %s offen offset:1024 lds' % (v(vL16), s(sKX)))
    E = LAND + 16
    def pack(P, k):
        q = 2 * P + (k >> 1); hh = k & 1
        p('v_cvt_pk_bf16_f32 %s, %s, %s' % (v(E + 4 * P + k), v(WA + 4 * q + 2 * hh), v(WA + 4 * q + 2 * hh + 1)))
    for j in range(1, 4):
        for q in (0, 1): smf(p, WA + 4 * q, OF + 4 * j, a(128 + (q * 4 + j) * 8, 8), vIdxO)
    pend = [lambda k=k: pack(0, k) for k in range(4)]
    pend += [lambda: p('v_bfi_b32 %s, 1, %s, %s' % (v(E), s(sTag), v(E))),
             lambda: p('buffer_store_dwordx4 %s, %s, s[4:7], %s offen' % (v(E, 4), v(vPst), s(sPst)))]
    seq = [(q, j) for j in range(1, 4) for q in (2, 3)]
    for n, (q, j) in enumerate(seq):
        smf(p, WA + 4 * q, OF + 4 * j, a(128 + (q * 4 + j) * 8, 8), vIdxO)
        if n >= 3: pend.pop(0)()
    while pend: pend.pop(0)()
    for k in range(4): pack(1, k)
    p('v_bfi_b32 %s, 1, %s, %s' % (v(E + 4), s(sTag), v(E + 4)))
    p('buffer_store_dwordx4 %s, %s, s[4:7], %s offen' % (v(E + 4, 4), v(vPst), s(sPst + 1)))
    stamp(p, 3, stamps)
    lstamp(p, 10, stamps)
    PR = MF
    SEL = MF + 8
    RA = MF + 12
    def gen_sel():
        p('v_bfe_u32 %s, %s, 4, 4' % (t0, v(vL16)))
        p('v_and_b32 %s, 16, %s' % (t1, v(vL16)))
        p('v_mov_b32 %s, 0x3f80' % t2)
        p('v_lshlrev_b32 %s, %s, %s' % (t2, t1, t2))
        p('v_lshrrev_b32 %s, 1, %s' % (t0, t0))
        for q in range(4):
            p('v_cmp_eq_u32 %s, %d, %s' % (s(sMaskA + 2 * (q & 1), 2), q, t0))
            p('v_mov_b32 %s, 0' % v(SEL + q))
            if q & 1:
                p('v_cndmask_b32 %s, %s, %s, %s' % (v(SEL + q - 1), v(SEL + q - 1), t2, s(sMaskA, 2)))
                p('v_cndmask_b32 %s, %s, %s, %s' % (v(SEL + q), v(SEL + q), t2, s(sMaskA + 2, 2)))
    gen_sel()
    delay(p, optint(opt, 'd1', 0))
    lstamp(p, 11, stamps)
    for k in range(2):
        p('buffer_load_dwordx4 %s, %s, s[4:7], %s offen offset:%d sc1' % (v(PR + 4 * k, 4), v(vPld), s(sPld), k * 2048))
    for u in range(6):
        rd_w(PRE[u], u, 0); rd_w(PRE[u], u, 1)
    if 'kvflags' in opt:
        p('v_readfirstlane_b32 %s, %s' % (s(sTmp), v(vKVf)))
        p('s_cmp_ge_u32 %s, %s' % (s(sTmp), s(sKVneed)))
        p('s_cbranch_scc0 L_KVWAIT')
        p.label('L_KVOK')
        p('s_add_u32 %s, %s, 3' % (s(sTmp), s(sStep)))
        p('s_and_b32 %s, %s, 15' % (s(sKVneed), s(sTmp)))
        p('s_add_u32 %s, %s, 1' % (s(sKVneed), s(sKVneed)))
        p('s_cmp_lt_u32 %s, 64' % s(sTmp))
        p('s_cselect_b32 %s, %s, 0' % (s(sKVneed), s(sKVneed)))
        p('s_lshr_b32 %s, %s, 4' % (s(sTmp), s(sTmp)))
        p('s_lshl_b32 %s, %s, 7' % (s(sTmp), s(sTmp)))
        p('s_add_u32 %s, %s, %s' % (s(sKVoff), s(sKVbase), s(sTmp)))
    p('s_mov_b32 %s, %s' % (s(sFlagVal), s(sStep)))
    p('s_add_u32 %s, %s, 1' % (s(sStep), s(sStep)))
    p('s_lshr_b32 %s, %s, 1' % (s(sTmp), s(sStep)))
    p('s_and_b32 %s, %s, 1' % (s(sTmp), s(sTmp)))
    p('s_xor_b32 %s, %s, 1' % (s(sTagN), s(sTmp)))
    for P in range(2): p('s_xor_b32 %s, %s, 0x40000' % (s(sPst + P), s(sPst + P)))
    p('s_mov_b32 %s, %s' % (s(sTmp), s(sMrd)))
    p('s_mov_b32 %s, %s' % (s(sMrd), s(sMwr)))
    p('s_mov_b32 %s, %s' % (s(sMwrOld), s(sMwr)))
    p('s_mov_b32 %s, %s' % (s(sMwr), s(sMpo)))
    p('s_mov_b32 %s, %s' % (s(sMpo), s(sTmp)))
    p('s_add_u32 %s, %s, %d' % (s(sKXn), s(sKXn), 32 * 8192))
    p('s_add_u32 %s, %s, %d' % (s(sKM), s(sKM), 32 * 4096))
    p('s_add_u32 %s, %s, %d' % (s(sVM), s(sVM), 32 * 4096))
    p('s_mov_b32 %s, 0' % s(sCnt))
    for r in range(0, 24, 2): p('v_mov_b64 %s, 0' % v(AQK + r, 2))
    p.label('L_PCHECK')
    p.wait(vm=0)
    stamp(p, 9, stamps)
    p('v_mfma_f32_16x16x32_bf16 %s, %s, %s, 0' % (v(RA, 4), v(PR, 4), v(SEL, 4)))
    p('v_bitop3_b32 %s, -1, %s, %s bitop3:0x90' % (t0, v(PR), s(sTag)))
    p('v_bitop3_b32 %s, %s, %s, %s bitop3:0x90' % (t0, t0, v(PR + 4), s(sTag)))
    p('v_mfma_f32_16x16x32_bf16 %s, %s, %s, %s' % (v(RA, 4), v(PR + 4, 4), v(SEL, 4), v(RA, 4)))
    p('v_and_b32 %s, 1, %s' % (t0, t0))
    p('v_cmp_eq_u32 vcc, 0, %s' % t0)
    p('s_cbranch_vccnz L_PFAIL')
    stamp(p, 11, stamps)
    lstamp(p, 12, stamps)
    p('v_permlane32_swap_b32 %s, %s' % (v(RA), v(RA + 1)))
    p('v_permlane32_swap_b32 %s, %s' % (v(RA + 2), v(RA + 3)))
    p('v_add_f32 %s, %s, %s' % (v(RA), v(RA), v(RA + 1)))
    p('v_add_f32 %s, %s, %s' % (v(RA + 2), v(RA + 2), v(RA + 3)))
    p('v_permlane16_swap_b32 %s, %s' % (v(RA), v(RA + 2)))
    p('v_add_f32 %s, %s, %s' % (v(RA), v(RA), v(RA + 2)))
    p('v_mov_b32 %s, %s' % (v(RA + 1), v(RA)))
    p('v_permlane32_swap_b32 %s, %s' % (v(RA), v(RA + 1)))
    p('v_cvt_pk_bf16_f32 %s, %s, %s' % (v(RA), v(RA), v(RA + 1)))
    p('v_min_u32 %s, 0xfffffffe, %s' % (v(RA), v(RA)))
    p('buffer_store_dword %s, %s, s[4:7], %s offen' % (v(RA), v(vMst), s(sMwrOld)))
    stamp(p, 4, stamps)
    lstamp(p, 13, stamps)
    p('s_mov_b32 %s, %s' % (s(sTag), s(sTagN)))
    p('s_xor_b32 %s, %s, 0x40000' % (s(sPld), s(sPld)))
    delay(p, optint(opt, 'd2', 0))
    p('s_branch L_STEP')
    if 'kvflags' in opt:
        p.label('L_KVWAIT')
        p('s_add_u32 %s, %s, 1' % (s(sCnt), s(sCnt)))
        p('s_cmp_gt_u32 %s, %d' % (s(sCnt), SPIN_MAX * 4))
        p('s_cbranch_scc1 L_BAIL')
        p.raw('    buffer_load_dword %s, off, s[4:7], %s sc1' % (v(vKVf), s(sKVoff)))
        p.raw('    s_waitcnt vmcnt(0)')
        p.raw('    s_nop 0')
        p.raw('    v_readfirstlane_b32 %s, %s' % (s(sTmp), v(vKVf)))
        p.raw('    s_nop 1')
        p('s_cmp_ge_u32 %s, %s' % (s(sTmp), s(sKVneed)))
        p('s_cbranch_scc0 L_KVWAIT')
        p('s_mov_b32 %s, 0' % s(sCnt))
        p('s_branch L_KVOK')
    p.label('L_GFAIL')
    p('s_add_u32 %s, %s, 1' % (s(sCnt), s(sCnt)))
    p('s_add_u32 %s, %s, 1' % (s(sNfail), s(sNfail)))
    p('s_cmp_lt_u32 %s, %d' % (s(sCnt), SPIN_MAX))
    p('s_cbranch_scc0 L_BAIL')
    p('s_mov_b64 exec, vcc')
    p('buffer_load_dwordx4 %s, %s, s[4:7], %s offen sc1' % (v(G, 4), v(vMld), s(sMrd)))
    p('buffer_load_dwordx4 %s, %s, s[4:7], %s offen offset:1024 sc1' % (v(G + 4, 4), v(vMld), s(sMrd)))
    p('s_mov_b64 exec, -1')
    p('s_branch L_GCHECK')
    p.label('L_PFAIL')
    p('s_add_u32 %s, %s, 1' % (s(sCnt), s(sCnt)))
    p('s_add_u32 %s, %s, 0x10000' % (s(sNfail), s(sNfail)))
    p('s_cmp_lt_u32 %s, %d' % (s(sCnt), SPIN_MAX))
    p('s_cbranch_scc0 L_BAIL')
    p('s_mov_b64 exec, vcc')
    for k in range(2):
        p('buffer_load_dwordx4 %s, %s, s[4:7], %s offen offset:%d sc1' % (v(PR + 4 * k, 4), v(vPld), s(sPld), k * 2048))
    p('s_mov_b64 exec, -1')
    p('s_branch L_PCHECK')
```

```python
from asmlib import *
from layout import *
sW = 3
def delay(p, cycles):
    n = cycles // 4
    while n > 0:
        k = min(n, 16); p('s_nop %d' % (k - 1)); n -= k
def ws_srd(p):
    p('s_load_dwordx2 s[4:5], s[0:1], %d' % KA_WS)
    p('v_lshrrev_b32 v1, 6, v0')
    p('v_readfirstlane_b32 s3, v1')
    p('v_and_b32 v0, 63, v0')
    p('s_waitcnt lgkmcnt(0)')
    p('s_mov_b32 s6, 0x%x' % WS_SIZE)
    p('s_mov_b32 s7, 0x20000')
def make_srd(p, base, ka, size):
    p('s_load_dwordx2 s[%d:%d], s[0:1], %d' % (base, base + 1, ka))
    p('s_mov_b32 s%d, 0x%x' % (base + 2, size))
    p('s_mov_b32 s%d, 0x20000' % (base + 3))
    p('s_waitcnt lgkmcnt(0)')
```

```python
MB = 1 << 20
WS_KX   = 0
WS_VX   = 16 * MB
WS_QX   = 32 * MB
WS_XN   = 48 * MB
WS_KM   = 50 * MB + 131072
WS_VM   = 58 * MB + 262144 + 131072
WS_PART = 67 * MB
WS_M    = 68 * MB
WS_FLAG = 68 * MB + 65536
WS_QFLAG = WS_FLAG + 65536
WS_M2 = 70 * MB
WS_P2 = 72 * MB
P2_IN1, P2_IN2, P2_HN, P2_FL = 0, MB, 2 * MB, 2 * MB + 65536
WS_SIZE = 268435456
KA_X, KA_MEM0, KA_WQ, KA_WK, KA_WV, KA_WO, KA_SEG, KA_BX, KA_WG, KA_WU, KA_WD, KA_OUT, KA_DBG, KA_WS = [8 * i for i in range(14)]
OOB = 0x40000000
```

```python
from common import *
RS = 1088
def ln1_segment(p, sSeg, tag, SRDX=8, sc=' sc1'):
    L = 'v0'
    sT, sM = 20, 21
    p('v_lshlrev_b32 v1, 4, v0')
    p('s_lshl_b32 s%d, %s, 5' % (sT, s(sSeg)))
    p('s_lshl_b32 s%d, s3, 3' % sM)
    p('s_add_u32 s%d, s%d, s%d' % (sT, sT, sM))
    p('s_lshl_b32 s%d, s%d, 10' % (sT, sT))
    p('s_mul_i32 s%d, s%d, %d' % (sM, sM, RS))
    for r in range(8):
        p('s_mov_b32 m0, s%d' % sM)
        p('s_add_u32 s%d, s%d, %d' % (sM, sM, RS))
        p('buffer_load_dwordx4 v1, s[%d:%d], s%d offen lds' % (SRDX, SRDX + 3, sT))
        p('s_add_u32 s%d, s%d, 1024' % (sT, sT))
    p('v_and_b32 v2, 7, v0')
    p('s_lshl_b32 s%d, s3, 3' % sM)
    p('v_add_u32 v2, s%d, v2' % sM)
    p('v_mul_u32_u24 v3, %d, v2' % RS)
    p('v_lshrrev_b32 v4, 3, v0')
    p('v_lshl_add_u32 v3, v4, 4, v3')
    p.wait(vm=0)
    X = 8
    for j in range(8): p('ds_read_b128 %s, v3 offset:%d' % (v(X + 4 * j, 4), 128 * j))
    F = 48
    for j in range(32):
        p('v_lshlrev_b32 %s, 16, %s' % (v(F + 2 * j), v(X + j)))
        p('v_and_b32 %s, 0xffff0000, %s' % (v(F + 2 * j + 1), v(X + j)))
    p('v_pk_add_f32 v[6:7], %s, %s' % (v(F, 2), v(F + 2, 2)))
    for j in range(2, 32): p('v_pk_add_f32 v[6:7], v[6:7], %s' % v(F + 2 * j, 2))
    p('v_add_f32 v6, v6, v7')
    def red8(r):
        p('v_add_f32_dpp %s, %s, %s row_ror:8 row_mask:0xf bank_mask:0xf' % (v(r), v(r), v(r)))
        p('v_mov_b32 v5, %s' % v(r))
        p('v_permlane16_swap_b32 v5, %s' % v(r))
        p('v_add_f32 %s, %s, v5' % (v(r), v(r)))
        p('v_mov_b32 v5, %s' % v(r))
        p('v_permlane32_swap_b32 v5, %s' % v(r))
        p('v_add_f32 %s, %s, v5' % (v(r), v(r)))
    red8(6)
    p('v_mul_f32 v6, 0x3b000000, v6')
    for j in range(32): p('v_pk_add_f32 %s, %s, v[6:7] op_sel_hi:[1,0] neg_lo:[0,1] neg_hi:[0,1]' % (v(F + 2 * j, 2), v(F + 2 * j, 2)))
    p('v_pk_mul_f32 v[6:7], %s, %s' % (v(F, 2), v(F, 2)))
    for j in range(1, 32): p('v_pk_fma_f32 v[6:7], %s, %s, v[6:7]' % (v(F + 2 * j, 2), v(F + 2 * j, 2)))
    p('v_add_f32 v6, v6, v7')
    red8(6)
    p('v_mov_b32 v7, 0x3727c5ac')
    p('v_fmac_f32 v7, 0x3b000000, v6')
    p('v_rsq_f32 v6, v7')
    for j in range(32): p('v_pk_mul_f32 %s, %s, v[6:7] op_sel_hi:[1,0]' % (v(F + 2 * j, 2), v(F + 2 * j, 2)))
    for j in range(32): p('v_cvt_pk_bf16_f32 %s, %s, %s' % (v(X + j), v(F + 2 * j), v(F + 2 * j + 1)))
    p('v_lshrrev_b32 v5, 1, v4')
    p('v_lshlrev_b32 v5, 10, v5')
    p('v_and_b32 v4, 1, v4')
    p('v_lshl_add_u32 v5, v4, 9, v5')
    p('v_lshl_add_u32 v5, v2, 4, v5')
    p('s_lshl_b32 s%d, %s, 15' % (sT, s(sSeg)))
    p('s_add_u32 s%d, s%d, 0x%x' % (sT, sT, WS_XN))
    for j in range(8):
        p('buffer_store_dwordx4 %s, v5, s[4:7], s%d offen%s' % (v(X + 4 * j, 4), sT, sc))
        if j < 7: p('s_add_u32 s%d, s%d, 4096' % (sT, sT))
```

```python
from common import *
sX, sC, sSeg, sN = 12, 13, 14, 15
sT, sT2, sT3, sM = 20, 21, 22, 23
sBase = 16
sScale2 = 18
sCnt = 24
sMask = 64
SPIN = 400000
OX_L = 0
HM_L = 8192
ST_L = 12288
ROW_L = 12800
TR_L = 16384
TR_RS = 272
HN_L = 65536
vL16, vSelA, vTRw, vTRr, vIn, vOut, vRow, vFlagLd, vFlagSt, vHNst, vOXw, vHMw, vOrow = 1, 2, 3, 4, 5, 6, 7, 8, 9, 10, 11, 12, 13
vIn2 = 14
t0r, t1r, t2r, t3r = 16, 17, 18, 19
SEL = 20
H = 24
W0 = 32
WD = 192

def p2_load_weights(p):
    L = 'v0'
    p('s_load_dwordx2 s[48:49], s[0:1], %d' % KA_WO)
    p('s_load_dwordx4 s[52:55], s[0:1], %d' % KA_WG)
    p('s_load_dwordx2 s[56:57], s[0:1], %d' % KA_WD)
    p('v_lshlrev_b32 v%d, 4, v0' % vL16)
    vE = [32, 33, 34, 35]
    vG = 36
    vA = [40, 41, 42, 43]
    vB = 44
    for q in range(4):
        p('v_xor_b32 v%d, %d, v0' % (t0r, 4 * q))
        p('v_lshlrev_b32 v%d, 4, v%d' % (vE[q], t0r))
    p('v_lshrrev_b32 v%d, 3, v0' % t0r)
    p('v_mul_u32_u24 v%d, 2752, v%d' % (t0r, t0r))
    p('v_and_b32 v%d, 7, v0' % t1r)
    p('v_lshl_add_u32 v%d, v%d, 4, v%d' % (vG, t1r, t0r))
    for G in range(4):
        p('v_lshrrev_b32 v%d, 2, v0' % t0r)
        p('v_lshlrev_b32 v%d, 10, v%d' % (vA[G], t0r))
        p('v_bfe_u32 v%d, v0, 2, 2' % t0r)
        p('v_xor_b32 v%d, %d, v%d' % (t0r, G, t0r))
        p('v_lshlrev_b32 v%d, 2, v%d' % (t0r, t0r))
        p('v_and_b32 v%d, 3, v0' % t1r)
        p('v_add_u32 v%d, v%d, v%d' % (t0r, t0r, t1r))
        p('s_lshl_b32 s%d, s3, 4' % sT)
        p('v_add_u32 v%d, s%d, v%d' % (t0r, sT, t0r))
        p('v_lshl_add_u32 v%d, v%d, 4, v%d' % (vA[G], t0r, vA[G]))
    p('v_lshrrev_b32 v%d, 4, v0' % t0r)
    p('v_lshlrev_b32 v%d, 3, v%d' % (t0r, t0r))
    p('v_bfe_u32 v%d, v0, 2, 2' % t1r)
    p('v_add_u32 v%d, v%d, v%d' % (t0r, t0r, t1r))
    p('v_lshlrev_b32 v%d, 7, v%d' % (t0r, t0r))
    p('v_and_b32 v%d, 3, v0' % t1r)
    p('v_lshl_add_u32 v%d, v%d, 3, v%d' % (t0r, t1r, t0r))
    p('s_lshl_b32 s%d, s3, 5' % sT)
    p('v_add_u32 v%d, s%d, v%d' % (vB, sT, t0r))
    p('s_waitcnt lgkmcnt(0)')
    p('s_mov_b32 s50, 0x400000'); p('s_mov_b32 s51, 0x20000')
    p('s_mov_b32 s60, s52'); p('s_mov_b32 s61, s53'); p('s_mov_b32 s62, %d' % (512 * 1376 * 2)); p('s_mov_b32 s63, 0x20000')
    p('s_mov_b32 s52, s54'); p('s_mov_b32 s53, s55'); p('s_mov_b32 s54, %d' % (512 * 1376 * 2)); p('s_mov_b32 s55, 0x20000')
    p('s_mov_b32 s58, %d' % (1376 * 512 * 2)); p('s_mov_b32 s59, 0x20000')
    p('s_cmp_lt_u32 s3, 2')
    p('s_cselect_b32 s44, s60, s52'); p('s_cselect_b32 s45, s61, s53')
    p('s_mov_b32 s46, %d' % (512 * 1376 * 2)); p('s_mov_b32 s47, 0x20000')
    NP, RING = 10, 5
    def issue(n):
        base = (n % RING) * 32768
        p('s_lshl_b32 s%d, s3, 13' % sM)
        p('s_add_u32 s%d, s%d, %d' % (sM, sM, base))
        if n < 6:
            if n < 4:
                p('s_lshl_b32 s%d, s%d, 7' % (sT, sC)); off = 32 * n; srd = 48
            else:
                p('s_lshl_b32 s%d, s%d, 6' % (sT, sC)); off = 32 * (n - 4); srd = 56
            p('s_lshl_b32 s%d, s3, 3' % sT2)
            p('s_add_u32 s%d, s%d, s%d' % (sT, sT, sT2))
            p('s_add_u32 s%d, s%d, %d' % (sT, sT, off))
            p('s_lshl_b32 s%d, s%d, 10' % (sT, sT))
            for k in range(8):
                p('s_mov_b32 m0, s%d' % sM)
                p('s_add_u32 s%d, s%d, 1024' % (sM, sM))
                p('buffer_load_dwordx4 v%d, s[%d:%d], s%d offen lds' % (vE[k & 3], srd, srd + 3, sT))
                p('s_add_u32 s%d, s%d, 1024' % (sT, sT))
        else:
            j = n - 6
            p('s_and_b32 s%d, s3, 1' % sT)
            p('s_lshl_b32 s%d, s%d, 6' % (sT, sT))
            p('s_add_u32 s%d, s%d, %d' % (sT, sT, 128 * j))
            p('s_mul_i32 s%d, s%d, 2752' % (sT, sT))
            p('s_lshl_b32 s%d, s%d, 7' % (sT2, sC))
            p('s_add_u32 s%d, s%d, s%d' % (sT, sT, sT2))
            for k in range(8):
                p('s_mov_b32 m0, s%d' % sM)
                p('s_add_u32 s%d, s%d, 1024' % (sM, sM))
                p('buffer_load_dwordx4 v%d, s[44:47], s%d offen lds' % (vG, sT))
                p('s_add_u32 s%d, s%d, %d' % (sT, sT, 8 * 2752))
    def consume(n):
        base = (n % RING) * 32768
        if n < 6:
            for G in range(4): p('v_add_u32 v%d, %d, v%d' % (48 + G, base, vA[G]))
            for G in range(4):
                for T in range(2):
                    for hh in range(2):
                        off = 8 * T + hh * 16384
                        if n < 4: dst = a(((G * 2 + T) * 4 + n) * 4 + 2 * hh, 2)
                        else: dst = v(WD + ((G * 2 + T) * 2 + (n - 4)) * 4 + 2 * hh, 2)
                        p('ds_read_b64_tr_b16 %s, v%d offset:%d' % (dst, 48 + G, off))
        else:
            j = n - 6
            p('v_add_u32 v48, %d, v%d' % (base, vB))
            for kk in range(4):
                ks = 4 * j + kk
                for mat in range(2):
                    for hh in range(2):
                        off = mat * 16384 + (32 * kk + 4 * hh) * 128
                        p('ds_read_b64_tr_b16 %s, v48 offset:%d' % (a(128 + (ks * 2 + mat) * 4 + 2 * hh, 2), off))
    for n in range(RING): issue(n)
    for n in range(NP):
        inflight = min(NP, n + RING) - n - 1
        p.wait(vm=8 * inflight)
        p('s_barrier')
        consume(n)
        p.wait(lgkm=0)
        p('s_barrier')
        if n + RING < NP: issue(n + RING)

def p2_setup(p):
    L = 'v0'; t0, t1, t2 = v(t0r), v(t1r), v(t2r)
    p('s_lshl_b32 s%d, s%d, 22' % (sBase, sX))
    p('s_add_u32 s%d, s%d, 0x%x' % (sBase, sBase, WS_P2))
    p('s_mov_b32 s%d, 0x3e0293ee' % sScale2); p('s_mov_b32 s%d, 0x3e0293ee' % (sScale2 + 1))
    p('v_lshlrev_b32 v%d, 4, v0' % vL16)
    p('v_and_b32 %s, 15, v0' % t0)
    p('v_and_b32 %s, 1, v0' % t1)
    p('v_lshlrev_b32 %s, 4, %s' % (t1, t1))
    p('v_mov_b32 %s, 0x3f80' % t2)
    p('v_lshlrev_b32 %s, %s, %s' % (t2, t1, t2))
    p('v_lshrrev_b32 %s, 1, %s' % (t0, t0))
    for q in range(4):
        p('v_cmp_eq_u32 vcc, %d, %s' % (q, t0))
        p('v_mov_b32 %s, 0' % v(SEL + q))
        p('v_cndmask_b32 %s, %s, %s, vcc' % (v(SEL + q), v(SEL + q), t2))
    p('s_mul_i32 s%d, s3, 8704' % sT)
    p('s_add_u32 s%d, s%d, %d' % (sT, sT, TR_L))
    p('v_and_b32 %s, 15, v0' % t0)
    p('v_mul_u32_u24 %s, %d, %s' % (t0, TR_RS, t0))
    p('v_lshrrev_b32 %s, 4, v0' % t1)
    p('v_lshl_add_u32 %s, %s, 4, %s' % (t0, t1, t0))
    p('v_add_u32 v%d, s%d, %s' % (vTRw, sT, t0))
    p('v_mul_u32_u24 %s, %d, %s' % (t0, TR_RS, t1))
    p('v_and_b32 %s, 15, v0' % t2)
    p('v_lshl_add_u32 %s, %s, 4, %s' % (t0, t2, t0))
    p('v_add_u32 v%d, s%d, %s' % (vTRr, sT, t0))
    p('v_lshlrev_b32 %s, 15, %s' % (t0, t1))
    p('v_lshl_add_u32 %s, %s, 4, %s' % (t0, t2, t0))
    p('s_lshl_b32 s%d, s%d, 10' % (sT, sC))
    p('s_lshl_b32 s%d, s3, 8' % sT2)
    p('s_add_u32 s%d, s%d, s%d' % (sT, sT, sT2))
    p('v_add_u32 v%d, s%d, %s' % (vOut, sT, t0))
    p('v_lshlrev_b32 %s, 10, %s' % (t0, t1))
    p('v_lshl_add_u32 %s, %s, 4, %s' % (t0, t2, t0))
    p('s_lshl_b32 s%d, s%d, 15' % (sT, sC))
    p('s_add_u32 s%d, s%d, s%d' % (sT, sT, sT2))
    p('v_add_u32 v%d, s%d, %s' % (vIn, sT, t0))
    p('v_mov_b32 %s, 0x%x' % (t0, OOB))
    p('v_cmp_gt_u32 vcc, 32, v0')
    p('v_cndmask_b32 v%d, %s, v%d, vcc' % (vIn2, t0, vIn))
    p('v_lshlrev_b32 %s, 4, v0' % t0)
    p('v_add_u32 %s, s%d, %s' % (t0, sT2, t0))
    p('v_mov_b32 %s, 0x%x' % (t1, OOB))
    p('v_cmp_gt_u32 vcc, 16, v0')
    p('v_cndmask_b32 v%d, %s, %s, vcc' % (vOrow, t1, t0))
    p('v_lshrrev_b32 %s, 4, v0' % t0)
    p('v_lshlrev_b32 %s, 6, %s' % (t0, t0))
    p('v_and_b32 %s, 7, v0' % t1)
    p('v_lshl_add_u32 %s, %s, 1, %s' % (t0, t1, t0))
    p('s_add_u32 s%d, s%d, %d' % (sT, sT2, ROW_L))
    p('v_add_u32 %s, s%d, %s' % (t0, sT, t0))
    p('v_mov_b32 %s, %d' % (t1, ST_L + 128))
    p('v_bfe_u32 %s, v0, 3, 1' % t2)
    p('v_cmp_eq_u32 vcc, 0, %s' % t2)
    p('v_cndmask_b32 v%d, %s, %s, vcc' % (vRow, t1, t0))
    p('v_bfe_u32 %s, v0, 2, 2' % t0)
    p('v_lshlrev_b32 %s, 10, %s' % (t0, t0))
    p('v_and_b32 %s, 3, v0' % t1)
    p('v_lshl_add_u32 %s, %s, 8, %s' % (t0, t1, t0))
    p('s_lshl_b32 s%d, s3, 12' % sT)
    p('s_lshr_b32 s%d, s%d, 4' % (sT3, sC))
    p('s_lshl_b32 s%d, s%d, 14' % (sT3, sT3))
    p('s_add_u32 s%d, s%d, s%d' % (sT, sT, sT3))
    p('s_and_b32 s%d, s%d, 15' % (sT3, sC))
    p('s_lshl_b32 s%d, s%d, 4' % (sT3, sT3))
    p('s_add_u32 s%d, s%d, s%d' % (sT, sT, sT3))
    p('v_add_u32 %s, s%d, %s' % (t0, sT, t0))
    p('v_mov_b32 %s, 0x%x' % (t1, OOB))
    p('v_cmp_gt_u32 vcc, 16, v0')
    p('v_cndmask_b32 v%d, %s, %s, vcc' % (vHNst, t1, t0))
    p('s_and_b32 s%d, s3, 1' % sT)
    p('s_lshl_b32 s%d, s%d, 12' % (sT, sT))
    p('s_lshr_b32 s%d, s3, 1' % sT3)
    p('s_lshl_b32 s%d, s%d, 11' % (sT3, sT3))
    p('s_add_u32 s%d, s%d, s%d' % (sT, sT, sT3))
    p('s_add_u32 s%d, s%d, %d' % (sT, sT, OX_L))
    p('v_add_u32 v%d, s%d, v%d' % (vOXw, sT, vL16))
    p('v_lshlrev_b32 %s, 3, v0' % t0)
    p('s_lshl_b32 s%d, s3, 9' % sT)
    p('s_add_u32 s%d, s%d, %d' % (sT, sT, HM_L))
    p('v_add_u32 v%d, s%d, %s' % (vHMw, sT, t0))
    p('v_lshlrev_b32 %s, 2, v0' % t0)
    p('v_mov_b32 %s, 0x%x' % (t1, OOB))
    p('v_cmp_gt_u32 vcc, 32, v0')
    p('v_cndmask_b32 v%d, %s, %s, vcc' % (vFlagLd, t1, t0))
    p('v_or_b32 %s, s3, v0' % t0)
    p('s_lshl_b32 s%d, s%d, 2' % (sT, sC))
    p('v_mov_b32 %s, s%d' % (t2, sT))
    p('v_cmp_eq_u32 vcc, 0, %s' % t0)
    p('v_cndmask_b32 v%d, %s, %s, vcc' % (vFlagSt, t1, t2))
    p('v_and_b32 %s, 15, v0' % t0)
    p('s_and_b32 s%d, s3, 1' % sT)
    p('s_lshl_b32 s%d, s%d, 4' % (sT, sT))
    p('v_add_u32 %s, s%d, %s' % (t0, sT, t0))
    p('v_lshrrev_b32 %s, 4, v0' % t1)
    p('v_lshlrev_b32 %s, 2, %s' % (t1, t1))
    for jt in range(2):
        for r in range(4):
            p('v_add_u32 %s, %d, %s' % (t2, 16 * jt + r, t1))
            p('v_cmp_le_u32 %s, %s, %s' % (s(sMask + 2 * (4 * jt + r), 2), t2, t0))

def poll_flags(p, off_sreg, imm, seq_sreg, nlanes, tag):
    p('s_mov_b32 s%d, 0' % sCnt)
    p.label('L_P2POLL' + tag)
    p('buffer_load_dword v%d, v%d, s[4:7], s%d offen offset:%d sc1' % (t0r, vFlagLd, off_sreg, imm))
    p.wait(vm=0)
    p('v_cmp_gt_u32 vcc, s%d, v%d' % (seq_sreg, t0r))
    p('s_and_b32 vcc_hi, vcc_hi, 0')
    if nlanes < 32: p('s_and_b32 vcc_lo, vcc_lo, 0x%x' % ((1 << nlanes) - 1))
    p('s_cbranch_vccz L_P2OK' + tag)
    p('s_add_u32 s%d, s%d, 1' % (sCnt, sCnt))
    p('s_cmp_lt_u32 s%d, %d' % (sCnt, SPIN))
    p('s_cbranch_scc1 L_P2POLL' + tag)
    p('s_branch L_P2BAIL')
    p.label('L_P2OK' + tag)
    p.forget()

def poll_one(p, off_sreg, need_sreg, tag):
    p('s_mov_b32 s%d, 0' % sCnt)
    p('v_mov_b32 v%d, 0' % t1r)
    p.label('L_P2POLL' + tag)
    p('buffer_load_dword v%d, v%d, s[4:7], s%d offen sc1' % (t0r, t1r, off_sreg))
    p.wait(vm=0)
    p('v_readfirstlane_b32 s%d, v%d' % (sT3, t0r))
    p('s_cmp_ge_u32 s%d, s%d' % (sT3, need_sreg))
    p('s_cbranch_scc1 L_P2OK' + tag)
    p('s_add_u32 s%d, s%d, 1' % (sCnt, sCnt))
    p('s_cmp_lt_u32 s%d, %d' % (sCnt, SPIN))
    p('s_cbranch_scc1 L_P2POLL' + tag)
    p('s_branch L_P2BAIL')
    p.label('L_P2OK' + tag)
    p.forget()

def post_flag(p, imm):
    p.wait(vm=0)
    p('s_barrier')
    p('v_mov_b32 v%d, s%d' % (t0r, sN))
    p('s_add_u32 s%d, s%d, %d' % (sT, sBase, P2_FL))
    p('buffer_store_dword v%d, v%d, s[4:7], s%d offen offset:%d' % (t0r, vFlagSt, sT, imm))

def reduce_all(p, r, tmp):
    for k in (1, 2, 4, 8):
        p('v_add_f32_dpp %s, %s, %s row_ror:%d row_mask:0xf bank_mask:0xf' % (v(r), v(r), v(r), k))
    p('v_mov_b32 %s, %s' % (v(tmp), v(r)))
    p('v_permlane16_swap_b32 %s, %s' % (v(tmp), v(r)))
    p('v_add_f32 %s, %s, %s' % (v(r), v(r), v(tmp)))
    p('v_mov_b32 %s, %s' % (v(tmp), v(r)))
    p('v_permlane32_swap_b32 %s, %s' % (v(tmp), v(r)))
    p('v_add_f32 %s, %s, %s' % (v(r), v(r), v(tmp)))

def transposed_store(p, ACC, soff_reg):
    P = ACC
    PKR = W0
    for qt in range(2):
        for G in range(4):
            D = ACC + (qt * 4 + G) * 8
            R = PKR + (qt * 4 + G) * 4
            for T in range(2):
                for hh in range(2):
                    p('v_cvt_pk_bf16_f32 %s, %s, %s' % (v(R + 2 * T + hh), v(D + 4 * T + 2 * hh), v(D + 4 * T + 2 * hh + 1)))
            p('ds_write_b128 v%d, %s offset:%d' % (vTRw, v(R, 4), qt * 16 * TR_RS + G * 64))
    for k in range(8): p('ds_read_b128 %s, v%d offset:%d' % (v(PKR + 4 * k, 4), vTRr, k * 4 * TR_RS))
    for k in range(8):
        p('buffer_store_dwordx4 %s, v%d, s[4:7], s%d offen' % (v(PKR + 4 * k, 4), vOut, soff_reg))
        if k < 7: p('s_add_u32 s%d, s%d, %d' % (soff_reg, soff_reg, 4 * 32768))

def row_out(p, R4, RD):
    for r in range(4):
        p('v_cvt_pk_bf16_f32 %s, %s, %s' % (v(RD + r), v(R4 + r), v(R4 + r)))
        p('ds_write_b16 v%d, %s offset:%d' % (vRow, v(RD + r), 16 * r))
    p('s_lshl_b32 s%d, s3, 8' % sT)
    p('s_add_u32 s%d, s%d, %d' % (sT, sT, ROW_L))
    p('v_and_b32 v%d, 15, v0' % t0r)
    p('v_lshlrev_b32 v%d, 4, v%d' % (t0r, t0r))
    p('v_add_u32 v%d, s%d, v%d' % (t0r, sT, t0r))
    p.wait(lgkm=0)
    p('ds_read_b128 %s, v%d' % (v(RD, 4), t0r))

def p2_segment_loop(p, xflags=True, rt=False):
    t0, t1, t2 = v(t0r), v(t1r), v(t2r)
    p('s_mov_b32 s%d, s%d' % (sSeg, sX))
    p('s_mov_b32 s%d, 1' % sN)
    p.label('L_P2SEG')
    p.forget()
    sKV = 25
    if xflags:
        p('s_lshr_b32 s%d, s%d, 4' % (sT2, sSeg))
        p('s_and_b32 s26, s%d, 15' % sSeg)
        p('s_add_u32 s26, s26, 1')
        p('s_lshl_b32 s%d, s%d, 2' % (sT, sC))
        p('s_add_u32 s%d, s%d, s%d' % (sT, sT, sT2))
        p('s_lshl_b32 s%d, s%d, 7' % (sT, sT))
        p('s_add_u32 s27, s%d, 0x%x' % (sT, WS_QFLAG))
        poll_one(p, 27, 26, 'KV')
        p('s_lshr_b32 s%d, s%d, 1' % (sT, sC))
        p('s_add_u32 s%d, s%d, 32' % (sT, sT))
        p('s_lshl_b32 s%d, s%d, 2' % (sT, sT))
        p('s_add_u32 s%d, s%d, s%d' % (sT, sT, sT2))
        p('s_lshl_b32 s%d, s%d, 7' % (sT, sT))
        p('s_add_u32 s27, s%d, 0x%x' % (sT, WS_QFLAG))
        poll_one(p, 27, 26, 'Q')
    p('s_lshl_b32 s%d, s%d, 5' % (sKV, sSeg))
    p('s_add_u32 s%d, s%d, s%d' % (sKV, sKV, sC))
    QF, KF, KMF, VF, VMF = W0, W0 + 16, W0 + 48, W0 + 64, W0 + 80
    SA = W0 + 88
    p('s_lshl_b32 s%d, s%d, 13' % (sT, sKV))
    p('s_and_b32 s%d, s3, 1' % sT2)
    p('s_lshl_b32 s%d, s%d, 12' % (sT2, sT2))
    p('s_add_u32 s%d, s%d, s%d' % (sT2, sT2, sT))
    p('s_add_u32 s%d, s%d, 0x%x' % (sT2, sT2, WS_QX))
    for ks in range(4): p('buffer_load_dwordx4 %s, v%d, s[4:7], s%d offen offset:%d' % (v(QF + 4 * ks, 4), vL16, sT2, ks * 1024))
    p('s_add_u32 s%d, s%d, 0x%x' % (sT2, sT, WS_KX))
    for ks in range(4): p('buffer_load_dwordx4 %s, v%d, s[4:7], s%d offen offset:%d' % (v(KF + 4 * ks, 4), vL16, sT2, ks * 1024))
    p('s_add_u32 s%d, s%d, 4096' % (sT2, sT2))
    for ks in range(4): p('buffer_load_dwordx4 %s, v%d, s[4:7], s%d offen offset:%d' % (v(KF + 16 + 4 * ks, 4), vL16, sT2, ks * 1024))
    p('s_lshr_b32 s%d, s3, 1' % sT2)
    p('s_lshl_b32 s%d, s%d, 12' % (sT2, sT2))
    p('s_add_u32 s%d, s%d, s%d' % (sT2, sT2, sT))
    p('s_add_u32 s%d, s%d, 0x%x' % (sT2, sT2, WS_VX))
    for et in range(4): p('buffer_load_dwordx4 %s, v%d, s[4:7], s%d offen offset:%d' % (v(VF + 4 * et, 4), vL16, sT2, et * 1024))
    XR = W0 + 100
    p('s_lshl_b32 s%d, s%d, 5' % (sT2, sSeg))
    p('s_add_u32 s%d, s%d, s%d' % (sT2, sT2, sC))
    p('s_lshl_b32 s28, s%d, 10' % sT2)
    p('buffer_load_dwordx4 %s, v%d, s[8:11], s28 offen' % (v(XR, 4), vOrow))
    if xflags:
        p('s_lshl_b32 s%d, s%d, 7' % (sT2, sC))
        p('s_add_u32 s27, s%d, 0x%x' % (sT2, WS_FLAG))
        p('s_add_u32 s26, s%d, 1' % sSeg)
        poll_one(p, 27, 26, 'CH')
    p('s_lshl_b32 s%d, s%d, 12' % (sT, sKV))
    p('s_add_u32 s%d, s%d, 0x%x' % (sT2, sT, WS_KM))
    for ks in range(4): p('buffer_load_dwordx4 %s, v%d, s[4:7], s%d offen offset:%d' % (v(KMF + 4 * ks, 4), vL16, sT2, ks * 1024))
    p('s_lshr_b32 s%d, s3, 1' % sT2)
    p('s_lshl_b32 s%d, s%d, 11' % (sT2, sT2))
    p('s_add_u32 s%d, s%d, s%d' % (sT2, sT2, sT))
    p('s_add_u32 s%d, s%d, 0x%x' % (sT2, sT2, WS_VM))
    for j in range(2): p('buffer_load_dwordx4 %s, v%d, s[4:7], s%d offen offset:%d' % (v(VMF + 4 * j, 4), vL16, sT2, j * 1024))
    for ks in range(4):
        C = lambda r: '0' if ks == 0 else v(r, 4)
        for jt in range(2):
            p('v_mfma_f32_16x16x32_bf16 %s, %s, %s, %s' % (v(SA + 4 * jt, 4), v(KF + 16 * jt + 4 * ks, 4), v(QF + 4 * ks, 4), C(SA + 4 * jt)))
    for ks in range(4):
        p('v_mfma_f32_16x16x32_bf16 %s, %s, %s, %s' % (v(SA + 8, 4), v(KMF + 4 * ks, 4), v(QF + 4 * ks, 4), '0' if ks == 0 else v(SA + 8, 4)))
    X = SA
    p('v_mov_b32 %s, 0xf149f2ca' % t2)
    for r in range(8): p('v_cndmask_b32 %s, %s, %s, %s' % (v(X + r), t2, v(X + r), s(sMask + 2 * r, 2)))
    p('v_max3_f32 %s, %s, %s, %s' % (t0, v(X), v(X + 1), v(X + 2)))
    p('v_max3_f32 %s, %s, %s, %s' % (t1, v(X + 3), v(X + 4), v(X + 5)))
    p('v_max3_f32 %s, %s, %s, %s' % (t0, t0, v(X + 6), v(X + 7)))
    p('v_max3_f32 %s, %s, %s, %s' % (t1, t1, v(X + 8), v(X + 9)))
    p('v_max_f32 %s, %s, %s' % (t0, t0, t1))
    p('v_mov_b32 %s, %s' % (t1, t0))
    p('v_permlane16_swap_b32 %s, %s' % (t1, t0))
    p('v_max_f32 %s, %s, %s' % (t0, t0, t1))
    p('v_mov_b32 %s, %s' % (t1, t0))
    p('v_permlane32_swap_b32 %s, %s' % (t1, t0))
    p('v_max_f32 %s, %s, %s' % (t0, t0, t1))
    p('v_mul_f32 %s, s%d, %s' % (t0, sScale2, t0))
    for r in range(0, 10, 2):
        p('v_pk_fma_f32 %s, %s, %s, %s op_sel_hi:[1,0,0] neg_lo:[0,0,1] neg_hi:[0,0,1]' % (v(X + r, 2), v(X + r, 2), s(sScale2, 2), v(t0r, 2)))
    for r in range(10): p('v_exp_f32 %s, %s' % (v(X + r), v(X + r)))
    PX, PM = QF, QF + 4
    for r in range(4): p('v_cvt_pk_bf16_f32 %s, %s, %s' % (v(PX + r), v(X + 2 * r), v(X + 2 * r + 1)))
    p('v_cvt_pk_bf16_f32 %s, %s, %s' % (v(PM), v(X + 8), v(X + 9)))
    p('v_cvt_pk_bf16_f32 %s, %s, %s' % (v(PM + 1), v(X + 8), v(X + 9)))
    OA = KF
    for et in range(4): p('v_mfma_f32_16x16x32_bf16 %s, %s, %s, 0' % (v(OA + 4 * et, 4), v(VF + 4 * et, 4), v(PX, 4)))
    for et in range(4): p('v_mfma_f32_16x16x16_bf16 %s, %s, %s, %s' % (v(OA + 4 * et, 4), v(VMF + 2 * et, 2), v(PM, 2), v(OA + 4 * et, 4)))
    p('v_pk_add_f32 %s, %s, %s' % (v(X, 2), v(X, 2), v(X + 2, 2)))
    p('v_pk_add_f32 %s, %s, %s' % (v(X + 4, 2), v(X + 4, 2), v(X + 6, 2)))
    p('v_pk_add_f32 %s, %s, %s' % (v(X, 2), v(X, 2), v(X + 8, 2)))
    p('v_pk_add_f32 %s, %s, %s' % (v(X, 2), v(X, 2), v(X + 4, 2)))
    p('v_add_f32 %s, %s, %s' % (v(X), v(X), v(X + 1)))
    p('v_mov_b32 %s, %s' % (v(X + 1), v(X)))
    p('v_permlane16_swap_b32 %s, %s' % (v(X + 1), v(X)))
    p('v_add_f32 %s, %s, %s' % (v(X), v(X), v(X + 1)))
    p('v_mov_b32 %s, %s' % (v(X + 1), v(X)))
    p('v_permlane32_swap_b32 %s, %s' % (v(X + 1), v(X)))
    p('v_add_f32 %s, %s, %s' % (v(X), v(X), v(X + 1)))
    p('v_rcp_f32 %s, %s' % (t0, v(X)))
    for r in range(0, 16, 2): p('v_pk_mul_f32 %s, %s, %s op_sel_hi:[1,0]' % (v(OA + r, 2), v(OA + r, 2), v(t0r, 2)))
    OP = QF + 8
    for j in range(2):
        for T in range(2):
            for hh in range(2):
                p('v_cvt_pk_bf16_f32 %s, %s, %s' % (v(OP + 4 * j + 2 * T + hh), v(OA + 8 * j + 4 * T + 2 * hh), v(OA + 8 * j + 4 * T + 2 * hh + 1)))
        p('ds_write_b128 v%d, %s offset:%d' % (vOXw, v(OP + 4 * j, 4), j * 1024))
    XR2 = 28
    for r in range(4): p('v_mov_b32 %s, %s' % (v(XR2 + r), v(XR + r)))
    p.wait(lgkm=0)
    p('s_barrier')
    OF = W0
    ACC = W0 + 32
    for qt in range(2):
        for ec in range(4): p('ds_read_b128 %s, v%d offset:%d' % (v(OF + (qt * 4 + ec) * 4, 4), vL16, OX_L + qt * 4096 + ec * 1024))
    for qt in range(2):
        for ec in range(4):
            for G in range(4):
                for T in range(2):
                    D = v(ACC + ((qt * 4 + G) * 2 + T) * 4, 4)
                    p('v_mfma_f32_16x16x32_bf16 %s, %s, %s, %s' % (D, a(((G * 2 + T) * 4 + ec) * 4, 4), v(OF + (qt * 4 + ec) * 4, 4), '0' if ec == 0 else D))
    p('s_add_u32 s29, s%d, %d' % (sBase, P2_IN1))
    transposed_store(p, ACC, 29)
    post_flag(p, 0)
    p('s_add_u32 s29, s%d, %d' % (sBase, P2_FL))
    poll_flags(p, 29, 0, sN, 32, 'F1')
    LD = W0
    p('s_add_u32 s29, s%d, %d' % (sBase, P2_IN1))
    for k in range(8):
        p('buffer_load_dwordx4 %s, v%d, s[4:7], s29 offen sc1' % (v(LD + 4 * k, 4), vIn))
        if k < 7: p('s_add_u32 s29, s29, 4096')
    p('v_mfma_f32_16x16x32_bf16 %s, %s, %s, 0' % (v(H, 4), v(XR2, 4), v(SEL, 4)))
    for k in range(8): p('v_mfma_f32_16x16x32_bf16 %s, %s, %s, %s' % (v(H, 4), v(LD + 4 * k, 4), v(SEL, 4), v(H, 4)))
    S1, S2 = W0 + 40, W0 + 41
    p('v_add_f32 %s, %s, %s' % (v(S1), v(H), v(H + 1)))
    p('v_mul_f32 %s, %s, %s' % (v(S2), v(H), v(H)))
    p('v_add_f32 %s, %s, %s' % (v(S1), v(S1), v(H + 2)))
    p('v_fmac_f32 %s, %s, %s' % (v(S2), v(H + 1), v(H + 1)))
    p('v_add_f32 %s, %s, %s' % (v(S1), v(S1), v(H + 3)))
    p('v_fmac_f32 %s, %s, %s' % (v(S2), v(H + 2), v(H + 2)))
    p('v_fmac_f32 %s, %s, %s' % (v(S2), v(H + 3), v(H + 3)))
    reduce_all(p, S1, t0r)
    reduce_all(p, S2, t1r)
    p('s_lshl_b32 s%d, s3, 3' % sT)
    p('s_add_u32 s%d, s%d, %d' % (sT, sT, ST_L))
    p('v_mov_b32 %s, s%d' % (t2, sT))
    p('ds_write_b64 %s, %s' % (t2, v(S1, 2)))
    p.wait(lgkm=0)
    p('s_barrier')
    p('v_mov_b32 %s, %d' % (t2, ST_L))
    p('ds_read_b128 %s, %s' % (v(W0 + 44, 4), t2))
    p('ds_read_b128 %s, %s offset:16' % (v(W0 + 48, 4), t2))
    p('v_pk_add_f32 %s, %s, %s' % (v(W0 + 44, 2), v(W0 + 44, 2), v(W0 + 46, 2)))
    p('v_pk_add_f32 %s, %s, %s' % (v(W0 + 48, 2), v(W0 + 48, 2), v(W0 + 50, 2)))
    p('v_pk_add_f32 %s, %s, %s' % (v(W0 + 44, 2), v(W0 + 44, 2), v(W0 + 48, 2)))
    p('v_mul_f32 %s, 0x3b000000, %s' % (v(W0 + 44), v(W0 + 44)))
    p('v_mul_f32 %s, 0x3b000000, %s' % (v(W0 + 45), v(W0 + 45)))
    p('v_fma_f32 %s, -%s, %s, %s' % (v(W0 + 45), v(W0 + 44), v(W0 + 44), v(W0 + 45)))
    p('v_max_f32 %s, 0, %s' % (v(W0 + 45), v(W0 + 45)))
    p('v_add_f32 %s, 0x3727c5ac, %s' % (v(W0 + 45), v(W0 + 45)))
    p('v_rsq_f32 %s, %s' % (v(W0 + 45), v(W0 + 45)))
    HNV = W0 + 52
    for r in range(4): p('v_sub_f32 %s, %s, %s' % (v(HNV + r), v(H + r), v(W0 + 44)))
    for r in range(4): p('v_mul_f32 %s, %s, %s' % (v(HNV + r), v(HNV + r), v(W0 + 45)))
    row_out(p, HNV, W0 + 56)
    p('s_add_u32 s29, s%d, %d' % (sBase, P2_HN))
    p('buffer_store_dwordx4 %s, v%d, s[4:7], s29 offen' % (v(W0 + 56, 4), vHNst))
    post_flag(p, 128)
    p('s_cmp_ge_u32 s%d, 22' % sC)
    p('s_cbranch_scc1 L_P2NOFFN')
    p('s_add_u32 s29, s%d, %d' % (sBase, P2_FL))
    poll_flags(p, 29, 128, sN, 32, 'F2')
    p('s_add_u32 s29, s%d, %d' % (sBase, P2_HN))
    p('s_lshl_b32 s%d, s3, 13' % sT)
    p('s_add_u32 s29, s29, s%d' % sT)
    p('s_add_u32 s%d, s%d, %d' % (sM, sT, HN_L))
    for k in range(8):
        p('s_mov_b32 m0, s%d' % sM)
        p('s_add_u32 s%d, s%d, 1024' % (sM, sM))
        p('buffer_load_dwordx4 v%d, s[4:7], s29 offen sc1 lds' % vL16)
        p('s_add_u32 s29, s29, 1024')
    p.wait(vm=0)
    p('s_barrier')
    GA = W0
    FR = W0 + 16
    p('v_add_u32 %s, %d, v%d' % (t2, HN_L, vL16))
    seq = [(ks, qt) for ks in range(16) for qt in range(2)]
    rd = lambda i: p('ds_read_b128 %s, %s offset:%d' % (v(FR + 4 * (i & 3), 4), t2, seq[i][1] * 16384 + seq[i][0] * 1024))
    for i in range(3): rd(i)
    for i, (ks, qt) in enumerate(seq):
        if i + 3 < 32: rd(i + 3)
        for mat in range(2):
            D = v(GA + (qt * 2 + mat) * 4, 4)
            p('v_mfma_f32_16x16x32_bf16 %s, %s, %s, %s' % (D, a(128 + (ks * 2 + mat) * 4, 4), v(FR + 4 * (i & 3), 4), '0' if ks == 0 else D))
    for qt in range(2):
        for hh in range(2):
            p('v_pk_mul_f32 %s, %s, %s' % (v(GA + qt * 8 + 2 * hh, 2), v(GA + qt * 8 + 2 * hh, 2), v(GA + qt * 8 + 4 + 2 * hh, 2)))
        for hh in range(2):
            p('v_cvt_pk_bf16_f32 %s, %s, %s' % (v(FR + 2 * qt + hh), v(GA + qt * 8 + 2 * hh), v(GA + qt * 8 + 2 * hh + 1)))
        p('ds_write_b64 v%d, %s offset:%d' % (vHMw, v(FR + 2 * qt, 2), qt * 2048))
    p.wait(lgkm=0)
    p('s_barrier')
    HF = W0
    p('v_lshlrev_b32 %s, 3, v0' % t2)
    for qt in range(2):
        for kp in range(2):
            for T in range(2):
                p('ds_read_b64 %s, %s offset:%d' % (v(HF + (qt * 2 + kp) * 4 + 2 * T, 2), t2, HM_L + qt * 2048 + (2 * kp + T) * 512))
    ACC = W0 + 32
    for qt in range(2):
        for kp in range(2):
            for G in range(4):
                for T in range(2):
                    D = v(ACC + ((qt * 4 + G) * 2 + T) * 4, 4)
                    p('v_mfma_f32_16x16x32_bf16 %s, %s, %s, %s' % (D, v(WD + ((G * 2 + T) * 2 + kp) * 4, 4), v(HF + (qt * 2 + kp) * 4, 4), '0' if kp == 0 else D))
    p('s_add_u32 s29, s%d, %d' % (sBase, P2_IN2))
    transposed_store(p, ACC, 29)
    post_flag(p, 256)
    p.label('L_P2NOFFN')
    p.forget()
    p('s_add_u32 s29, s%d, %d' % (sBase, P2_FL))
    poll_flags(p, 29, 256, sN, 22, 'F3')
    p('s_add_u32 s29, s%d, %d' % (sBase, P2_IN2))
    for k in range(6):
        p('buffer_load_dwordx4 %s, v%d, s[4:7], s29 offen sc1' % (v(LD + 4 * k, 4), vIn if k < 5 else vIn2))
        if k < 5: p('s_add_u32 s29, s29, 4096')
    for k in range(6): p('v_mfma_f32_16x16x32_bf16 %s, %s, %s, %s' % (v(H, 4), v(LD + 4 * k, 4), v(SEL, 4), v(H, 4)))
    row_out(p, H, W0 + 56)
    p('buffer_store_dwordx4 %s, v%d, s[40:43], s28 offen' % (v(W0 + 56, 4), vOrow))
    p('s_add_u32 s%d, s%d, 7' % (sSeg, sSeg))
    p('s_add_u32 s%d, s%d, 1' % (sN, sN))
    p('s_cmp_lt_u32 s%d, 64' % sSeg)
    p('s_cbranch_scc1 L_P2SEG')
    p.wait(vm=0)
    p('s_endpgm')
    p.label('L_P2BAIL')
    p('s_load_dwordx2 s[30:31], s[0:1], %d' % KA_DBG)
    p('v_mov_b32 v16, 0x200')
    p('v_or_b32 v16, s%d, v16' % sSeg)
    p('v_mov_b32 v17, 72')
    p('s_waitcnt lgkmcnt(0)')
    p('global_store_dword v17, v16, s[30:31]')
    p.wait(vm=0)
    p('s_endpgm')

def p2_init(p):
    make_srd(p, 8, KA_X, 2048 * 1024)
    make_srd(p, 40, KA_OUT, 2048 * 1024)
```

```python
from common import *
TOK_L = 0
sCG, sTG, sSeg0, sOut, sIsV, sN = 12, 13, 14, 15, 16, 17
sT, sT2, sM = 20, 21, 22
sFlag = 23
ACC = 32
FR = 96
PK = 112
vL16, vOut, vA0, vA1, vFl = 1, 2, 3, 4, 5
vD = [8, 9, 10, 11]

def qkv_load_weights(p):
    L = 'v0'
    p('s_load_dwordx4 s[48:51], s[0:1], %d' % KA_WQ)
    p('s_load_dwordx2 s[52:53], s[0:1], %d' % KA_WV)
    p('v_lshlrev_b32 v%d, 4, v0' % vL16)
    for q in range(4):
        p('v_bfe_u32 v6, v0, 4, 1')
        p('v_lshlrev_b32 v6, 1, v6')
        p('v_and_b32 v7, 15, v0')
        p('v_xor_b32 v6, v6, v7')
        p('v_xor_b32 v6, %d, v6' % (4 * (q & 1) + 8 * (q >> 1)))
        p('v_lshlrev_b32 v6, 4, v6')
        p('v_lshrrev_b32 v7, 4, v0')
        p('v_lshl_add_u32 v%d, v7, 13, v6' % vD[q])
    p('s_waitcnt lgkmcnt(0)')
    p('s_lshr_b32 s%d, s3, 1' % sT)
    p('s_cmp_lt_u32 s%d, 32' % sCG)
    p('s_cbranch_scc0 L_QKV_ISQ')
    p('s_cmp_eq_u32 s%d, 0' % sT)
    p('s_cselect_b32 s56, s50, s52')
    p('s_cselect_b32 s57, s51, s53')
    p('s_mov_b32 s54, s%d' % sCG)
    p('s_mov_b32 s%d, s%d' % (sIsV, sT))
    p('s_branch L_QKV_SRC')
    p.label('L_QKV_ISQ')
    p('s_mov_b32 s56, s48')
    p('s_mov_b32 s57, s49')
    p('s_sub_u32 s54, s%d, 32' % sCG)
    p('s_lshl_b32 s54, s54, 1')
    p('s_add_u32 s54, s54, s%d' % sT)
    p('s_mov_b32 s%d, 0' % sIsV)
    p.label('L_QKV_SRC')
    p('s_mov_b32 s58, 0x400000')
    p('s_mov_b32 s59, 0x20000')
    for t in range(2):
        for hh in range(2):
            reg = 12 + 2 * t + hh
            p('v_bfe_u32 v6, v0, 5, 1')
            p('v_lshlrev_b32 v6, 3, v6')
            p('v_bfe_u32 v7, v0, 2, 2')
            p('v_add_u32 v6, v6, v7')
            p('v_add_u32 v6, %d, v6' % (4 * hh))
            p('v_lshlrev_b32 v%d, 8, v6' % reg)
            p('v_bfe_u32 v6, v0, 2, 1')
            p('v_lshlrev_b32 v6, 1, v6')
            p('v_bfe_u32 v7, v0, 5, 1')
            p('v_lshl_add_u32 v6, v7, 3, v6')
            p('v_or_b32 v6, %d, v6' % (4 * hh))
            p('v_bfe_u32 v7, v0, 4, 1')
            p('v_lshlrev_b32 v7, 1, v7')
            p('v_bfe_u32 v16, v0, 1, 1')
            p('v_add_u32 v7, v7, v16')
            p('s_and_b32 s%d, s3, 1' % sT2)
            p('s_lshl_b32 s%d, s%d, 3' % (sT2, sT2))
            p('s_add_u32 s%d, s%d, %d' % (sT2, sT2, 4 * t))
            p('v_add_u32 v7, s%d, v7' % sT2)
            p('v_xor_b32 v6, v6, v7')
            p('v_lshlrev_b32 v6, 4, v6')
            p('v_and_b32 v7, 1, v0')
            p('v_lshl_add_u32 v6, v7, 3, v6')
            p('v_add_u32 v%d, v%d, v6' % (reg, reg))
            p('s_lshr_b32 s%d, s3, 1' % sT2)
            p('s_lshl_b32 s%d, s%d, 14' % (sT2, sT2))
            p('v_add_u32 v%d, s%d, v%d' % (reg, sT2, reg))
    NP, RING = 8, 4
    def issue(n):
        base = (n % RING) * 32768
        p('s_and_b32 s%d, s3, 1' % sT)
        p('s_lshl_b32 s%d, s%d, 5' % (sT, sT))
        p('s_add_u32 s%d, s%d, %d' % (sT, sT, 64 * n))
        p('s_lshl_b32 s%d, s%d, 13' % (sT, sT))
        p('s_lshl_b32 s%d, s54, 8' % sT2)
        p('s_add_u32 s%d, s%d, s%d' % (sT, sT, sT2))
        p('s_lshl_b32 s%d, s3, 13' % sM)
        p('s_add_u32 s%d, s%d, %d' % (sM, sM, base))
        for k in range(8):
            p('s_mov_b32 m0, s%d' % sM)
            p('s_add_u32 s%d, s%d, 1024' % (sM, sM))
            p('buffer_load_dwordx4 v%d, s[56:59], s%d offen lds' % (vD[k & 3], sT))
            p('s_add_u32 s%d, s%d, %d' % (sT, sT, 4 * 8192))
    for n in range(RING): issue(n)
    for n in range(NP):
        inflight = min(NP, n + RING) - n - 1
        p.wait(vm=8 * inflight)
        p('s_barrier')
        base = (n % RING) * 32768
        for t in range(2):
            for hh in range(2): p('v_add_u32 v%d, %d, v%d' % (16 + 2 * t + hh, base, 12 + 2 * t + hh))
        for kk in range(4):
            ks = 4 * n + kk
            for t in range(2):
                for hh in range(2):
                    p('ds_read_b64_tr_b16 %s, v%d offset:%d' % (a((ks * 2 + t) * 4 + 2 * hh, 2), 16 + 2 * t + hh, kk * 16 * 256))
        p.wait(lgkm=0)
        p('s_barrier')
        if n + RING < NP: issue(n + RING)

def qkv_main(p, nseg=16, flags=True):
    L = 'v0'
    p('s_cmp_lt_u32 s%d, 32' % sCG)
    p('s_cselect_b32 s%d, 0x%x, 0x%x' % (sT, WS_KX, WS_QX))
    p('s_cmp_eq_u32 s%d, 1' % sIsV)
    p('s_cselect_b32 s%d, 0x%x, s%d' % (sT, WS_VX, sT))
    p('s_lshl_b32 s%d, s%d, 4' % (sSeg0, sTG))
    p('s_lshl_b32 s%d, s%d, 18' % (sT2, sSeg0))
    p('s_add_u32 s%d, s%d, s%d' % (sT, sT, sT2))
    p('s_lshl_b32 s%d, s54, 13' % sT2)
    p('s_add_u32 s%d, s%d, s%d' % (sOut, sT, sT2))
    p('v_and_b32 v6, 15, v0')
    p('v_lshlrev_b32 v6, 4, v6')
    p('v_lshrrev_b32 v7, 5, v0')
    p('v_lshl_add_u32 v6, v7, 8, v6')
    p('v_bfe_u32 v7, v0, 4, 1')
    p('s_cmp_eq_u32 s%d, 1' % sIsV)
    p('s_cselect_b32 s%d, 10, 12' % sT)
    p('s_cselect_b32 s%d, 12, 11' % sT2)
    p('v_lshlrev_b32 v7, s%d, v7' % sT)
    p('v_add_u32 v6, v6, v7')
    p('s_and_b32 s%d, s3, 1' % sM)
    p('s_lshl_b32 s%d, s%d, s%d' % (sM, sM, sT2))
    p('v_add_u32 v%d, s%d, v6' % (vOut, sM))
    p('s_mov_b32 s24, 1024')
    p('s_lshl_b32 s24, s24, s%d' % sIsV)
    p('s_lshl_b32 s25, s%d, 15' % sSeg0)
    p('s_lshl_b32 s%d, s3, 13' % sT)
    p('s_add_u32 s25, s25, s%d' % sT)
    p('s_add_u32 s25, s25, 0x%x' % WS_XN)
    p('s_lshl_b32 s26, s3, 13')
    p('s_mov_b32 s27, 0')
    def fetch():
        p('s_add_u32 s%d, s26, s27' % sM)
        for k in range(8):
            p('s_mov_b32 m0, s%d' % sM)
            p('s_add_u32 s%d, s%d, 1024' % (sM, sM))
            p('buffer_load_dwordx4 v%d, s[4:7], s25 offen lds' % vL16)
            p('s_add_u32 s25, s25, 1024')
        p('s_add_u32 s25, s25, %d' % (32768 - 8192))
        p('s_add_u32 s27, s27, 32768')
        p('s_cmp_eq_u32 s27, %d' % (3 * 32768))
        p('s_cselect_b32 s27, 0, s27')
    p('s_lshl_b32 s%d, s%d, 2' % (sFlag, sCG))
    p('s_add_u32 s%d, s%d, s%d' % (sFlag, sFlag, sTG))
    p('s_lshl_b32 s%d, s%d, 7' % (sFlag, sFlag))
    p('s_add_u32 s%d, s%d, 0x%x' % (sFlag, sFlag, WS_QFLAG))
    p('v_or_b32 v6, s3, v0')
    p('v_mov_b32 v7, 0x%x' % OOB)
    p('v_cmp_eq_u32 vcc, 0, v6')
    p('v_cndmask_b32 v%d, v7, 0, vcc' % vFl)
    p('s_mov_b32 s29, 0')
    p('s_mov_b32 s%d, 0' % sN)
    fetch(); fetch()
    def emit_loop(isV):
        tg_ = 'V' if isV else 'K'
        def epi_ops(j):
            ops = []
            for t in range(2):
                D = ACC + 32 * j + 16 * t
                for ci, (g0, g1) in enumerate(((0, 2), (1, 3))):
                    P = PK + 8 * t + 4 * ci
                    for q, g in enumerate((g0, g1)):
                        for hh in range(2):
                            ops.append('v_cvt_pk_bf16_f32 %s, %s, %s' % (v(P + 2 * q + hh), v(D + 4 * g + 2 * hh), v(D + 4 * g + 2 * hh + 1)))
                    ops.append('buffer_store_dwordx4 %s, v%d, s[4:7], s%d offen offset:%d sc1' % (v(P, 4), vOut, sOut if t == 0 else 28, 512 * ci))
            return ops
        def iteration(j, epi):
            p.forget()
            p.wait(vm=8)
            p('s_barrier')
            if flags:
                p('s_sub_i32 s%d, s%d, 2' % (sT, sN))
                p('s_max_i32 s%d, s%d, 0' % (sT, sT))
                p('v_mov_b32 v6, s%d' % sT)
                p('buffer_store_dword v6, v%d, s[4:7], s%d offen sc1' % (vFl, sFlag))
            else:
                p('buffer_store_dword v6, v7, s[4:7], s%d offen' % sFlag)
            fetch()
            p('v_add_u32 v%d, s29, v%d' % (vA0, vL16))
            p('s_add_u32 s29, s29, 32768')
            p('s_cmp_eq_u32 s29, %d' % (3 * 32768))
            p('s_cselect_b32 s29, 0, s29')
            ops = epi_ops(j ^ 1) if epi else []
            if epi: p('s_add_u32 s28, s%d, s24' % sOut)
            rd = lambda ks: p('ds_read_b128 %s, v%d offset:%d' % (v(FR + 4 * (ks & 3), 4), vA0, ks * 1024))
            for ks in range(3): rd(ks)
            for ks in range(32):
                if ks + 3 < 32: rd(ks + 3)
                for t in range(2):
                    D = v(ACC + 32 * j + 16 * t, 16)
                    W = a((ks * 2 + t) * 4, 4); T = v(FR + 4 * (ks & 3), 4)
                    A, B = (T, W) if isV else (W, T)
                    p('v_mfma_f32_32x32x16_bf16 %s, %s, %s, %s' % (D, A, B, '0' if ks == 0 else D))
                    if ks >= 1 and ops: p(ops.pop(0))
            assert not ops
            if epi: p('s_add_u32 s%d, s%d, %d' % (sOut, sOut, 32 * 8192))
            p('s_add_u32 s%d, s%d, 1' % (sN, sN))
        iteration(0, False)
        p.label('L_QKV_LOOP' + tg_)
        iteration(1, True)
        p('s_cmp_eq_u32 s%d, %d' % (sN, nseg))
        p('s_cbranch_scc1 L_QKV_END' + tg_)
        iteration(0, True)
        p('s_branch L_QKV_LOOP' + tg_)
        p.label('L_QKV_END' + tg_)
        p.forget()
        p('s_add_u32 s28, s%d, s24' % sOut)
        p.clear_hazards()
        for op in epi_ops(1): p(op)
        p.wait(vm=0)
        p('s_barrier')
        if flags:
            p('v_mov_b32 v6, %d' % nseg)
            p('buffer_store_dword v6, v%d, s[4:7], s%d offen sc1' % (vFl, sFlag))
    p('s_cmp_eq_u32 s%d, 1' % sIsV)
    p('s_cbranch_scc1 L_QKV_V')
    emit_loop(False)
    p('s_branch L_QKV_DONE')
    p.label('L_QKV_V')
    emit_loop(True)
    p.label('L_QKV_DONE')
```

```python
import sys
from common import *
import chain, ln1, qkv, p2
NAME = 'sequential_preLN__memory_aug_recurrent_mem_tr__glu_gated_bilinear__prompt_kernel'
HEADER = open('sequential_preLN__memory_aug_recurrent_mem_tr__glu_gated_bilinear__prompt.s.ref').read().split('; Override launch')[0]
DBG_REG, DBG_LN = 32, 36
sXCC, sTK = 92, 93
SPIN = 2000000

def wait_dbg(p, off, need, tag, cnt=94):
    p('s_load_dwordx2 s[96:97], s[0:1], %d' % KA_DBG)
    p('v_mov_b32 v120, %d' % off)
    p('s_mov_b32 s%d, 0' % cnt)
    p('s_waitcnt lgkmcnt(0)')
    p.label('L_WD' + tag)
    p('global_load_dword v121, v120, s[96:97] sc1')
    p.wait(vm=0)
    p('v_readfirstlane_b32 s95, v121')
    p('s_add_u32 s%d, s%d, 1' % (cnt, cnt))
    p('s_cmp_gt_u32 s%d, %d' % (cnt, SPIN))
    p('s_cbranch_scc1 L_GBAIL')
    p('s_cmp_lt_u32 s95, %d' % need)
    p('s_cbranch_scc1 L_WD' + tag)
    p.forget()

def add_dbg(p, off, tag):
    p.wait(vm=0)
    p('s_barrier')
    p('s_load_dwordx2 s[96:97], s[0:1], %d' % KA_DBG)
    p('v_mov_b32 v120, %d' % off)
    p('v_mov_b32 v121, 1')
    p('v_or_b32 v122, s3, v0')
    p('s_waitcnt lgkmcnt(0)')
    p('v_cmp_eq_u32 vcc, 0, v122')
    p('s_and_saveexec_b64 s[98:99], vcc')
    p('s_cbranch_execz L_AD' + tag)
    p('global_atomic_add v120, v121, s[96:97]')
    p.label('L_AD' + tag)
    p('s_mov_b64 exec, s[98:99]')

def zero_p2_flags(p):
    p('s_lshl_b32 s20, s%d, 22' % p2.sX)
    p('s_add_u32 s20, s20, 0x%x' % (WS_P2 + P2_FL))
    p('s_lshl_b32 s21, s%d, 2' % p2.sC)
    p('s_add_u32 s20, s20, s21')
    p('v_lshlrev_b32 v120, 7, v0')
    p('v_mov_b32 v121, 0x%x' % OOB)
    p('v_cmp_gt_u32 vcc, 3, v0')
    p('v_cndmask_b32 v120, v121, v120, vcc')
    p('v_mov_b32 v121, 0')
    p('buffer_store_dword v121, v120, s[4:7], s20 offen')

def build(opt=(), stamps=False):
    p = Prog()
    p.raw(HEADER.rstrip('\n'))
    p.raw('; @launch grid=(256,1,1) block=(256,1,1) lds=163840')
    p.raw('.amdgcn_target "amdgcn-amd-amdhsa--gfx950"\n.text\n.globl %s\n.p2align 8\n.type %s,@function\n%s:' % (NAME, NAME, NAME))
    p('s_cmp_ge_u32 s2, 256')
    p('s_cbranch_scc1 L_EXIT')
    if 'rt' in opt: p.raw('    s_memrealtime s[86:87]')
    p('s_getreg_b32 s%d, hwreg(HW_REG_XCC_ID, 0, 4)' % sXCC)
    p('s_load_dwordx2 s[8:9], s[0:1], %d' % KA_DBG)
    p('s_and_b32 s%d, s%d, 7' % (sXCC, sXCC))
    p('s_lshl_b32 s10, s%d, 2' % sXCC)
    p('v_mov_b32 v2, s10')
    p('v_mov_b32 v3, 1')
    p('s_waitcnt lgkmcnt(0)')
    p('v_cmp_eq_u32 vcc, 0, v0')
    p('s_and_saveexec_b64 s[10:11], vcc')
    p('s_cbranch_execz L_NOTICKET')
    p('global_atomic_add v4, v2, v3, s[8:9] sc0')
    p.wait(vm=0)
    p('v_mov_b32 v2, 0')
    p('ds_write_b32 v2, v4')
    p.wait(lgkm=0)
    p.label('L_NOTICKET')
    p('s_mov_b64 exec, s[10:11]')
    p('s_barrier')
    p('v_mov_b32 v2, 0')
    p('ds_read_b32 v4, v2')
    p.wait(lgkm=0)
    p('v_readfirstlane_b32 s%d, v4' % sTK)
    p('s_barrier')
    p('s_cmp_ge_u32 s%d, 32' % sTK)
    p('s_cbranch_scc1 L_EXIT')
    p('s_cmp_eq_u32 s%d, 0' % sXCC)
    p('s_cbranch_scc0 L_WORKER')
    p('s_mov_b32 s%d, s%d' % (chain.sH, sTK))
    chain.chain_setup(p)
    p('s_lshl_b32 s30, s%d, 7' % chain.sH)
    p('s_add_u32 s30, s30, 0x%x' % WS_FLAG)
    p('v_mov_b32 v120, 0')
    p('buffer_store_dword v120, off, s[4:7], s30 sc1')
    chain.chain_init_globals(p)
    add_dbg(p, DBG_REG, 'C')
    chain.chain_load_weights(p)
    chain.chain_init_mem0(p)
    wait_dbg(p, DBG_REG, 256, 'C')
    p('s_barrier')
    chain.chain_loop(p, stamps=stamps, opt=tuple(opt) + ('kvflags',))
    p.label('L_DONE')
    p.forget()
    p.raw('    s_waitcnt lgkmcnt(0)')
    p('s_add_u32 %s, %s, %d' % (s(chain.sKM), s(chain.sKM), 32 * 4096))
    p('s_add_u32 %s, %s, %d' % (s(chain.sVM), s(chain.sVM), 32 * 4096))
    p('buffer_store_dwordx4 %s, %s, s[4:7], %s offen sc1' % (v(chain.MF + 16, 4), v(chain.vL16), s(chain.sKM)))
    p('buffer_store_dwordx4 %s, %s, s[4:7], %s offen sc1' % (v(chain.MF + 20, 4), v(chain.vL16), s(chain.sVM)))
    p.wait(vm=0)
    p('s_barrier')
    p('v_mov_b32 %s, 64' % v(chain.vFlag))
    p('buffer_store_dword %s, %s, s[4:7], %s offen sc1' % (v(chain.vFlag), v(chain.vFlagOff), s(chain.sFlagOff)))
    if 'rt' in opt: rt_out(p, 0)
    p.wait(vm=0)
    p('s_endpgm')
    p.label('L_BAIL')
    p('s_load_dwordx2 s[96:97], s[0:1], %d' % KA_DBG)
    p('v_mov_b32 v120, 0x100')
    p('v_or_b32 v120, %s, v120' % s(chain.sStep))
    p('v_mov_b32 v121, 68')
    p('s_waitcnt lgkmcnt(0)')
    p('global_store_dword v121, v120, s[96:97]')
    p.wait(vm=0)
    p('s_endpgm')
    p.label('L_WORKER')
    p.forget()
    ws_srd(p)
    p('s_sub_u32 s%d, s%d, 1' % (80, sXCC))
    p('s_mov_b32 s81, s%d' % sTK)
    p('s_mov_b32 s%d, s80' % p2.sX)
    p('s_mov_b32 s%d, s81' % p2.sC)
    zero_p2_flags(p)
    p('s_cmp_eq_u32 s80, 6')
    p('s_cbranch_scc1 L_LN')
    p('s_lshl_b32 s%d, s80, 3' % qkv.sCG)
    p('s_lshr_b32 s20, s81, 2')
    p('s_add_u32 s%d, s%d, s20' % (qkv.sCG, qkv.sCG))
    p('s_and_b32 s%d, s81, 3' % qkv.sTG)
    p('s_lshl_b32 s20, s%d, 2' % qkv.sCG)
    p('s_add_u32 s20, s20, s%d' % qkv.sTG)
    p('s_lshl_b32 s20, s20, 7')
    p('s_add_u32 s20, s20, 0x%x' % WS_QFLAG)
    p('v_mov_b32 v120, 0')
    p('buffer_store_dword v120, off, s[4:7], s20 sc1')
    add_dbg(p, DBG_REG, 'Q')
    qkv.qkv_load_weights(p)
    wait_dbg(p, DBG_REG, 256, 'Q')
    wait_dbg(p, DBG_LN, 64, 'QL')
    qkv.qkv_main(p, flags=True)
    p('s_branch L_P2')
    p.label('L_LN')
    p.forget()
    add_dbg(p, DBG_REG, 'L')
    make_srd(p, 8, KA_X, 2048 * 1024)
    for k in range(2):
        p('s_lshl_b32 s12, s81, 1')
        if k: p('s_add_u32 s12, s12, 1')
        ln1.ln1_segment(p, 12, 'ab'[k])
        add_dbg(p, DBG_LN, 'LN%d' % k)
        p('s_barrier')
    wait_dbg(p, DBG_REG, 256, 'L')
    p.label('L_P2')
    p.forget()
    p('s_barrier')
    p('s_mov_b32 s%d, s80' % p2.sX)
    p('s_mov_b32 s%d, s81' % p2.sC)
    p2.p2_init(p)
    p2.p2_load_weights(p)
    p2.p2_setup(p)
    p2.p2_segment_loop(p, xflags=True, rt=('rt' in opt))
    p.label('L_GBAIL')
    p.label('L_EXIT')
    p('s_endpgm')
    p.raw('''.section .rodata,"a"
.p2align 6
.amdhsa_kernel %s
  .amdhsa_next_free_vgpr 512
  .amdhsa_next_free_sgpr 102
  .amdhsa_accum_offset 256
  .amdhsa_group_segment_fixed_size 0
  .amdhsa_kernarg_size 112
  .amdhsa_user_sgpr_count 2
  .amdhsa_user_sgpr_kernarg_segment_ptr 1
  .amdhsa_system_sgpr_workgroup_id_x 1
.end_amdhsa_kernel''' % NAME)
    return p
def rt_out(p, k): pass
if __name__ == '__main__':
    out = sys.argv[1]
    p = build(opt=tuple(sys.argv[2:]))
    open(out, 'w').write(p.text())
    print('insts', p.count, 'nop states', p.nops, 'bytes', len(p.text()))
```

```python
from asmlib import *
from layout import *

VX_L = 0
KX_L = 8192
M_IMG, M_RS = 16384, 1088
Q_IMG = 25088
K_IMG = 27136
W_L = 32768
CHAIN_LDS = W_L + 4 * 32768

vLane = 0
vL16, vIdxQ, vIdxO, vMrd, vWrd0, vWrd1, vQwr, vKwr, vQtr, vKtr, vVX, vPst, vMst, vMld, vMwr, vTouch, vPld, vNeg1, vDummy = range(1, 20)
vFlag = vDummy
vFlagOff = 21
vT0, vT1, vT2 = 22, 23, 20
MF = 24
LAND = 56
AQK = 104
AV = 120
WQK = 128

sW = 3
SRD_WS = 4
SRD_T = 8
sH, sStep, sTag = 12, 13, 15
sPst = 16
sPld = 20
sMrd, sMwr, sMpo = 21, 22, 23
sKX, sVX, sKXn = 24, 25, 26
sKM, sVM = 27, 28
sCnt = 29
sTmp, sTmp2, sTmp3 = 30, 31, 32
sScale = 33
sM0kx, sM0vx = 34, 35
sFlagOff = 36
sW10 = 37
sScale2 = 76
sNfail = 78
sExK = 92
sKVoff, sKVneed, sKVbase = 88, 89, 90
vKVf = 0
sTagN = 14
sMwrOld = 18
sMaskA = 8
sFlagVal = 79
sDBG = 38
sStamp = 40
sAcc = 44
SPIN_MAX = 200000

LDSCH = [0, 1, 6, 7]

def smf(p, acc, A, B, idx):
    p('v_smfmac_f32_16x16x64_bf16 %s, %s, %s, %s' % (v(acc, 4), v(A, 4), B, v(idx)))

def w_lds_addr(u, half):
    slot, T = u >> 2, u & 3
    off = slot * 32768 + T * 2048 + half * 1024
    return (vWrd0, off) if slot < 2 else (vWrd1, off - 65536)

def read_w(p, u, land, half):
    r, off = w_lds_addr(u, half)
    p('ds_read_b128 %s, %s offset:%d' % (v(LAND + land * 8 + half * 4, 4), v(r), off))

RAW = [60, 62, 64, 66, 68, 70, 72, 74, 88, 90, 92, 94, 96, 98, 100]
def lstamp(p, k, enable):
    if enable == 'light': p.raw('    s_memtime s[%d:%d]' % (RAW[k], RAW[k] + 1))
    if enable == 'real': p.raw('    s_memrealtime s[%d:%d]' % (RAW[k], RAW[k] + 1))
def lstamp_save(p, enable):
    if enable not in ('light', 'real'): return
    p.raw('    s_cmp_eq_u32 %s, 31' % s(sStep))
    for k in range(15): p.raw('    s_cselect_b32 %s, s%d, %s' % (s(sAcc + k), RAW[k], s(sAcc + k)))
def stamp(p, k, enable):
    if enable in ('light', 'real'): return
    if not enable or (enable == 'total' and k != 4): return
    if enable == 'abs':
        p.raw('    s_memtime %s' % s(sStamp + 2, 2))
        p.raw('    s_waitcnt lgkmcnt(0)')
        p.lgkm = []
        p.raw('    s_cmp_eq_u32 %s, 30' % s(sStep))
        p.raw('    s_cselect_b32 %s, %s, %s' % (s(sAcc + k), s(sStamp + 2), s(sAcc + k)))
        return
    if k > 4: return
    p.raw('    s_memtime %s' % s(sStamp + 2, 2))
    p.raw('    s_waitcnt lgkmcnt(0)')
    p.lgkm = []
    p.raw('    s_sub_u32 %s, %s, %s' % (s(sTmp3), s(sStamp + 2), s(sStamp)))
    p.raw('    s_add_u32 %s, %s, %s' % (s(sAcc + k), s(sAcc + k), s(sTmp3)))
    p.raw('    s_mov_b32 %s, %s' % (s(sStamp), s(sStamp + 2)))


def optint(opt, name, default):
    return int(opt[opt.index(name) + 1]) if name in opt else default
def delay(p, cycles):
    n = cycles // 4
    while n > 0:
        k = min(n, 16); p('s_nop %d' % (k - 1)); n -= k

def chain_setup(p):
    p('s_load_dwordx2 s[4:5], s[0:1], %d' % KA_WS)
    p('s_load_dwordx2 %s, s[0:1], %d' % (s(sDBG, 2), KA_DBG))
    p('v_lshrrev_b32 v1, 6, v0')
    p('v_readfirstlane_b32 %s, v1' % s(sW))
    p('v_and_b32 v0, 63, v0')
    p('s_waitcnt lgkmcnt(0)')
    p('s_mov_b32 s6, 0x%x' % WS_SIZE)
    p('s_mov_b32 s7, 0x20000')
    L = v(vLane)
    t0, t1, t2 = v(vT0), v(vT1), v(vT2)
    p('v_lshlrev_b32 %s, 4, %s' % (v(vL16), L))
    p('v_bfe_u32 %s, %s, 1, 1' % (t0, L))
    p('v_mov_b32 %s, 0x4444' % t1)
    p('v_mov_b32 %s, 0xeeee' % t2)
    p('v_cmp_eq_u32 vcc, 1, %s' % t0)
    p('v_cndmask_b32 %s, %s, %s, vcc' % (v(vIdxQ), t1, t2))
    p('v_bfe_u32 %s, %s, 3, 1' % (t0, L))
    p('v_cmp_eq_u32 vcc, 1, %s' % t0)
    p('v_cndmask_b32 %s, %s, %s, vcc' % (v(vIdxO), t1, t2))
    p('v_bfe_u32 %s, %s, 2, 2' % (t0, L))
    p('v_lshlrev_b32 %s, 1, %s' % (t0, t0))
    p('v_and_b32 %s, 1, %s' % (t1, L))
    p('v_add_u32 %s, %s, %s' % (t0, t0, t1))
    p('v_mul_u32_u24 %s, %d, %s' % (t0, M_RS, t0))
    p('v_lshrrev_b32 %s, 4, %s' % (t1, L))
    p('v_lshlrev_b32 %s, 5, %s' % (t1, t1))
    p('v_add_u32 %s, %s, %s' % (t0, t0, t1))
    p('v_bfe_u32 %s, %s, 1, 1' % (t1, L))
    p('v_lshlrev_b32 %s, 4, %s' % (t1, t1))
    p('v_add_u32 %s, %s, %s' % (t0, t0, t1))
    p('v_add_u32 %s, %d, %s' % (v(vMrd), M_IMG, t0))
    p('s_lshl_b32 %s, %s, 13' % (s(sTmp), s(sW)))
    p('s_add_u32 %s, %s, %d' % (s(sTmp), s(sTmp), W_L))
    p('v_add_u32 %s, %s, %s' % (v(vWrd0), s(sTmp), v(vL16)))
    p('v_add_u32 %s, 0x10000, %s' % (v(vWrd1), v(vWrd0)))
    p('v_and_b32 %s, 15, %s' % (t0, L))
    p('s_lshl_b32 %s, %s, 5' % (s(sTmp), s(sW)))
    p('v_add_u32 %s, %s, %s' % (t0, s(sTmp), t0))
    p('v_lshrrev_b32 %s, 4, %s' % (t1, L))
    p('v_lshlrev_b32 %s, 4, %s' % (t2, t0))
    p('v_lshl_add_u32 %s, %s, 2, %s' % (t2, t1, t2))
    p('v_add_u32 %s, %d, %s' % (v(vQwr), Q_IMG, t2))
    p('v_lshlrev_b32 %s, 5, %s' % (t2, t0))
    p('v_lshl_add_u32 %s, %s, 3, %s' % (t2, t1, t2))
    p('v_add_u32 %s, %d, %s' % (v(vKwr), K_IMG, t2))
    p('v_lshrrev_b32 %s, 2, %s' % (t0, L))
    p('v_and_b32 %s, 1, %s' % (t1, L))
    p('v_lshlrev_b32 %s, 4, %s' % (t2, t0))
    p('v_lshl_add_u32 %s, %s, 3, %s' % (t2, t1, t2))
    p('v_add_u32 %s, %d, %s' % (v(vQtr), Q_IMG, t2))
    p('v_and_b32 %s, 3, %s' % (t1, L))
    p('v_lshlrev_b32 %s, 5, %s' % (t2, t0))
    p('v_lshl_add_u32 %s, %s, 3, %s' % (t2, t1, t2))
    p('v_add_u32 %s, %d, %s' % (v(vKtr), K_IMG, t2))
    p('s_lshl_b32 %s, %s, 11' % (s(sTmp), s(sW)))
    p('s_add_u32 %s, %s, %d' % (s(sM0vx), s(sTmp), VX_L))
    p('s_add_u32 %s, %s, %d' % (s(sM0kx), s(sTmp), KX_L))
    p('v_add_u32 %s, %s, %s' % (v(vVX), s(sM0vx), v(vL16)))
    p('v_lshrrev_b32 %s, 5, %s' % (t0, L))
    p('v_lshlrev_b32 %s, 2, %s' % (t0, t0))
    p('v_bfe_u32 %s, %s, 2, 2' % (t1, L))
    p('v_add_u32 %s, %s, %s' % (t0, t0, t1))
    p('s_lshl_b32 %s, %s, 3' % (s(sTmp), s(sW)))
    p('v_add_u32 %s, %s, %s' % (t0, s(sTmp), t0))
    p('v_lshlrev_b32 %s, 13, %s' % (t0, t0))
    p('v_bfe_u32 %s, %s, 4, 1' % (t1, L))
    p('v_lshlrev_b32 %s, 2, %s' % (t1, t1))
    p('v_and_b32 %s, 3, %s' % (t2, L))
    p('v_add_u32 %s, %s, %s' % (t1, t1, t2))
    p('v_lshlrev_b32 %s, 4, %s' % (t1, t1))
    p('s_lshl_b32 %s, %s, 7' % (s(sTmp), s(sH)))
    p('v_add3_u32 %s, %s, %s, %s' % (v(vPst), t0, t1, s(sTmp)))
    p('v_bfe_u32 %s, %s, 2, 1' % (t0, L))
    p('s_and_b32 %s, %s, 2' % (s(sTmp), s(sW)))
    p('v_add_u32 %s, %s, %s' % (t0, s(sTmp), t0))
    p('v_lshlrev_b32 %s, 5, %s' % (t0, t0))
    p('v_add_u32 %s, %s, %s' % (t0, s(sH), t0))
    p('v_lshlrev_b32 %s, 6, %s' % (t0, t0))
    p('v_and_b32 %s, 3, %s' % (t1, L))
    p('v_lshlrev_b32 %s, 1, %s' % (t1, t1))
    p('s_and_b32 %s, %s, 1' % (s(sTmp), s(sW)))
    p('v_add_u32 %s, %s, %s' % (t1, s(sTmp), t1))
    p('v_lshl_add_u32 %s, %s, 3, %s' % (t0, t1, t0))
    p('v_bfe_u32 %s, %s, 4, 1' % (t1, L))
    p('v_lshl_add_u32 %s, %s, 2, %s' % (t0, t1, t0))
    p('v_and_b32 %s, 0x28, %s' % (t1, L))
    p('v_mov_b32 %s, 0x%x' % (t2, OOB))
    p('v_cmp_eq_u32 vcc, 0, %s' % t1)
    p('v_cndmask_b32 %s, %s, %s, vcc' % (v(vMst), t2, t0))
    p('v_lshrrev_b32 %s, 2, %s' % (t0, L))
    p('v_lshlrev_b32 %s, 7, %s' % (t0, t0))
    p('v_and_b32 %s, 3, %s' % (t1, L))
    p('v_lshl_add_u32 %s, %s, 4, %s' % (t0, t1, t0))
    p('s_and_b32 %s, %s, 1' % (s(sTmp), s(sW)))
    p('s_lshl_b32 %s, %s, 6' % (s(sTmp), s(sTmp)))
    p('v_add_u32 %s, %s, %s' % (v(vPld), s(sTmp), t0))
    p('s_lshl_b32 %s, %s, 11' % (s(sTmp), s(sW)))
    p('v_add_u32 %s, %s, %s' % (v(vMld), s(sTmp), v(vL16)))
    p('v_and_b32 %s, 3, %s' % (t0, L))
    p('v_mul_u32_u24 %s, %d, %s' % (t0, M_RS, t0))
    p('v_lshrrev_b32 %s, 2, %s' % (t1, L))
    p('v_lshl_add_u32 %s, %s, 3, %s' % (t0, t1, t0))
    p('s_lshl_b32 %s, %s, 8' % (s(sTmp), s(sW)))
    p('s_add_u32 %s, %s, %d' % (s(sTmp), s(sTmp), M_IMG))
    p('v_add_u32 %s, %s, %s' % (v(vMwr), s(sTmp), t0))
    p('v_and_b32 %s, 31, %s' % (t0, L))
    p('v_lshlrev_b32 %s, 6, %s' % (t0, t0))
    p('s_lshl_b32 %s, %s, 11' % (s(sTmp), s(sW)))
    p('v_add_u32 %s, %s, %s' % (t0, s(sTmp), t0))
    p('v_lshrrev_b32 %s, 5, %s' % (t1, L))
    p('v_mul_u32_u24 %s, 0x100, %s' % (t1, t1))
    p('v_lshlrev_b32 %s, 16, %s' % (t1, t1))
    p('v_add_u32 %s, %s, %s' % (v(vTouch), t0, t1))
    p('v_mov_b32 %s, -1' % v(vNeg1))
    p('s_mov_b32 %s, 0x3e0293ee' % s(sScale))
    p('s_mov_b32 %s, 0x3e0293ee' % s(sScale2))
    p('s_mov_b32 %s, 0x3e0293ee' % s(sScale2 + 1))
    p('s_mov_b32 %s, 0' % s(sNfail))
    p('s_mov_b32 %s, 0x33333333' % s(sExK)); p('s_mov_b32 %s, 0x33333333' % s(sExK + 1))

def chain_load_weights(p):
    vD = [24, 25, 26, 27]
    vE = [28, 29, 30, 31]
    vA0, vA1, vAo = 32, 33, 34
    L = v(vLane); t0, t1, t2 = v(vT0), v(vT1), v(vT2)
    p('s_load_dwordx4 s[48:51], s[0:1], %d' % KA_WQ)
    p('s_load_dwordx4 s[52:55], s[0:1], %d' % KA_WV)
    for q in range(4):
        p('v_bfe_u32 %s, %s, 4, 1' % (t0, L))
        p('v_lshlrev_b32 %s, 1, %s' % (t0, t0))
        p('v_and_b32 %s, 15, %s' % (t1, L))
        p('v_xor_b32 %s, %s, %s' % (t0, t0, t1))
        p('v_xor_b32 %s, %d, %s' % (t0, 4 * (q & 1) + 8 * (q >> 1), t0))
        p('v_lshlrev_b32 %s, 4, %s' % (t0, t0))
        p('v_lshrrev_b32 %s, 4, %s' % (t1, L))
        p('v_lshl_add_u32 %s, %s, 13, %s' % (v(vD[q]), t1, t0))
    p('s_lshr_b32 %s, %s, 1' % (s(sTmp), s(sW)))
    p('s_lshl_b32 %s, %s, 3' % (s(sTmp), s(sTmp)))
    for q in range(2):
        p('v_xor_b32 %s, %d, %s' % (t0, 4 * q, L))
        p('v_xor_b32 %s, %s, %s' % (t0, s(sTmp), t0))
        p('v_lshlrev_b32 %s, 4, %s' % (v(vE[q]), t0))
    for t, reg in ((0, vA0), (1, vA1)):
        p('v_bfe_u32 %s, %s, 5, 1' % (t0, L))
        p('v_lshlrev_b32 %s, 4, %s' % (t0, t0))
        p('v_bfe_u32 %s, %s, 4, 1' % (t1, L))
        p('v_lshl_add_u32 %s, %s, 2, %s' % (t0, t1, t0))
        p('v_bfe_u32 %s, %s, 3, 1' % (t1, L))
        p('v_lshl_add_u32 %s, %s, 3, %s' % (t0, t1, t0))
        p('v_bfe_u32 %s, %s, 2, 1' % (t1, L))
        p('v_add_u32 %s, %s, %s' % (t0, t0, t1))
        p('v_lshlrev_b32 %s, 8, %s' % (v(reg), t0))
        p('v_bfe_u32 %s, %s, 2, 1' % (t0, L))
        p('v_lshlrev_b32 %s, 1, %s' % (t0, t0))
        p('v_bfe_u32 %s, %s, 4, 1' % (t1, L))
        p('v_lshl_add_u32 %s, %s, 2, %s' % (t0, t1, t0))
        p('v_bfe_u32 %s, %s, 3, 1' % (t1, L))
        p('v_lshl_add_u32 %s, %s, 3, %s' % (t0, t1, t0))
        p('v_bfe_u32 %s, %s, 1, 1' % (t1, L))
        p('s_lshl_b32 %s, %s, 2' % (s(sTmp), s(sW)))
        p('s_add_u32 %s, %s, %d' % (s(sTmp), s(sTmp), 2 * t))
        p('v_add_u32 %s, %s, %s' % (t1, s(sTmp), t1))
        p('v_xor_b32 %s, %s, %s' % (t0, t0, t1))
        p('v_lshlrev_b32 %s, 4, %s' % (t0, t0))
        p('v_and_b32 %s, 1, %s' % (t1, L))
        p('v_lshl_add_u32 %s, %s, 3, %s' % (t0, t1, t0))
        p('v_add_u32 %s, %s, %s' % (v(reg), v(reg), t0))
    p('v_bfe_u32 %s, %s, 4, 1' % (t0, L))
    p('v_lshlrev_b32 %s, 4, %s' % (t0, t0))
    p('v_bfe_u32 %s, %s, 5, 1' % (t1, L))
    p('v_lshl_add_u32 %s, %s, 2, %s' % (t0, t1, t0))
    p('v_bfe_u32 %s, %s, 2, 1' % (t1, L))
    p('v_add_u32 %s, %s, %s' % (t0, t0, t1))
    p('v_lshlrev_b32 %s, 10, %s' % (v(vAo), t0))
    p('v_bfe_u32 %s, %s, 2, 1' % (t0, L))
    p('v_lshlrev_b32 %s, 2, %s' % (t0, t0))
    p('v_bfe_u32 %s, %s, 4, 1' % (t1, L))
    p('v_lshl_add_u32 %s, %s, 3, %s' % (t0, t1, t0))
    p('v_bfe_u32 %s, %s, 3, 1' % (t1, L))
    p('v_lshlrev_b32 %s, 1, %s' % (t1, t1))
    p('v_bfe_u32 %s, %s, 1, 1' % (t2, L))
    p('v_add_u32 %s, %s, %s' % (t1, t1, t2))
    p('s_lshl_b32 %s, %s, 2' % (s(sTmp), s(sW)))
    p('v_add_u32 %s, %s, %s' % (t1, s(sTmp), t1))
    p('v_xor_b32 %s, %s, %s' % (t0, t0, t1))
    p('v_lshlrev_b32 %s, 4, %s' % (t0, t0))
    p('v_and_b32 %s, 1, %s' % (t1, L))
    p('v_lshl_add_u32 %s, %s, 3, %s' % (t0, t1, t0))
    p('v_add_u32 %s, %s, %s' % (v(vAo), v(vAo), t0))
    p('s_waitcnt lgkmcnt(0)')
    for k, (lo, base) in enumerate(((48, 56), (50, 60), (52, 64), (54, 68))):
        p('s_mov_b32 s%d, s%d' % (base, lo))
        p('s_mov_b32 s%d, s%d' % (base + 1, lo + 1))
        p('s_mov_b32 s%d, 0x400000' % (base + 2))
        p('s_mov_b32 s%d, 0x20000' % (base + 3))
    p('s_cmp_lt_u32 %s, 2' % s(sW))
    p('s_cselect_b32 s72, s56, s60')
    p('s_cselect_b32 s73, s57, s61')
    p('s_mov_b32 s74, 0x400000')
    p('s_mov_b32 s75, 0x20000')
    slot_base = lambda n: [W_L + 3 * 32768, 0, W_L, W_L + 32768, W_L + 2 * 32768][n % 5]
    QKCH = [2, 3, 4, 5] + LDSCH
    def issue(n):
        base = slot_base(n)
        sOff, sM = sTmp, sTmp2
        if n < 4:
            p('s_lshl_b32 %s, %s, 5' % (s(sOff), s(sW)))
            p('s_add_u32 %s, %s, %d' % (s(sOff), s(sOff), 128 * n))
            p('s_lshl_b32 %s, %s, 13' % (s(sOff), s(sOff)))
            p('s_lshl_b32 %s, %s, 8' % (s(sTmp3), s(sH)))
            p('s_add_u32 %s, %s, %s' % (s(sOff), s(sOff), s(sTmp3)))
            p('s_lshl_b32 %s, %s, 13' % (s(sM), s(sW)))
            p('s_add_u32 %s, %s, %d' % (s(sM), s(sM), base))
            for k in range(8):
                p('s_mov_b32 m0, %s' % s(sM))
                p('s_add_u32 %s, %s, 1024' % (s(sM), s(sM)))
                p('buffer_load_dwordx4 %s, s[64:67], %s offen lds' % (v(vD[k & 3]), s(sOff)))
                p('s_add_u32 %s, %s, %d' % (s(sOff), s(sOff), 4 * 8192))
        elif n < 8:
            ec = n - 4
            p('s_lshl_b32 %s, %s, 7' % (s(sOff), s(sH)))
            p('s_lshl_b32 %s, %s, 3' % (s(sTmp3), s(sW)))
            p('s_add_u32 %s, %s, %s' % (s(sOff), s(sOff), s(sTmp3)))
            p('s_add_u32 %s, %s, %d' % (s(sOff), s(sOff), 32 * ec))
            p('s_lshl_b32 %s, %s, 10' % (s(sOff), s(sOff)))
            p('s_lshl_b32 %s, %s, 13' % (s(sM), s(sW)))
            p('s_add_u32 %s, %s, %d' % (s(sM), s(sM), base))
            for k in range(8):
                p('s_mov_b32 m0, %s' % s(sM))
                p('s_add_u32 %s, %s, 1024' % (s(sM), s(sM)))
                p('buffer_load_dwordx4 %s, s[68:71], %s offen lds' % (v(vE[k & 1]), s(sOff)))
                p('s_add_u32 %s, %s, 1024' % (s(sOff), s(sOff)))
        else:
            ch = QKCH[n - 8]
            p('s_and_b32 %s, %s, 1' % (s(sOff), s(sW)))
            p('s_lshl_b32 %s, %s, 5' % (s(sOff), s(sOff)))
            p('s_add_u32 %s, %s, %d' % (s(sOff), s(sOff), 64 * ch))
            p('s_lshl_b32 %s, %s, 13' % (s(sOff), s(sOff)))
            p('s_lshl_b32 %s, %s, 8' % (s(sTmp3), s(sH)))
            p('s_add_u32 %s, %s, %s' % (s(sOff), s(sOff), s(sTmp3)))
            p('s_lshl_b32 %s, %s, 13' % (s(sM), s(sW)))
            p('s_add_u32 %s, %s, %d' % (s(sM), s(sM), base))
            for k in range(8):
                p('s_mov_b32 m0, %s' % s(sM))
                p('s_add_u32 %s, %s, 1024' % (s(sM), s(sM)))
                p('buffer_load_dwordx4 %s, s[72:75], %s offen lds' % (v(vD[k & 3]), s(sOff)))
                p('s_add_u32 %s, %s, %d' % (s(sOff), s(sOff), 4 * 8192))
    def consume(n):
        base = slot_base(n)
        va0, va1, vao = 36, 37, 38
        if n < 4:
            p('v_add_u32 %s, %d, %s' % (v(va0), base, v(vA0)))
            p('v_add_u32 %s, %d, %s' % (v(va1), base, v(vA1)))
            for cc in range(2):
                c = 2 * n + cc
                for t in range(2):
                    for r in (0, 2, 4, 6):
                        off = (cc * 64 + 32 * (r >> 2) + 2 * ((r >> 1) & 1)) * 256
                        p('ds_read_b64_tr_b16 %s, %s offset:%d' % (a((c * 2 + t) * 8 + r, 2), v(va0 if t == 0 else va1), off))
        elif n < 8:
            ec = n - 4
            p('v_add_u32 %s, %d, %s' % (v(vao), base, v(vAo)))
            for wv in range(4):
                if wv < 3:
                    p('s_cmp_lg_u32 %s, %d' % (s(sW), wv))
                    p('s_cbranch_scc1 L_WO%d_%d' % (ec, wv + 1))
                for pp in range(4):
                    for r in (0, 2, 4, 6):
                        off = (8 * (r >> 2) + 2 * ((r >> 1) & 1)) * 1024 + pp * 256
                        p('ds_read_b64_tr_b16 %s, %s offset:%d' % (a(128 + (pp * 4 + (ec ^ wv)) * 8 + r, 2), v(vao), off))
                if wv < 3:
                    p('s_branch L_WO%d_E' % ec)
                    p.label('L_WO%d_%d' % (ec, wv + 1))
            p.label('L_WO%d_E' % ec)
        else:
            p('v_add_u32 %s, %d, %s' % (v(va0), base, v(vA0)))
            p('v_add_u32 %s, %d, %s' % (v(va1), base, v(vA1)))
            j = n - 8
            for T in range(4):
                mat, t = T >> 1, T & 1
                for r in (0, 2, 4, 6):
                    off = (mat * 64 + 32 * (r >> 2) + 2 * ((r >> 1) & 1)) * 256
                    dst = WQK + (j * 4 + T) * 8 + r if j < 4 else LAND + T * 8 + r
                    p('ds_read_b64_tr_b16 %s, %s offset:%d' % (v(dst, 2), v(va0 if t == 0 else va1), off))
    for n in range(5): issue(n)
    for n in range(16):
        inflight = min(16, n + 5) - n - 1
        p.wait(vm=8 * inflight)
        p('s_barrier')
        consume(n)
        p.wait(lgkm=0)
        p('s_barrier')
        if n >= 12:
            slot = n - 12
            r = vWrd0 if slot < 2 else vWrd1
            for T in range(4):
                for half in range(2):
                    off = slot * 32768 + T * 2048 + half * 1024 - (0 if slot < 2 else 65536)
                    p('ds_write_b128 %s, %s offset:%d' % (v(r), v(LAND + T * 8 + half * 4, 4), off))
        if n + 5 < 16: issue(n + 5)
    p.wait(lgkm=0)


def chain_init_globals(p):
    L = v(vLane); t0, t1, t2 = v(vT0), v(vT1), v(vT2)
    for r in range(4): p('v_mov_b32 %s, 0' % v(MF + r))
    p('s_lshl_b32 %s, %s, 13' % (s(sTmp), s(sH)))
    p('s_lshl_b32 %s, %s, 11' % (s(sTmp2), s(sW)))
    p('s_add_u32 %s, %s, %s' % (s(sTmp), s(sTmp), s(sTmp2)))
    p('s_add_u32 %s, %s, 0x%x' % (s(sTmp), s(sTmp), WS_PART))
    p('s_add_u32 %s, %s, 0x40000' % (s(sTmp2), s(sTmp)))
    for k in range(2):
        p('buffer_store_dwordx4 %s, %s, s[4:7], %s offen offset:%d' % (v(MF, 4), v(vL16), s(sTmp), k * 1024))
        p('buffer_store_dwordx4 %s, %s, s[4:7], %s offen offset:%d' % (v(MF, 4), v(vL16), s(sTmp2), k * 1024))
    for slot in range(3):
        p('s_mov_b32 %s, 0x%x' % (s(sTmp), WS_M + slot * 8192))
        p('buffer_store_dword %s, %s, s[4:7], %s offen' % (v(vNeg1), v(vMst), s(sTmp)))

def chain_init_mem0(p):
    L = v(vLane); t0, t1, t2 = v(vT0), v(vT1), v(vT2)
    p('s_load_dwordx2 s[48:49], s[0:1], %d' % KA_MEM0)
    p('v_lshrrev_b32 %s, 3, %s' % (t0, L))
    p('v_and_b32 %s, 7, %s' % (t1, L))
    p('v_lshlrev_b32 %s, 4, %s' % (t1, t1))
    p('s_lshl_b32 %s, %s, 8' % (s(sTmp), s(sW)))
    p('v_add_u32 %s, %s, %s' % (t1, s(sTmp), t1))
    p('v_lshl_add_u32 %s, %s, 10, %s' % (t2, t0, t1))
    p('v_mul_u32_u24 %s, %d, %s' % (t0, M_RS, t0))
    p('v_add_u32 %s, %s, %s' % (t0, t0, t1))
    p('v_add_u32 %s, %d, %s' % (t0, M_IMG, t0))
    p('s_waitcnt lgkmcnt(0)')
    p('s_mov_b32 s50, 8192')
    p('s_mov_b32 s51, 0x20000')
    p('buffer_load_dwordx4 %s, %s, s[48:51], 0 offen' % (v(MF + 4, 4), t2))
    p('buffer_load_dwordx4 %s, %s, s[48:51], 0 offen offset:128' % (v(MF + 8, 4), t2))
    p('ds_write_b128 %s, %s' % (t0, v(MF + 4, 4)))
    p('ds_write_b128 %s, %s offset:128' % (t0, v(MF + 8, 4)))
    p.wait(vm=0, lgkm=0)

def chain_init_comm(p):
    chain_init_globals(p)
    chain_init_mem0(p)

def chain_loop(p, nsteps=64, stamps=False, opt=()):
    L = v(vLane); t0, t1, t2 = v(vT0), v(vT1), v(vT2)
    SC = '' if 'nosc1' in opt else ' sc1'
    p('s_mov_b32 %s, 0' % s(sStep))
    p('s_mov_b32 %s, 0' % s(sFlagVal))
    p('s_mov_b32 %s, 1' % s(sTag))
    for P in range(2):
        p('s_mov_b32 %s, 0x%x' % (s(sPst + P), WS_PART + P * 4096))
    p('s_lshl_b32 %s, %s, 13' % (s(sPld), s(sH)))
    p('s_lshr_b32 %s, %s, 1' % (s(sTmp), s(sW)))
    p('s_lshl_b32 %s, %s, 12' % (s(sTmp), s(sTmp)))
    p('s_add_u32 %s, %s, %s' % (s(sPld), s(sPld), s(sTmp)))
    p('s_add_u32 %s, %s, 0x%x' % (s(sPld), s(sPld), WS_PART))
    p('s_mov_b32 %s, 0x%x' % (s(sMrd), WS_M))
    p('s_mov_b32 %s, 0x%x' % (s(sMwr), WS_M + 8192))
    p('s_mov_b32 %s, 0x%x' % (s(sMpo), WS_M + 16384))
    p('s_lshl_b32 %s, %s, 13' % (s(sTmp), s(sH)))
    p('s_lshl_b32 %s, %s, 11' % (s(sTmp2), s(sW)))
    p('s_add_u32 %s, %s, %s' % (s(sKX), s(sTmp), s(sTmp2)))
    p('s_add_u32 %s, %s, 0x%x' % (s(sVX), s(sKX), WS_VX))
    p('s_add_u32 %s, %s, 0x%x' % (s(sKXn), s(sTmp), 32 * 8192))
    p('s_lshl_b32 %s, %s, 12' % (s(sTmp), s(sH)))
    p('s_lshl_b32 %s, %s, 10' % (s(sTmp2), s(sW)))
    p('s_add_u32 %s, %s, %s' % (s(sTmp), s(sTmp), s(sTmp2)))
    p('s_add_u32 %s, %s, 0x%x' % (s(sKM), s(sTmp), WS_KM - 32 * 4096))
    p('s_add_u32 %s, %s, 0x%x' % (s(sVM), s(sTmp), WS_VM - 32 * 4096))
    p('s_lshl_b32 %s, %s, 7' % (s(sTmp), s(sH)))
    p('s_add_u32 %s, %s, 0x%x' % (s(sFlagOff), s(sTmp), WS_FLAG))
    p('s_lshl_b32 %s, %s, 10' % (s(sW10), s(sW)))
    p('v_or_b32 %s, %s, %s' % (t0, s(sW), L))
    p('v_mov_b32 %s, 0x%x' % (t1, OOB))
    p('v_cmp_eq_u32 vcc, 0, %s' % t0)
    p('v_cndmask_b32 %s, %s, 0, vcc' % (v(vFlagOff), t1))
    if 'kvflags' in opt:
        p('s_lshl_b32 %s, %s, 9' % (s(sTmp), s(sH)))
        p('s_add_u32 %s, %s, 0x%x' % (s(sKVbase), s(sTmp), WS_QFLAG))
        for tg in range(2):
            p('s_add_u32 %s, %s, %d' % (s(sKVoff), s(sKVbase), 128 * tg))
            p('s_mov_b32 %s, 0' % s(sCnt))
            p.label('L_KV0%d' % tg)
            p('buffer_load_dword %s, off, s[4:7], %s sc1' % (v(vKVf), s(sKVoff)))
            p.wait(vm=0)
            p('v_readfirstlane_b32 %s, %s' % (s(sTmp), v(vKVf)))
            p('s_add_u32 %s, %s, 1' % (s(sCnt), s(sCnt)))
            p('s_cmp_gt_u32 %s, %d' % (s(sCnt), SPIN_MAX * 4))
            p('s_cbranch_scc1 L_BAIL')
            p('s_cmp_lt_u32 %s, 1' % s(sTmp))
            p('s_cbranch_scc1 L_KV0%d' % tg)
            p.forget()
        p('s_add_u32 %s, %s, 256' % (s(sKVoff), s(sKVbase)))
        p('s_mov_b32 %s, 1' % s(sKVneed))
        p('s_mov_b32 %s, 0' % s(sCnt))
    p('s_mov_b32 m0, %s' % s(sM0kx))
    p('s_nop 0')
    p('buffer_load_dwordx4 %s, s[4:7], %s offen lds' % (v(vL16), s(sKX)))
    p('buffer_load_dwordx4 %s, s[4:7], %s offen offset:1024 lds' % (v(vL16), s(sKX)))
    PRE = [(0, 0), (0, 1), (0, 2), (0, 3), (1, 0), (1, 1)]
    REF = [(2, 0), (2, 1), (3, 0), (3, 1), (1, 2), (1, 3), (2, 2), (2, 3), (3, 2), (3, 3)]
    def rd_w(st, land, half): read_w(p, st[0] * 4 + st[1], land, half)
    for u in range(6):
        rd_w(PRE[u], u, 0); rd_w(PRE[u], u, 1)
    for r in range(0, 24, 2): p('v_mov_b64 %s, 0' % v(AQK + r, 2))
    p.wait(vm=0, lgkm=0)
    if stamps:
        for k in range(15): p('s_mov_b32 %s, 0' % s(sAcc + k))
        p.raw('    s_memtime %s' % s(sStamp, 2)); p.raw('    s_waitcnt lgkmcnt(0)')
    p('s_barrier')
    p('s_branch L_T0')
    p.label('L_STEP', align=6)
    p.forget()
    PUB = MF + 16
    VA = MF + 20
    G = MF; GB = MF + 24
    def gpoll(R):
        p('buffer_load_dwordx4 %s, %s, s[4:7], %s offen sc1' % (v(R, 4), v(vMld), s(sMrd)))
        p('buffer_load_dwordx4 %s, %s, s[4:7], %s offen offset:1024 sc1' % (v(R + 4, 4), v(vMld), s(sMrd)))
    def gcheck(R, fail):
        for k in range(2):
            for hh in range(2):
                p('ds_write_b64 %s, %s offset:%d' % (v(vMwr), v(R + 4 * k + 2 * hh, 2), hh * 4 * M_RS + k * 128))
        p('v_max3_u32 %s, %s, %s, %s' % (t0, v(R), v(R + 1), v(R + 2)))
        p('v_max3_u32 %s, %s, %s, %s' % (t1, v(R + 3), v(R + 4), v(R + 5)))
        p('v_max3_u32 %s, %s, %s, %s' % (t0, t0, v(R + 6), v(R + 7)))
        p('v_max_u32 %s, %s, %s' % (t0, t0, t1))
        p('v_cmp_eq_u32 vcc, -1, %s' % t0)
        p('s_cbranch_vccnz %s' % fail)
    DG = optint(opt, 'dg', 0)
    gpoll(G)
    for r in range(0, 24, 2): p('v_mov_b64 %s, 0' % v(AQK + r, 2))
    if DG:
        delay(p, DG - 48)
        gpoll(GB)
        p.wait(vm=2)
        gcheck(G, 'L_GFAILA')
    else:
        p.label('L_GCHECK')
        p.wait(vm=0)
        gcheck(G, 'L_GFAIL')
    p.label('L_GOK')
    lstamp(p, 14, stamps)
    def pub():
        p('buffer_store_dwordx4 %s, %s, s[4:7], %s offen%s' % (v(PUB, 4), v(vL16), s(sKM), SC))
        p('buffer_store_dwordx4 %s, %s, s[4:7], %s offen%s' % (v(VA, 4), v(vL16), s(sVM), SC))
    if 'nopub' not in opt and 'pubT0' not in opt: pub()
    p.wait(lgkm=0)
    stamp(p, 0, stamps)
    p('s_barrier')
    p.label('L_T0')
    p.forget()
    lstamp_save(p, stamps)
    lstamp(p, 0, stamps)
    def rd_m(c): p('ds_read_b128 %s, %s offset:%d' % (v(MF + 4 * c, 4), v(vMrd), c * 128))
    DGx = optint(opt, 'dg', 0)
    for c in ((0, 1, 2, 3) if DGx else (0, 1, 2, 6)): rd_m(c)
    p('s_mov_b32 m0, %s' % s(sM0vx))
    p('v_mov_b32 %s, %s' % (v(vFlag), s(sFlagVal)))
    p('buffer_load_dwordx4 %s, s[4:7], %s offen lds' % (v(vL16), s(sVX)))
    p('buffer_load_dwordx4 %s, s[4:7], %s offen offset:1024 lds' % (v(vL16), s(sVX)))
    if 'pubT0' in opt: pub()
    lstamp(p, 1, stamps)
    def U(i): return (LDSCH[PRE[i][0]], PRE[i][1], v(LAND + i * 8, 8))
    def F(i): return (LDSCH[REF[i][0]], REF[i][1], v(LAND + (i % 6) * 8, 8))
    def R(c, T): return (c, T, v(WQK + ((c - 2) * 4 + T) * 8, 8))
    order = [U(0), U(1), U(2), U(3), U(4), U(5), R(2, 0), R(2, 1), F(0), R(3, 0), F(1), R(3, 1), F(2), R(4, 0), R(4, 1), F(3),
             R(5, 0), R(5, 1), F(4), R(2, 2), F(5), R(2, 3), F(6), R(3, 2), F(7), R(3, 3), F(8), R(4, 2), F(9), R(5, 2), R(4, 3), R(5, 3)]
    def refill(j, half):
        def rf(): rd_w(REF[j], j % 6, half)
        return rf
    def rd_m_late():
        if DGx:
            p.wait(vm=len(p.vm))
            rd_m(6)
        else: rd_m(3)
    fill = [refill(0, 0), refill(0, 1), rd_m_late, refill(1, 0), refill(1, 1), lambda: rd_m(7),
            refill(2, 0), refill(2, 1), lambda: rd_m(4), refill(3, 0), refill(3, 1), lambda: rd_m(5)]
    for j in range(4, 10): fill += [refill(j, 0), refill(j, 1)]
    def fold_add(T): p('v_pk_add_f32 %s, %s, %s' % (v(AQK + 4 * T, 2), v(AQK + 4 * T, 2), v(AQK + 4 * T + 2, 2)))
    def fold_cvt(T): p('v_cvt_pk_bf16_f32 %s, %s, %s' % (v(AQK + 4 * T), v(AQK + 4 * T), v(AQK + 4 * T + 1)))
    def fold_wr(T):
        if T < 2: p('ds_write_b32 %s, %s offset:%d' % (v(vQwr), v(AQK + 4 * T), T * 256))
        else: p('ds_write2_b32 %s, %s, %s offset0:%d offset1:%d' % (v(vKwr), v(AQK + 4 * T), v(AQK + 4 * T), (T - 2) * 128, (T - 2) * 128 + 1))
    XFr = [LAND + 32, LAND + 40, LAND + 0, LAND + 8]
    QR = LAND + 16
    KR = LAND + 24
    def rd_x(ks, jt): p('ds_read_b128 %s, %s offset:%d' % (v(XFr[ks] + 4 * jt, 4), v(vL16), KX_L + jt * 4096 + ks * 1024))
    fill += [lambda: rd_x(0, 0), lambda: rd_x(0, 1), lambda: rd_x(1, 0), lambda: rd_x(1, 1),
             lambda: fold_add(0), lambda: fold_add(1), lambda: fold_cvt(0), lambda: fold_cvt(1)]
    for n, (c, T, B) in enumerate(order):
        smf(p, AQK + 4 * T, MF + 4 * c, B, vIdxQ)
        if n < len(fill): fill[n]()
    stamp(p, 6, stamps)
    lstamp(p, 2, stamps)
    vq = [(c, t) for c in range(8) for t in range(2)]
    def vs(k=1):
        for _ in range(k):
            if vq and 'nov' in opt: vq.pop(0)
            elif vq:
                c, t = vq.pop(0)
                smf(p, AV + 4 * t, MF + 4 * c, a((c * 2 + t) * 8, 8), vIdxQ)
    fold_wr(0); fold_wr(1)
    p('buffer_store_dword %s, %s, s[4:7], %s offen%s' % (v(vFlag), v(vFlagOff), s(sFlagOff), SC))
    fold_add(2); fold_cvt(2); fold_wr(2)
    fold_add(3); fold_cvt(3); fold_wr(3)
    def small_vmem():
        if 'poisA' not in opt and 'poisB' not in opt: p('buffer_store_dword %s, %s, s[4:7], %s offen' % (v(vNeg1), v(vMst), s(sMpo)))
        if 'samekv' in opt: pass
        elif 'notouch' not in opt: p('buffer_load_dword %s, %s, s[4:7], %s offen' % (v(vDummy), v(vTouch), s(sKXn)))
        if 'kvflags' in opt: p('buffer_load_dword %s, off, s[4:7], %s sc1' % (v(vKVf), s(sKVoff)))
    if 'smallS' not in opt: small_vmem()
    vs(optint(opt, 'v3', 3))
    lstamp(p, 3, stamps)
    p.wait(lgkm=0)
    stamp(p, 1, stamps)
    p('s_barrier')
    lstamp(p, 4, stamps)
    SA = AQK
    def rd_q(ks):
        for hh in range(2): p('ds_read_b64_tr_b16 %s, %s offset:%d' % (v(QR + 4 * (ks & 1) + 2 * hh, 2), v(vQtr), ks * 512 + hh * 256))
    def rd_k(ks):
        for hh in range(2): p('ds_read_b64_tr_b16 %s, %s offset:%d' % (v(KR + 4 * (ks & 1) + 2 * hh, 2), v(vKtr), ks * 1024 + hh * 512))
    Q3 = [QR, QR + 4, AQK + 12, QR]
    K3 = [KR, KR + 4, KR, KR + 4]
    def rq(ks, hh): p('ds_read_b64_tr_b16 %s, %s offset:%d' % (v(Q3[ks] + 2 * hh, 2), v(vQtr), ks * 512 + hh * 256))
    def rk(ks, hh): p('ds_read_b64_tr_b16 %s, %s offset:%d' % (v(K3[ks] + 2 * hh, 2), v(vKtr), ks * 1024 + hh * 512))
    rq(0, 0); rq(0, 1); rk(0, 0); rk(0, 1); rq(1, 0); rq(1, 1); rk(1, 0); rk(1, 1); rq(2, 0); rq(2, 1)
    vs(optint(opt, 'v4', 2))
    VXF = LAND + 32
    def mx_(ks, jt): p('v_mfma_f32_16x16x32_bf16 %s, %s, %s, %s' % (v(SA + 4 * jt, 4), v(XFr[ks] + 4 * jt, 4), v(Q3[ks], 4), '0' if ks == 0 else v(SA + 4 * jt, 4)))
    def mm_(ks): p('v_mfma_f32_16x16x32_bf16 %s, %s, %s, %s' % (v(SA + 8, 4), v(K3[ks], 4), v(Q3[ks], 4), '0' if ks == 0 else v(SA + 8, 4)))
    rd_x(2, 0)
    mx_(0, 0); rd_x(2, 1)
    mx_(0, 1); rd_x(3, 0)
    mm_(0); rd_x(3, 1)
    mx_(1, 0); rk(2, 0); rk(2, 1)
    mx_(1, 1)
    rq(3, 0); rq(3, 1)
    mm_(1); rk(3, 0); rk(3, 1)
    mx_(2, 0)
    if 'smallS' in opt: small_vmem()
    mx_(2, 1)
    p.wait(vm=len(p.vm) - 2 - (0 if 'smallS' not in opt else 0))
    mm_(2)
    for t in range(2): p('ds_read_b128 %s, %s offset:%d' % (v(VXF + 4 * t, 4), v(vVX), t * 1024))
    mx_(3, 0); mx_(3, 1); mm_(3)
    stamp(p, 7, stamps)
    lstamp(p, 5, stamps)
    vs(2)
    X = SA
    mx = vT0
    WA = MF
    p('v_max3_f32 %s, %s, %s, %s' % (v(mx), v(X), v(X + 1), v(X + 2)))
    p('v_max3_f32 %s, %s, %s, %s' % (v(vT1), v(X + 3), v(X + 4), v(X + 5)))
    p('v_max3_f32 %s, %s, %s, %s' % (v(mx), v(mx), v(X + 6), v(X + 7)))
    p('v_max3_f32 %s, %s, %s, %s' % (v(vT1), v(vT1), v(X + 8), v(X + 9)))
    p('v_max_f32 %s, %s, %s' % (v(mx), v(mx), v(vT1)))
    p('v_mov_b32 %s, %s' % (v(vT1), v(mx)))
    vs(1)
    p('v_permlane16_swap_b32 %s, %s' % (v(vT1), v(mx)))
    p('v_max_f32 %s, %s, %s' % (v(mx), v(mx), v(vT1)))
    p('v_mov_b32 %s, %s' % (v(vT1), v(mx)))
    vs(1)
    p('v_permlane32_swap_b32 %s, %s' % (v(vT1), v(mx)))
    p('v_max_f32 %s, %s, %s' % (v(mx), v(mx), v(vT1)))
    p('v_mul_f32 %s, %s, %s' % (v(mx), s(sScale), v(mx)))
    for r in range(0, 10, 2):
        p('v_pk_fma_f32 %s, %s, %s, %s op_sel_hi:[1,0,0] neg_lo:[0,0,1] neg_hi:[0,0,1]' % (v(X + r, 2), v(X + r, 2), s(sScale2, 2), v(mx, 2)))
    vs(len(vq))
    lstamp(p, 6, stamps)
    PX = LAND + 16
    PM = LAND + 20
    for r in range(0, 8): p('v_exp_f32 %s, %s' % (v(X + r), v(X + r)))
    for r in range(4): p('v_cvt_pk_bf16_f32 %s, %s, %s' % (v(PX + r), v(X + 2 * r), v(X + 2 * r + 1)))
    OA = LAND + 0
    p('v_mfma_f32_16x16x32_bf16 %s, %s, %s, 0' % (v(OA, 4), v(VXF, 4), v(PX, 4)))
    p('v_exp_f32 %s, %s' % (v(X + 8), v(X + 8)))
    p('v_mfma_f32_16x16x32_bf16 %s, %s, %s, 0' % (v(OA + 4, 4), v(VXF + 4, 4), v(PX, 4)))
    p('v_exp_f32 %s, %s' % (v(X + 9), v(X + 9)))
    for t in range(2):
        p('v_cvt_pk_bf16_f32 %s, %s, %s' % (v(VA + 2 * t), v(AV + 4 * t), v(AV + 4 * t + 1)))
        p('v_cvt_pk_bf16_f32 %s, %s, %s' % (v(VA + 2 * t + 1), v(AV + 4 * t + 2), v(AV + 4 * t + 3)))
    p('v_cvt_pk_bf16_f32 %s, %s, %s' % (v(PM), v(X + 8), v(X + 9)))
    p('v_cvt_pk_bf16_f32 %s, %s, %s' % (v(PM + 1), v(X + 8), v(X + 9)))
    stamp(p, 8, stamps)
    lstamp(p, 7, stamps)
    p('v_pk_add_f32 %s, %s, %s' % (v(X, 2), v(X, 2), v(X + 2, 2)))
    p('v_pk_add_f32 %s, %s, %s' % (v(X + 4, 2), v(X + 4, 2), v(X + 6, 2)))
    p('v_mfma_f32_16x16x16_bf16 %s, %s, %s, %s' % (v(OA, 4), v(VA, 2), v(PM, 2), v(OA, 4)))
    p('v_pk_add_f32 %s, %s, %s' % (v(X, 2), v(X, 2), v(X + 8, 2)))
    p('v_pk_add_f32 %s, %s, %s' % (v(X, 2), v(X, 2), v(X + 4, 2)))
    p('v_mfma_f32_16x16x16_bf16 %s, %s, %s, %s' % (v(OA + 4, 4), v(VA + 2, 2), v(PM, 2), v(OA + 4, 4)))
    p('v_add_f32 %s, %s, %s' % (v(X), v(X), v(X + 1)))
    p('v_mov_b32 %s, %s' % (v(X + 1), v(X)))
    p('v_mov_b64 %s, 0' % v(WA + 0, 2)); p('v_mov_b64 %s, 0' % v(WA + 2, 2))
    p('v_permlane16_swap_b32 %s, %s' % (v(X + 1), v(X)))
    p('v_add_f32 %s, %s, %s' % (v(X), v(X), v(X + 1)))
    p('v_mov_b32 %s, %s' % (v(X + 1), v(X)))
    p('v_mov_b64 %s, 0' % v(WA + 4, 2)); p('v_mov_b64 %s, 0' % v(WA + 6, 2))
    p('v_permlane32_swap_b32 %s, %s' % (v(X + 1), v(X)))
    p('v_add_f32 %s, %s, %s' % (v(X), v(X), v(X + 1)))
    p('v_rcp_f32 %s, %s' % (v(vT0), v(X)))
    p('v_mov_b64 %s, 0' % v(WA + 8, 2))
    OF = LAND + 32
    for t in range(2):
        for hh in range(2):
            p('v_pk_mul_f32 %s, %s, %s op_sel_hi:[1,0]' % (v(OA + 4 * t + 2 * hh, 2), v(OA + 4 * t + 2 * hh, 2), v(vT0, 2)))
    for t in range(2):
        for hh in range(2):
            p('v_cvt_pk_bf16_f32 %s, %s, %s' % (v(OF + 2 * t + hh), v(OA + 4 * t + 2 * hh), v(OA + 4 * t + 2 * hh + 1)))
    p('ds_write_b128 %s, %s' % (v(vVX), v(OF, 4)))
    lstamp(p, 8, stamps)
    XA = LAND + 8
    p('v_mov_b64 %s, 0' % v(WA + 10, 2)); p('v_mov_b64 %s, 0' % v(WA + 12, 2)); p('v_mov_b64 %s, 0' % v(WA + 14, 2))
    smf(p, WA + 0, OF, a(128 + 0 * 32, 8), vIdxO)
    p('v_xor_b32 %s, 0x800, %s' % (v(XA), v(vVX)))
    smf(p, WA + 4, OF, a(128 + 1 * 32, 8), vIdxO)
    p('v_xor_b32 %s, 0x1000, %s' % (v(XA + 1), v(vVX)))
    smf(p, WA + 8, OF, a(128 + 2 * 32, 8), vIdxO)
    p('v_xor_b32 %s, 0x1800, %s' % (v(XA + 2), v(vVX)))
    p('v_add_u32 %s, %s, %s' % (v(XA + 3), s(sW10), v(vKtr)))
    p('s_cmp_eq_u32 %s, %d' % (s(sStep), nsteps - 1))
    p.wait(lgkm=0)
    stamp(p, 2, stamps)
    p('s_barrier')
    lstamp(p, 9, stamps)
    for j in range(1, 4): p('ds_read_b128 %s, %s' % (v(OF + 4 * j, 4), v(XA + j - 1)))
    for hh in range(2): p('ds_read_b64_tr_b16 %s, %s offset:%d' % (v(PUB + 2 * hh, 2), v(XA + 3), hh * 512))
    p('s_cbranch_scc1 L_DONE')
    smf(p, WA + 12, OF, a(128 + 3 * 32, 8), vIdxO)
    def kxdma():
        if 'samekv' not in opt: p('s_add_u32 %s, %s, %d' % (s(sKX), s(sKX), 32 * 8192))
        p('s_mov_b32 m0, %s' % s(sM0kx))
        if 'samekv' not in opt: p('s_add_u32 %s, %s, %d' % (s(sVX), s(sVX), 32 * 8192))
        if 'nokxdma' not in opt:
            p('buffer_load_dwordx4 %s, s[4:7], %s offen lds' % (v(vL16), s(sKX)))
            p('buffer_load_dwordx4 %s, s[4:7], %s offen offset:1024 lds' % (v(vL16), s(sKX)))
    if 'kxlate' not in opt: kxdma()
    E = LAND + 16
    def pack(P, k):
        q = 2 * P + (k >> 1); hh = k & 1
        p('v_cvt_pk_bf16_f32 %s, %s, %s' % (v(E + 4 * P + k), v(WA + 4 * q + 2 * hh), v(WA + 4 * q + 2 * hh + 1)))
    for j in range(1, 4):
        for q in (0, 1): smf(p, WA + 4 * q, OF + 4 * j, a(128 + (q * 4 + j) * 8, 8), vIdxO)
    pend = [lambda k=k: pack(0, k) for k in range(4)]
    pend += [lambda: p('v_bfi_b32 %s, 1, %s, %s' % (v(E), s(sTag), v(E))),
             lambda: p('buffer_store_dwordx4 %s, %s, s[4:7], %s offen' % (v(E, 4), v(vPst), s(sPst)))]
    seq = [(q, j) for j in range(1, 4) for q in (2, 3)]
    for n, (q, j) in enumerate(seq):
        smf(p, WA + 4 * q, OF + 4 * j, a(128 + (q * 4 + j) * 8, 8), vIdxO)
        if n >= 3: pend.pop(0)()
    while pend: pend.pop(0)()
    for k in range(4): pack(1, k)
    p('v_bfi_b32 %s, 1, %s, %s' % (v(E + 4), s(sTag), v(E + 4)))
    p('buffer_store_dwordx4 %s, %s, s[4:7], %s offen' % (v(E + 4, 4), v(vPst), s(sPst + 1)))
    stamp(p, 3, stamps)
    lstamp(p, 10, stamps)
    PR = MF
    SEL = MF + 8
    RA = MF + 12
    def gen_sel():
        p('v_bfe_u32 %s, %s, 4, 4' % (t0, v(vL16)))
        p('v_and_b32 %s, 16, %s' % (t1, v(vL16)))
        p('v_mov_b32 %s, 0x3f80' % t2)
        p('v_lshlrev_b32 %s, %s, %s' % (t2, t1, t2))
        p('v_lshrrev_b32 %s, 1, %s' % (t0, t0))
        for q in range(4):
            p('v_cmp_eq_u32 %s, %d, %s' % (s(sMaskA + 2 * (q & 1), 2), q, t0))
            p('v_mov_b32 %s, 0' % v(SEL + q))
            if q & 1:
                p('v_cndmask_b32 %s, %s, %s, %s' % (v(SEL + q - 1), v(SEL + q - 1), t2, s(sMaskA, 2)))
                p('v_cndmask_b32 %s, %s, %s, %s' % (v(SEL + q), v(SEL + q), t2, s(sMaskA + 2, 2)))
    if 'kxlate' in opt: kxdma()
    gen_sel()
    if 'landlate' not in opt:
        for u in range(6):
            rd_w(PRE[u], u, 0); rd_w(PRE[u], u, 1)
    delay(p, optint(opt, 'd1', 0))
    lstamp(p, 11, stamps)
    PB = MF + 24
    DP = optint(opt, 'dp', 0)
    def ppoll(R):
        for k in range(2):
            p('buffer_load_dwordx4 %s, %s, s[4:7], %s offen offset:%d sc1' % (v(R + 4 * k, 4), v(vPld), s(sPld), k * 2048))
    def pcheck(R, fail):
        p('v_mfma_f32_16x16x32_bf16 %s, %s, %s, 0' % (v(RA, 4), v(R, 4), v(SEL, 4)))
        p('v_bitop3_b32 %s, -1, %s, %s bitop3:0x90' % (t0, v(R), s(sTag)))
        p('v_bitop3_b32 %s, %s, %s, %s bitop3:0x90' % (t0, t0, v(R + 4), s(sTag)))
        p('v_mfma_f32_16x16x32_bf16 %s, %s, %s, %s' % (v(RA, 4), v(R + 4, 4), v(SEL, 4), v(RA, 4)))
        p('v_and_b32 %s, 1, %s' % (t0, t0))
        p('v_cmp_eq_u32 vcc, 0, %s' % t0)
        p('s_cbranch_vccnz %s' % fail)
    ppoll(PR)
    if 'landlate' in opt:
        for u in range(6):
            rd_w(PRE[u], u, 0); rd_w(PRE[u], u, 1)
    if 'kvflags' in opt:
        p('v_readfirstlane_b32 %s, %s' % (s(sTmp), v(vKVf)))
        p('s_cmp_ge_u32 %s, %s' % (s(sTmp), s(sKVneed)))
        p('s_cbranch_scc0 L_KVWAIT')
        p.label('L_KVOK')
        p('s_add_u32 %s, %s, 3' % (s(sTmp), s(sStep)))
        p('s_lshr_b32 %s, %s, 2' % (s(sKVneed), s(sTmp)))
        p('s_add_u32 %s, %s, 1' % (s(sKVneed), s(sKVneed)))
        p('s_cmp_lt_u32 %s, 64' % s(sTmp))
        p('s_cselect_b32 %s, %s, 0' % (s(sKVneed), s(sKVneed)))
        p('s_and_b32 %s, %s, 3' % (s(sTmp), s(sTmp)))
        p('s_lshl_b32 %s, %s, 7' % (s(sTmp), s(sTmp)))
        p('s_add_u32 %s, %s, %s' % (s(sKVoff), s(sKVbase), s(sTmp)))
    p('s_mov_b32 %s, %s' % (s(sFlagVal), s(sStep)))
    p('s_add_u32 %s, %s, 1' % (s(sStep), s(sStep)))
    p('s_lshr_b32 %s, %s, 1' % (s(sTmp), s(sStep)))
    p('s_and_b32 %s, %s, 1' % (s(sTmp), s(sTmp)))
    p('s_xor_b32 %s, %s, 1' % (s(sTagN), s(sTmp)))
    for P in range(2): p('s_xor_b32 %s, %s, 0x40000' % (s(sPst + P), s(sPst + P)))
    p('s_mov_b32 %s, %s' % (s(sTmp), s(sMrd)))
    p('s_mov_b32 %s, %s' % (s(sMrd), s(sMwr)))
    p('s_mov_b32 %s, %s' % (s(sMwrOld), s(sMwr)))
    p('s_mov_b32 %s, %s' % (s(sMwr), s(sMpo)))
    p('s_mov_b32 %s, %s' % (s(sMpo), s(sTmp)))
    p('s_add_u32 %s, %s, %d' % (s(sKXn), s(sKXn), 32 * 8192))
    p('s_add_u32 %s, %s, %d' % (s(sKM), s(sKM), 32 * 4096))
    p('s_add_u32 %s, %s, %d' % (s(sVM), s(sVM), 32 * 4096))
    p('s_mov_b32 %s, 0' % s(sCnt))
    if DP:
        delay(p, max(DP - 130, 0))
        ppoll(PB)
        p.wait(vm=2)
        pcheck(PR, 'L_PFAILA')
    else:
        p.label('L_PCHECK')
        p.wait(vm=0)
        pcheck(PR, 'L_PFAIL')
    p.label('L_POK')
    stamp(p, 11, stamps)
    lstamp(p, 12, stamps)
    if 'poisA' in opt: p('buffer_store_dword %s, %s, s[4:7], %s offen' % (v(vNeg1), v(vMst), s(sMwr)))
    p('s_mov_b32 %s, %s' % (s(sTag), s(sTagN)))
    p('s_xor_b32 %s, %s, 0x40000' % (s(sPld), s(sPld)))
    p('v_permlane32_swap_b32 %s, %s' % (v(RA), v(RA + 1)))
    p('v_permlane32_swap_b32 %s, %s' % (v(RA + 2), v(RA + 3)))
    p('v_add_f32 %s, %s, %s' % (v(RA), v(RA), v(RA + 1)))
    p('v_add_f32 %s, %s, %s' % (v(RA + 2), v(RA + 2), v(RA + 3)))
    p('v_permlane16_swap_b32 %s, %s' % (v(RA), v(RA + 2)))
    p('v_add_f32 %s, %s, %s' % (v(RA), v(RA), v(RA + 2)))
    p('v_mov_b32 %s, %s' % (v(RA + 1), v(RA)))
    p('v_permlane32_swap_b32 %s, %s' % (v(RA), v(RA + 1)))
    p('v_cvt_pk_bf16_f32 %s, %s, %s' % (v(RA), v(RA), v(RA + 1)))
    p('v_min_u32 %s, 0xfffffffe, %s' % (v(RA), v(RA)))
    p('buffer_store_dword %s, %s, s[4:7], %s offen' % (v(RA), v(vMst), s(sMwrOld)))
    if 'poisB' in opt: p('buffer_store_dword %s, %s, s[4:7], %s offen' % (v(vNeg1), v(vMst), s(sMwr)))
    stamp(p, 4, stamps)
    lstamp(p, 13, stamps)
    delay(p, optint(opt, 'd2', 0))
    p('s_branch L_STEP')
    if 'kvflags' in opt:
        p.label('L_KVWAIT')
        p('s_add_u32 %s, %s, 1' % (s(sCnt), s(sCnt)))
        p('s_cmp_gt_u32 %s, %d' % (s(sCnt), SPIN_MAX * 4))
        p('s_cbranch_scc1 L_BAIL')
        p.raw('    buffer_load_dword %s, off, s[4:7], %s sc1' % (v(vKVf), s(sKVoff)))
        p.raw('    s_waitcnt vmcnt(0)')
        p.raw('    s_nop 0')
        p.raw('    v_readfirstlane_b32 %s, %s' % (s(sTmp), v(vKVf)))
        p.raw('    s_nop 1')
        p('s_cmp_ge_u32 %s, %s' % (s(sTmp), s(sKVneed)))
        p('s_cbranch_scc0 L_KVWAIT')
        p('s_mov_b32 %s, 0' % s(sCnt))
        p('s_branch L_KVOK')
    def countfail(inc):
        p('s_add_u32 %s, %s, 1' % (s(sCnt), s(sCnt)))
        p('s_add_u32 %s, %s, 0x%x' % (s(sNfail), s(sNfail), inc))
        p('s_cmp_lt_u32 %s, %d' % (s(sCnt), SPIN_MAX))
        p('s_cbranch_scc0 L_BAIL')
    if DG:
        p.label('L_GFAILA')
        p.forget()
        p('s_add_u32 %s, %s, 1' % (s(sNfail), s(sNfail)))
        p.label('L_GCHECKB')
        p.wait(vm=0)
        gcheck(GB, 'L_GFAILB')
        p('s_branch L_GOK')
        p.label('L_GFAILB')
        countfail(1)
        p('s_mov_b64 exec, vcc')
        gpoll(GB)
        p('s_mov_b64 exec, -1')
        p('s_branch L_GCHECKB')
    else:
        p.label('L_GFAIL')
        p.forget()
        countfail(1)
        p('s_mov_b64 exec, vcc')
        gpoll(G)
        p('s_mov_b64 exec, -1')
        p('s_branch L_GCHECK')
    if DP:
        p.label('L_PFAILA')
        p.forget()
        p('s_add_u32 %s, %s, 0x10000' % (s(sNfail), s(sNfail)))
        p.label('L_PCHECKB')
        p.wait(vm=0)
        p('s_nop 7')
        pcheck(PB, 'L_PFAILB')
        p('s_nop 3')
        p('s_branch L_POK')
        p.label('L_PFAILB')
        countfail(0x10000)
        p('s_mov_b64 exec, vcc')
        ppoll(PB)
        p('s_mov_b64 exec, -1')
        p('s_branch L_PCHECKB')
    else:
        p.label('L_PFAIL')
        p.forget()
        countfail(0x10000)
        p('s_mov_b64 exec, vcc')
        ppoll(PR)
        p('s_mov_b64 exec, -1')
        p('s_branch L_PCHECK')
```

```python
from common import *
RS = 1088
def ln1_segment(p, sSeg, tag, SRDX=8, sc=' sc1'):
    ln1_load(p, sSeg, 0, SRDX)
    ln1_compute(p, sSeg, 0, 0, sc)
def ln1_load(p, sSeg, buf, SRDX=8):
    sT, sM = 20, 21
    p('v_lshlrev_b32 v1, 4, v0')
    p('s_lshl_b32 s%d, %s, 5' % (sT, s(sSeg)))
    p('s_lshl_b32 s%d, s3, 3' % sM)
    p('s_add_u32 s%d, s%d, s%d' % (sT, sT, sM))
    p('s_lshl_b32 s%d, s%d, 10' % (sT, sT))
    p('s_mul_i32 s%d, s%d, %d' % (sM, sM, RS))
    if buf: p('s_add_u32 s%d, s%d, %d' % (sM, sM, buf * 32 * RS))
    for r in range(8):
        p('s_mov_b32 m0, s%d' % sM)
        p('s_add_u32 s%d, s%d, %d' % (sM, sM, RS))
        p('buffer_load_dwordx4 v1, s[%d:%d], s%d offen lds' % (SRDX, SRDX + 3, sT))
        p('s_add_u32 s%d, s%d, 1024' % (sT, sT))
def ln1_compute(p, sSeg, buf, nvm_after, sc=' sc1'):
    sT, sM = 20, 21
    p('v_and_b32 v2, 7, v0')
    p('s_lshl_b32 s%d, s3, 3' % sM)
    p('v_add_u32 v2, s%d, v2' % sM)
    p('v_mul_u32_u24 v3, %d, v2' % RS)
    p('v_lshrrev_b32 v4, 3, v0')
    p('v_lshl_add_u32 v3, v4, 4, v3')
    if buf: p('v_add_u32 v3, %d, v3' % (buf * 32 * RS))
    p.wait(vm=nvm_after)
    X = 8
    for j in range(8): p('ds_read_b128 %s, v3 offset:%d' % (v(X + 4 * j, 4), 128 * j))
    F = 48
    for j in range(32):
        p('v_lshlrev_b32 %s, 16, %s' % (v(F + 2 * j), v(X + j)))
        p('v_and_b32 %s, 0xffff0000, %s' % (v(F + 2 * j + 1), v(X + j)))
    p('v_pk_add_f32 v[6:7], %s, %s' % (v(F, 2), v(F + 2, 2)))
    for j in range(2, 32): p('v_pk_add_f32 v[6:7], v[6:7], %s' % v(F + 2 * j, 2))
    p('v_add_f32 v6, v6, v7')
    def red8(r):
        p('v_add_f32_dpp %s, %s, %s row_ror:8 row_mask:0xf bank_mask:0xf' % (v(r), v(r), v(r)))
        p('v_mov_b32 v5, %s' % v(r))
        p('v_permlane16_swap_b32 v5, %s' % v(r))
        p('v_add_f32 %s, %s, v5' % (v(r), v(r)))
        p('v_mov_b32 v5, %s' % v(r))
        p('v_permlane32_swap_b32 v5, %s' % v(r))
        p('v_add_f32 %s, %s, v5' % (v(r), v(r)))
    red8(6)
    p('v_mul_f32 v6, 0x3b000000, v6')
    for j in range(32): p('v_pk_add_f32 %s, %s, v[6:7] op_sel_hi:[1,0] neg_lo:[0,1] neg_hi:[0,1]' % (v(F + 2 * j, 2), v(F + 2 * j, 2)))
    p('v_pk_mul_f32 v[6:7], %s, %s' % (v(F, 2), v(F, 2)))
    for j in range(1, 32): p('v_pk_fma_f32 v[6:7], %s, %s, v[6:7]' % (v(F + 2 * j, 2), v(F + 2 * j, 2)))
    p('v_add_f32 v6, v6, v7')
    red8(6)
    p('v_mov_b32 v7, 0x3727c5ac')
    p('v_fmac_f32 v7, 0x3b000000, v6')
    p('v_rsq_f32 v6, v7')
    for j in range(32): p('v_pk_mul_f32 %s, %s, v[6:7] op_sel_hi:[1,0]' % (v(F + 2 * j, 2), v(F + 2 * j, 2)))
    for j in range(32): p('v_cvt_pk_bf16_f32 %s, %s, %s' % (v(X + j), v(F + 2 * j), v(F + 2 * j + 1)))
    p('v_lshrrev_b32 v5, 1, v4')
    p('v_lshlrev_b32 v5, 10, v5')
    p('v_and_b32 v4, 1, v4')
    p('v_lshl_add_u32 v5, v4, 9, v5')
    p('v_lshl_add_u32 v5, v2, 4, v5')
    p('s_lshl_b32 s%d, %s, 15' % (sT, s(sSeg)))
    p('s_add_u32 s%d, s%d, 0x%x' % (sT, sT, WS_XN))
    for j in range(8):
        p('buffer_store_dwordx4 %s, v5, s[4:7], s%d offen%s' % (v(X + 4 * j, 4), sT, sc))
        if j < 7: p('s_add_u32 s%d, s%d, 4096' % (sT, sT))
```

```python
from common import *
sX, sC, sSeg, sN = 12, 13, 14, 15
sT, sT2, sT3, sM = 20, 21, 22, 23
sBase = 16
sScale2 = 18
sCnt = 24
sMask = 64
SPIN = 400000
OX_L = 0
HM_L = 8192
ST_L = 12288
ROW_L = 12800
TR_L = 16384
TR_RS = 272
HN_L = 65536
vL16, vSelA, vTRw, vTRr, vIn, vOut, vRow, vFlagLd, vFlagSt, vHNst, vOXw, vHMw, vOrow = 1, 2, 3, 4, 5, 6, 7, 8, 9, 10, 11, 12, 13
vIn2 = 14
t0r, t1r, t2r, t3r = 16, 17, 18, 19
SEL = 20
H = 24
W0 = 32
WD = 192

def p2_load_weights(p):
    L = 'v0'
    p('s_load_dwordx2 s[48:49], s[0:1], %d' % KA_WO)
    p('s_load_dwordx4 s[52:55], s[0:1], %d' % KA_WG)
    p('s_load_dwordx2 s[56:57], s[0:1], %d' % KA_WD)
    p('v_lshlrev_b32 v%d, 4, v0' % vL16)
    vE = [32, 33, 34, 35]
    vG = 36
    vA = [40, 41, 42, 43]
    vB = 44
    for q in range(4):
        p('v_xor_b32 v%d, %d, v0' % (t0r, 4 * q))
        p('v_lshlrev_b32 v%d, 4, v%d' % (vE[q], t0r))
    p('v_lshrrev_b32 v%d, 3, v0' % t0r)
    p('v_mul_u32_u24 v%d, 2752, v%d' % (t0r, t0r))
    p('v_and_b32 v%d, 7, v0' % t1r)
    p('v_lshl_add_u32 v%d, v%d, 4, v%d' % (vG, t1r, t0r))
    for G in range(4):
        p('v_lshrrev_b32 v%d, 2, v0' % t0r)
        p('v_lshlrev_b32 v%d, 10, v%d' % (vA[G], t0r))
        p('v_bfe_u32 v%d, v0, 2, 2' % t0r)
        p('v_xor_b32 v%d, %d, v%d' % (t0r, G, t0r))
        p('v_lshlrev_b32 v%d, 2, v%d' % (t0r, t0r))
        p('v_and_b32 v%d, 3, v0' % t1r)
        p('v_add_u32 v%d, v%d, v%d' % (t0r, t0r, t1r))
        p('s_lshl_b32 s%d, s3, 4' % sT)
        p('v_add_u32 v%d, s%d, v%d' % (t0r, sT, t0r))
        p('v_lshl_add_u32 v%d, v%d, 4, v%d' % (vA[G], t0r, vA[G]))
    p('v_lshrrev_b32 v%d, 4, v0' % t0r)
    p('v_lshlrev_b32 v%d, 3, v%d' % (t0r, t0r))
    p('v_bfe_u32 v%d, v0, 2, 2' % t1r)
    p('v_add_u32 v%d, v%d, v%d' % (t0r, t0r, t1r))
    p('v_lshlrev_b32 v%d, 7, v%d' % (t0r, t0r))
    p('v_and_b32 v%d, 3, v0' % t1r)
    p('v_lshl_add_u32 v%d, v%d, 3, v%d' % (t0r, t1r, t0r))
    p('s_lshl_b32 s%d, s3, 5' % sT)
    p('v_add_u32 v%d, s%d, v%d' % (vB, sT, t0r))
    p('s_waitcnt lgkmcnt(0)')
    p('s_mov_b32 s50, 0x400000'); p('s_mov_b32 s51, 0x20000')
    p('s_mov_b32 s60, s52'); p('s_mov_b32 s61, s53'); p('s_mov_b32 s62, %d' % (512 * 1376 * 2)); p('s_mov_b32 s63, 0x20000')
    p('s_mov_b32 s52, s54'); p('s_mov_b32 s53, s55'); p('s_mov_b32 s54, %d' % (512 * 1376 * 2)); p('s_mov_b32 s55, 0x20000')
    p('s_mov_b32 s58, %d' % (1376 * 512 * 2)); p('s_mov_b32 s59, 0x20000')
    p('s_cmp_lt_u32 s3, 2')
    p('s_cselect_b32 s44, s60, s52'); p('s_cselect_b32 s45, s61, s53')
    p('s_mov_b32 s46, %d' % (512 * 1376 * 2)); p('s_mov_b32 s47, 0x20000')
    NP, RING = 10, 5
    def issue(n):
        base = (n % RING) * 32768
        p('s_lshl_b32 s%d, s3, 13' % sM)
        p('s_add_u32 s%d, s%d, %d' % (sM, sM, base))
        if n < 6:
            if n < 4:
                p('s_lshl_b32 s%d, s%d, 7' % (sT, sC)); off = 32 * n; srd = 48
            else:
                p('s_lshl_b32 s%d, s%d, 6' % (sT, sC)); off = 32 * (n - 4); srd = 56
            p('s_lshl_b32 s%d, s3, 3' % sT2)
            p('s_add_u32 s%d, s%d, s%d' % (sT, sT, sT2))
            p('s_add_u32 s%d, s%d, %d' % (sT, sT, off))
            p('s_lshl_b32 s%d, s%d, 10' % (sT, sT))
            for k in range(8):
                p('s_mov_b32 m0, s%d' % sM)
                p('s_add_u32 s%d, s%d, 1024' % (sM, sM))
                p('buffer_load_dwordx4 v%d, s[%d:%d], s%d offen lds' % (vE[k & 3], srd, srd + 3, sT))
                p('s_add_u32 s%d, s%d, 1024' % (sT, sT))
        else:
            j = n - 6
            p('s_and_b32 s%d, s3, 1' % sT)
            p('s_lshl_b32 s%d, s%d, 6' % (sT, sT))
            p('s_add_u32 s%d, s%d, %d' % (sT, sT, 128 * j))
            p('s_mul_i32 s%d, s%d, 2752' % (sT, sT))
            p('s_lshl_b32 s%d, s%d, 7' % (sT2, sC))
            p('s_add_u32 s%d, s%d, s%d' % (sT, sT, sT2))
            for k in range(8):
                p('s_mov_b32 m0, s%d' % sM)
                p('s_add_u32 s%d, s%d, 1024' % (sM, sM))
                p('buffer_load_dwordx4 v%d, s[44:47], s%d offen lds' % (vG, sT))
                p('s_add_u32 s%d, s%d, %d' % (sT, sT, 8 * 2752))
    def consume(n):
        base = (n % RING) * 32768
        if n < 6:
            for G in range(4): p('v_add_u32 v%d, %d, v%d' % (48 + G, base, vA[G]))
            for G in range(4):
                for T in range(2):
                    for hh in range(2):
                        off = 8 * T + hh * 16384
                        if n < 4: dst = a(((G * 2 + T) * 4 + n) * 4 + 2 * hh, 2)
                        else: dst = v(WD + ((G * 2 + T) * 2 + (n - 4)) * 4 + 2 * hh, 2)
                        p('ds_read_b64_tr_b16 %s, v%d offset:%d' % (dst, 48 + G, off))
        else:
            j = n - 6
            p('v_add_u32 v48, %d, v%d' % (base, vB))
            for kk in range(4):
                ks = 4 * j + kk
                for mat in range(2):
                    for hh in range(2):
                        off = mat * 16384 + (32 * kk + 4 * hh) * 128
                        p('ds_read_b64_tr_b16 %s, v48 offset:%d' % (a(128 + (ks * 2 + mat) * 4 + 2 * hh, 2), off))
    for n in range(RING): issue(n)
    for n in range(NP):
        inflight = min(NP, n + RING) - n - 1
        p.wait(vm=8 * inflight)
        p('s_barrier')
        consume(n)
        p.wait(lgkm=0)
        p('s_barrier')
        if n + RING < NP: issue(n + RING)

def p2_setup(p):
    L = 'v0'; t0, t1, t2 = v(t0r), v(t1r), v(t2r)
    p('s_lshl_b32 s%d, s%d, 22' % (sBase, sX))
    p('s_add_u32 s%d, s%d, 0x%x' % (sBase, sBase, WS_P2))
    p('s_mov_b32 s%d, 0x3e0293ee' % sScale2); p('s_mov_b32 s%d, 0x3e0293ee' % (sScale2 + 1))
    p('v_lshlrev_b32 v%d, 4, v0' % vL16)
    p('v_and_b32 %s, 15, v0' % t0)
    p('v_and_b32 %s, 1, v0' % t1)
    p('v_lshlrev_b32 %s, 4, %s' % (t1, t1))
    p('v_mov_b32 %s, 0x3f80' % t2)
    p('v_lshlrev_b32 %s, %s, %s' % (t2, t1, t2))
    p('v_lshrrev_b32 %s, 1, %s' % (t0, t0))
    for q in range(4):
        p('v_cmp_eq_u32 vcc, %d, %s' % (q, t0))
        p('v_mov_b32 %s, 0' % v(SEL + q))
        p('v_cndmask_b32 %s, %s, %s, vcc' % (v(SEL + q), v(SEL + q), t2))
    p('s_mul_i32 s%d, s3, 8704' % sT)
    p('s_add_u32 s%d, s%d, %d' % (sT, sT, TR_L))
    p('v_and_b32 %s, 15, v0' % t0)
    p('v_mul_u32_u24 %s, %d, %s' % (t0, TR_RS, t0))
    p('v_lshrrev_b32 %s, 4, v0' % t1)
    p('v_lshl_add_u32 %s, %s, 4, %s' % (t0, t1, t0))
    p('v_add_u32 v%d, s%d, %s' % (vTRw, sT, t0))
    p('v_mul_u32_u24 %s, %d, %s' % (t0, TR_RS, t1))
    p('v_and_b32 %s, 15, v0' % t2)
    p('v_lshl_add_u32 %s, %s, 4, %s' % (t0, t2, t0))
    p('v_add_u32 v%d, s%d, %s' % (vTRr, sT, t0))
    p('v_lshlrev_b32 %s, 15, %s' % (t0, t1))
    p('v_lshl_add_u32 %s, %s, 4, %s' % (t0, t2, t0))
    p('s_lshl_b32 s%d, s%d, 10' % (sT, sC))
    p('s_lshl_b32 s%d, s3, 8' % sT2)
    p('s_add_u32 s%d, s%d, s%d' % (sT, sT, sT2))
    p('v_add_u32 v%d, s%d, %s' % (vOut, sT, t0))
    p('v_lshlrev_b32 %s, 10, %s' % (t0, t1))
    p('v_lshl_add_u32 %s, %s, 4, %s' % (t0, t2, t0))
    p('s_lshl_b32 s%d, s%d, 15' % (sT, sC))
    p('s_add_u32 s%d, s%d, s%d' % (sT, sT, sT2))
    p('v_add_u32 v%d, s%d, %s' % (vIn, sT, t0))
    p('v_mov_b32 %s, 0x%x' % (t0, OOB))
    p('v_cmp_gt_u32 vcc, 32, v0')
    p('v_cndmask_b32 v%d, %s, v%d, vcc' % (vIn2, t0, vIn))
    p('v_lshlrev_b32 %s, 4, v0' % t0)
    p('v_add_u32 %s, s%d, %s' % (t0, sT2, t0))
    p('v_mov_b32 %s, 0x%x' % (t1, OOB))
    p('v_cmp_gt_u32 vcc, 16, v0')
    p('v_cndmask_b32 v%d, %s, %s, vcc' % (vOrow, t1, t0))
    p('v_lshrrev_b32 %s, 4, v0' % t0)
    p('v_lshlrev_b32 %s, 6, %s' % (t0, t0))
    p('v_and_b32 %s, 7, v0' % t1)
    p('v_lshl_add_u32 %s, %s, 1, %s' % (t0, t1, t0))
    p('s_add_u32 s%d, s%d, %d' % (sT, sT2, ROW_L))
    p('v_add_u32 %s, s%d, %s' % (t0, sT, t0))
    p('v_mov_b32 %s, %d' % (t1, ST_L + 128))
    p('v_bfe_u32 %s, v0, 3, 1' % t2)
    p('v_cmp_eq_u32 vcc, 0, %s' % t2)
    p('v_cndmask_b32 v%d, %s, %s, vcc' % (vRow, t1, t0))
    p('v_bfe_u32 %s, v0, 2, 2' % t0)
    p('v_lshlrev_b32 %s, 10, %s' % (t0, t0))
    p('v_and_b32 %s, 3, v0' % t1)
    p('v_lshl_add_u32 %s, %s, 8, %s' % (t0, t1, t0))
    p('s_lshl_b32 s%d, s3, 12' % sT)
    p('s_lshr_b32 s%d, s%d, 4' % (sT3, sC))
    p('s_lshl_b32 s%d, s%d, 14' % (sT3, sT3))
    p('s_add_u32 s%d, s%d, s%d' % (sT, sT, sT3))
    p('s_and_b32 s%d, s%d, 15' % (sT3, sC))
    p('s_lshl_b32 s%d, s%d, 4' % (sT3, sT3))
    p('s_add_u32 s%d, s%d, s%d' % (sT, sT, sT3))
    p('v_add_u32 %s, s%d, %s' % (t0, sT, t0))
    p('v_mov_b32 %s, 0x%x' % (t1, OOB))
    p('v_cmp_gt_u32 vcc, 16, v0')
    p('v_cndmask_b32 v%d, %s, %s, vcc' % (vHNst, t1, t0))
    p('s_and_b32 s%d, s3, 1' % sT)
    p('s_lshl_b32 s%d, s%d, 12' % (sT, sT))
    p('s_lshr_b32 s%d, s3, 1' % sT3)
    p('s_lshl_b32 s%d, s%d, 11' % (sT3, sT3))
    p('s_add_u32 s%d, s%d, s%d' % (sT, sT, sT3))
    p('s_add_u32 s%d, s%d, %d' % (sT, sT, OX_L))
    p('v_add_u32 v%d, s%d, v%d' % (vOXw, sT, vL16))
    p('v_lshlrev_b32 %s, 3, v0' % t0)
    p('s_lshl_b32 s%d, s3, 9' % sT)
    p('s_add_u32 s%d, s%d, %d' % (sT, sT, HM_L))
    p('v_add_u32 v%d, s%d, %s' % (vHMw, sT, t0))
    p('v_lshlrev_b32 %s, 2, v0' % t0)
    p('v_mov_b32 %s, 0x%x' % (t1, OOB))
    p('v_cmp_gt_u32 vcc, 32, v0')
    p('v_cndmask_b32 v%d, %s, %s, vcc' % (vFlagLd, t1, t0))
    p('v_or_b32 %s, s3, v0' % t0)
    p('s_lshl_b32 s%d, s%d, 2' % (sT, sC))
    p('v_mov_b32 %s, s%d' % (t2, sT))
    p('v_cmp_eq_u32 vcc, 0, %s' % t0)
    p('v_cndmask_b32 v%d, %s, %s, vcc' % (vFlagSt, t1, t2))
    p('v_and_b32 %s, 15, v0' % t0)
    p('s_and_b32 s%d, s3, 1' % sT)
    p('s_lshl_b32 s%d, s%d, 4' % (sT, sT))
    p('v_add_u32 %s, s%d, %s' % (t0, sT, t0))
    p('v_lshrrev_b32 %s, 4, v0' % t1)
    p('v_lshlrev_b32 %s, 2, %s' % (t1, t1))
    for jt in range(2):
        for r in range(4):
            p('v_add_u32 %s, %d, %s' % (t2, 16 * jt + r, t1))
            p('v_cmp_le_u32 %s, %s, %s' % (s(sMask + 2 * (4 * jt + r), 2), t2, t0))

def rts(p, k): pass

def poll_flags(p, off_sreg, imm, seq_sreg, nlanes, tag):
    p('s_mov_b32 s%d, 0' % sCnt)
    p.label('L_P2POLL' + tag)
    p('buffer_load_dword v%d, v%d, s[4:7], s%d offen offset:%d sc1' % (t0r, vFlagLd, off_sreg, imm))
    p.wait(vm=0)
    p('v_cmp_gt_u32 vcc, s%d, v%d' % (seq_sreg, t0r))
    p('s_and_b32 vcc_hi, vcc_hi, 0')
    if nlanes < 32: p('s_and_b32 vcc_lo, vcc_lo, 0x%x' % ((1 << nlanes) - 1))
    p('s_cbranch_vccz L_P2OK' + tag)
    p('s_add_u32 s%d, s%d, 1' % (sCnt, sCnt))
    p('s_cmp_lt_u32 s%d, %d' % (sCnt, SPIN))
    p('s_cbranch_scc1 L_P2POLL' + tag)
    p('s_branch L_P2BAIL')
    p.label('L_P2OK' + tag)
    p.forget()

def poll_one(p, off_sreg, need_sreg, tag):
    p('s_mov_b32 s%d, 0' % sCnt)
    p('v_mov_b32 v%d, 0' % t1r)
    p.label('L_P2POLL' + tag)
    p('buffer_load_dword v%d, v%d, s[4:7], s%d offen sc1' % (t0r, t1r, off_sreg))
    p.wait(vm=0)
    p('v_readfirstlane_b32 s%d, v%d' % (sT3, t0r))
    p('s_cmp_ge_u32 s%d, s%d' % (sT3, need_sreg))
    p('s_cbranch_scc1 L_P2OK' + tag)
    p('s_add_u32 s%d, s%d, 1' % (sCnt, sCnt))
    p('s_cmp_lt_u32 s%d, %d' % (sCnt, SPIN))
    p('s_cbranch_scc1 L_P2POLL' + tag)
    p('s_branch L_P2BAIL')
    p.label('L_P2OK' + tag)
    p.forget()

def post_flag(p, imm):
    p.wait(vm=0)
    p('s_barrier')
    p('v_mov_b32 v%d, s%d' % (t0r, sN))
    p('s_add_u32 s%d, s%d, %d' % (sT, sBase, P2_FL))
    p('buffer_store_dword v%d, v%d, s[4:7], s%d offen offset:%d' % (t0r, vFlagSt, sT, imm))

def reduce_all(p, r, tmp):
    for k in (1, 2, 4, 8):
        p('v_add_f32_dpp %s, %s, %s row_ror:%d row_mask:0xf bank_mask:0xf' % (v(r), v(r), v(r), k))
    p('v_mov_b32 %s, %s' % (v(tmp), v(r)))
    p('v_permlane16_swap_b32 %s, %s' % (v(tmp), v(r)))
    p('v_add_f32 %s, %s, %s' % (v(r), v(r), v(tmp)))
    p('v_mov_b32 %s, %s' % (v(tmp), v(r)))
    p('v_permlane32_swap_b32 %s, %s' % (v(tmp), v(r)))
    p('v_add_f32 %s, %s, %s' % (v(r), v(r), v(tmp)))

def transposed_store(p, ACC, soff_reg):
    P = ACC
    PKR = W0
    for qt in range(2):
        for G in range(4):
            D = ACC + (qt * 4 + G) * 8
            R = PKR + (qt * 4 + G) * 4
            for T in range(2):
                for hh in range(2):
                    p('v_cvt_pk_bf16_f32 %s, %s, %s' % (v(R + 2 * T + hh), v(D + 4 * T + 2 * hh), v(D + 4 * T + 2 * hh + 1)))
            p('ds_write_b128 v%d, %s offset:%d' % (vTRw, v(R, 4), qt * 16 * TR_RS + G * 64))
    for k in range(8): p('ds_read_b128 %s, v%d offset:%d' % (v(PKR + 4 * k, 4), vTRr, k * 4 * TR_RS))
    for k in range(8):
        p('buffer_store_dwordx4 %s, v%d, s[4:7], s%d offen' % (v(PKR + 4 * k, 4), vOut, soff_reg))
        if k < 7: p('s_add_u32 s%d, s%d, %d' % (soff_reg, soff_reg, 4 * 32768))

def row_out(p, R4, RD):
    for r in range(4):
        p('v_cvt_pk_bf16_f32 %s, %s, %s' % (v(RD + r), v(R4 + r), v(R4 + r)))
        p('ds_write_b16 v%d, %s offset:%d' % (vRow, v(RD + r), 16 * r))
    p('s_lshl_b32 s%d, s3, 8' % sT)
    p('s_add_u32 s%d, s%d, %d' % (sT, sT, ROW_L))
    p('v_and_b32 v%d, 15, v0' % t0r)
    p('v_lshlrev_b32 v%d, 4, v%d' % (t0r, t0r))
    p('v_add_u32 v%d, s%d, v%d' % (t0r, sT, t0r))
    p.wait(lgkm=0)
    p('ds_read_b128 %s, v%d' % (v(RD, 4), t0r))

def p2_segment_loop(p, xflags=True, rt=False):
    t0, t1, t2 = v(t0r), v(t1r), v(t2r)
    p('s_mov_b32 s%d, s%d' % (sSeg, sX))
    p('s_mov_b32 s%d, 1' % sN)
    p.label('L_P2SEG')
    p.forget()
    sKV = 25
    if xflags:
        p('s_and_b32 s%d, s%d, 3' % (sT2, sSeg))
        p('s_lshr_b32 s26, s%d, 2' % sSeg)
        p('s_add_u32 s26, s26, 1')
        p('s_lshl_b32 s%d, s%d, 2' % (sT, sC))
        p('s_add_u32 s%d, s%d, s%d' % (sT, sT, sT2))
        p('s_lshl_b32 s%d, s%d, 7' % (sT, sT))
        p('s_add_u32 s27, s%d, 0x%x' % (sT, WS_QFLAG))
        poll_one(p, 27, 26, 'KV')
        p('s_lshr_b32 s%d, s%d, 1' % (sT, sC))
        p('s_add_u32 s%d, s%d, 32' % (sT, sT))
        p('s_lshl_b32 s%d, s%d, 2' % (sT, sT))
        p('s_add_u32 s%d, s%d, s%d' % (sT, sT, sT2))
        p('s_lshl_b32 s%d, s%d, 7' % (sT, sT))
        p('s_add_u32 s27, s%d, 0x%x' % (sT, WS_QFLAG))
        poll_one(p, 27, 26, 'Q')
    p('s_lshl_b32 s%d, s%d, 5' % (sKV, sSeg))
    p('s_add_u32 s%d, s%d, s%d' % (sKV, sKV, sC))
    QF, KF, KMF, VF, VMF = W0, W0 + 16, W0 + 48, W0 + 64, W0 + 80
    SA = W0 + 88
    p('s_lshl_b32 s%d, s%d, 13' % (sT, sKV))
    p('s_and_b32 s%d, s3, 1' % sT2)
    p('s_lshl_b32 s%d, s%d, 12' % (sT2, sT2))
    p('s_add_u32 s%d, s%d, s%d' % (sT2, sT2, sT))
    p('s_add_u32 s%d, s%d, 0x%x' % (sT2, sT2, WS_QX))
    for ks in range(4): p('buffer_load_dwordx4 %s, v%d, s[4:7], s%d offen offset:%d' % (v(QF + 4 * ks, 4), vL16, sT2, ks * 1024))
    p('s_add_u32 s%d, s%d, 0x%x' % (sT2, sT, WS_KX))
    for ks in range(4): p('buffer_load_dwordx4 %s, v%d, s[4:7], s%d offen offset:%d' % (v(KF + 4 * ks, 4), vL16, sT2, ks * 1024))
    p('s_add_u32 s%d, s%d, 4096' % (sT2, sT2))
    for ks in range(4): p('buffer_load_dwordx4 %s, v%d, s[4:7], s%d offen offset:%d' % (v(KF + 16 + 4 * ks, 4), vL16, sT2, ks * 1024))
    p('s_lshr_b32 s%d, s3, 1' % sT2)
    p('s_lshl_b32 s%d, s%d, 12' % (sT2, sT2))
    p('s_add_u32 s%d, s%d, s%d' % (sT2, sT2, sT))
    p('s_add_u32 s%d, s%d, 0x%x' % (sT2, sT2, WS_VX))
    for et in range(4): p('buffer_load_dwordx4 %s, v%d, s[4:7], s%d offen offset:%d' % (v(VF + 4 * et, 4), vL16, sT2, et * 1024))
    XR = W0 + 100
    p('s_lshl_b32 s%d, s%d, 5' % (sT2, sSeg))
    p('s_add_u32 s%d, s%d, s%d' % (sT2, sT2, sC))
    p('s_lshl_b32 s28, s%d, 10' % sT2)
    p('buffer_load_dwordx4 %s, v%d, s[8:11], s28 offen' % (v(XR, 4), vOrow))
    if xflags:
        p('s_lshl_b32 s%d, s%d, 7' % (sT2, sC))
        p('s_add_u32 s27, s%d, 0x%x' % (sT2, WS_FLAG))
        p('s_add_u32 s26, s%d, 1' % sSeg)
        poll_one(p, 27, 26, 'CH')
    p('s_lshl_b32 s%d, s%d, 12' % (sT, sKV))
    p('s_add_u32 s%d, s%d, 0x%x' % (sT2, sT, WS_KM))
    for ks in range(4): p('buffer_load_dwordx4 %s, v%d, s[4:7], s%d offen offset:%d' % (v(KMF + 4 * ks, 4), vL16, sT2, ks * 1024))
    p('s_lshr_b32 s%d, s3, 1' % sT2)
    p('s_lshl_b32 s%d, s%d, 11' % (sT2, sT2))
    p('s_add_u32 s%d, s%d, s%d' % (sT2, sT2, sT))
    p('s_add_u32 s%d, s%d, 0x%x' % (sT2, sT2, WS_VM))
    for j in range(2): p('buffer_load_dwordx4 %s, v%d, s[4:7], s%d offen offset:%d' % (v(VMF + 4 * j, 4), vL16, sT2, j * 1024))
    if rt:
        rts(p, 5)
    for ks in range(4):
        C = lambda r: '0' if ks == 0 else v(r, 4)
        for jt in range(2):
            p('v_mfma_f32_16x16x32_bf16 %s, %s, %s, %s' % (v(SA + 4 * jt, 4), v(KF + 16 * jt + 4 * ks, 4), v(QF + 4 * ks, 4), C(SA + 4 * jt)))
    for ks in range(4):
        p('v_mfma_f32_16x16x32_bf16 %s, %s, %s, %s' % (v(SA + 8, 4), v(KMF + 4 * ks, 4), v(QF + 4 * ks, 4), '0' if ks == 0 else v(SA + 8, 4)))
    X = SA
    p('v_mov_b32 %s, 0xf149f2ca' % t2)
    for r in range(8): p('v_cndmask_b32 %s, %s, %s, %s' % (v(X + r), t2, v(X + r), s(sMask + 2 * r, 2)))
    p('v_max3_f32 %s, %s, %s, %s' % (t0, v(X), v(X + 1), v(X + 2)))
    p('v_max3_f32 %s, %s, %s, %s' % (t1, v(X + 3), v(X + 4), v(X + 5)))
    p('v_max3_f32 %s, %s, %s, %s' % (t0, t0, v(X + 6), v(X + 7)))
    p('v_max3_f32 %s, %s, %s, %s' % (t1, t1, v(X + 8), v(X + 9)))
    p('v_max_f32 %s, %s, %s' % (t0, t0, t1))
    p('v_mov_b32 %s, %s' % (t1, t0))
    p('v_permlane16_swap_b32 %s, %s' % (t1, t0))
    p('v_max_f32 %s, %s, %s' % (t0, t0, t1))
    p('v_mov_b32 %s, %s' % (t1, t0))
    p('v_permlane32_swap_b32 %s, %s' % (t1, t0))
    p('v_max_f32 %s, %s, %s' % (t0, t0, t1))
    p('v_mul_f32 %s, s%d, %s' % (t0, sScale2, t0))
    for r in range(0, 10, 2):
        p('v_pk_fma_f32 %s, %s, %s, %s op_sel_hi:[1,0,0] neg_lo:[0,0,1] neg_hi:[0,0,1]' % (v(X + r, 2), v(X + r, 2), s(sScale2, 2), v(t0r, 2)))
    for r in range(10): p('v_exp_f32 %s, %s' % (v(X + r), v(X + r)))
    PX, PM = QF, QF + 4
    for r in range(4): p('v_cvt_pk_bf16_f32 %s, %s, %s' % (v(PX + r), v(X + 2 * r), v(X + 2 * r + 1)))
    p('v_cvt_pk_bf16_f32 %s, %s, %s' % (v(PM), v(X + 8), v(X + 9)))
    p('v_cvt_pk_bf16_f32 %s, %s, %s' % (v(PM + 1), v(X + 8), v(X + 9)))
    OA = KF
    for et in range(4): p('v_mfma_f32_16x16x32_bf16 %s, %s, %s, 0' % (v(OA + 4 * et, 4), v(VF + 4 * et, 4), v(PX, 4)))
    for et in range(4): p('v_mfma_f32_16x16x16_bf16 %s, %s, %s, %s' % (v(OA + 4 * et, 4), v(VMF + 2 * et, 2), v(PM, 2), v(OA + 4 * et, 4)))
    p('v_pk_add_f32 %s, %s, %s' % (v(X, 2), v(X, 2), v(X + 2, 2)))
    p('v_pk_add_f32 %s, %s, %s' % (v(X + 4, 2), v(X + 4, 2), v(X + 6, 2)))
    p('v_pk_add_f32 %s, %s, %s' % (v(X, 2), v(X, 2), v(X + 8, 2)))
    p('v_pk_add_f32 %s, %s, %s' % (v(X, 2), v(X, 2), v(X + 4, 2)))
    p('v_add_f32 %s, %s, %s' % (v(X), v(X), v(X + 1)))
    p('v_mov_b32 %s, %s' % (v(X + 1), v(X)))
    p('v_permlane16_swap_b32 %s, %s' % (v(X + 1), v(X)))
    p('v_add_f32 %s, %s, %s' % (v(X), v(X), v(X + 1)))
    p('v_mov_b32 %s, %s' % (v(X + 1), v(X)))
    p('v_permlane32_swap_b32 %s, %s' % (v(X + 1), v(X)))
    p('v_add_f32 %s, %s, %s' % (v(X), v(X), v(X + 1)))
    p('v_rcp_f32 %s, %s' % (t0, v(X)))
    for r in range(0, 16, 2): p('v_pk_mul_f32 %s, %s, %s op_sel_hi:[1,0]' % (v(OA + r, 2), v(OA + r, 2), v(t0r, 2)))
    OP = QF + 8
    for j in range(2):
        for T in range(2):
            for hh in range(2):
                p('v_cvt_pk_bf16_f32 %s, %s, %s' % (v(OP + 4 * j + 2 * T + hh), v(OA + 8 * j + 4 * T + 2 * hh), v(OA + 8 * j + 4 * T + 2 * hh + 1)))
        p('ds_write_b128 v%d, %s offset:%d' % (vOXw, v(OP + 4 * j, 4), j * 1024))
    XR2 = 28
    for r in range(4): p('v_mov_b32 %s, %s' % (v(XR2 + r), v(XR + r)))
    p.wait(lgkm=0)
    p('s_barrier')
    OF = W0
    ACC = W0 + 32
    for qt in range(2):
        for ec in range(4): p('ds_read_b128 %s, v%d offset:%d' % (v(OF + (qt * 4 + ec) * 4, 4), vL16, OX_L + qt * 4096 + ec * 1024))
    for qt in range(2):
        for ec in range(4):
            for G in range(4):
                for T in range(2):
                    D = v(ACC + ((qt * 4 + G) * 2 + T) * 4, 4)
                    p('v_mfma_f32_16x16x32_bf16 %s, %s, %s, %s' % (D, a(((G * 2 + T) * 4 + ec) * 4, 4), v(OF + (qt * 4 + ec) * 4, 4), '0' if ec == 0 else D))
    p('s_add_u32 s29, s%d, %d' % (sBase, P2_IN1))
    transposed_store(p, ACC, 29)
    post_flag(p, 0)
    p('s_add_u32 s29, s%d, %d' % (sBase, P2_FL))
    poll_flags(p, 29, 0, sN, 32, 'F1')
    LD = W0
    p('s_add_u32 s29, s%d, %d' % (sBase, P2_IN1))
    for k in range(8):
        p('buffer_load_dwordx4 %s, v%d, s[4:7], s29 offen sc1' % (v(LD + 4 * k, 4), vIn))
        if k < 7: p('s_add_u32 s29, s29, 4096')
    p('v_mfma_f32_16x16x32_bf16 %s, %s, %s, 0' % (v(H, 4), v(XR2, 4), v(SEL, 4)))
    for k in range(8): p('v_mfma_f32_16x16x32_bf16 %s, %s, %s, %s' % (v(H, 4), v(LD + 4 * k, 4), v(SEL, 4), v(H, 4)))
    S1, S2 = W0 + 40, W0 + 41
    p('v_add_f32 %s, %s, %s' % (v(S1), v(H), v(H + 1)))
    p('v_mul_f32 %s, %s, %s' % (v(S2), v(H), v(H)))
    p('v_add_f32 %s, %s, %s' % (v(S1), v(S1), v(H + 2)))
    p('v_fmac_f32 %s, %s, %s' % (v(S2), v(H + 1), v(H + 1)))
    p('v_add_f32 %s, %s, %s' % (v(S1), v(S1), v(H + 3)))
    p('v_fmac_f32 %s, %s, %s' % (v(S2), v(H + 2), v(H + 2)))
    p('v_fmac_f32 %s, %s, %s' % (v(S2), v(H + 3), v(H + 3)))
    reduce_all(p, S1, t0r)
    reduce_all(p, S2, t1r)
    p('s_lshl_b32 s%d, s3, 3' % sT)
    p('s_add_u32 s%d, s%d, %d' % (sT, sT, ST_L))
    p('v_mov_b32 %s, s%d' % (t2, sT))
    p('ds_write_b64 %s, %s' % (t2, v(S1, 2)))
    p.wait(lgkm=0)
    p('s_barrier')
    p('v_mov_b32 %s, %d' % (t2, ST_L))
    p('ds_read_b128 %s, %s' % (v(W0 + 44, 4), t2))
    p('ds_read_b128 %s, %s offset:16' % (v(W0 + 48, 4), t2))
    p('v_pk_add_f32 %s, %s, %s' % (v(W0 + 44, 2), v(W0 + 44, 2), v(W0 + 46, 2)))
    p('v_pk_add_f32 %s, %s, %s' % (v(W0 + 48, 2), v(W0 + 48, 2), v(W0 + 50, 2)))
    p('v_pk_add_f32 %s, %s, %s' % (v(W0 + 44, 2), v(W0 + 44, 2), v(W0 + 48, 2)))
    p('v_mul_f32 %s, 0x3b000000, %s' % (v(W0 + 44), v(W0 + 44)))
    p('v_mul_f32 %s, 0x3b000000, %s' % (v(W0 + 45), v(W0 + 45)))
    p('v_fma_f32 %s, -%s, %s, %s' % (v(W0 + 45), v(W0 + 44), v(W0 + 44), v(W0 + 45)))
    p('v_max_f32 %s, 0, %s' % (v(W0 + 45), v(W0 + 45)))
    p('v_add_f32 %s, 0x3727c5ac, %s' % (v(W0 + 45), v(W0 + 45)))
    p('v_rsq_f32 %s, %s' % (v(W0 + 45), v(W0 + 45)))
    HNV = W0 + 52
    for r in range(4): p('v_sub_f32 %s, %s, %s' % (v(HNV + r), v(H + r), v(W0 + 44)))
    for r in range(4): p('v_mul_f32 %s, %s, %s' % (v(HNV + r), v(HNV + r), v(W0 + 45)))
    row_out(p, HNV, W0 + 56)
    p('s_add_u32 s29, s%d, %d' % (sBase, P2_HN))
    p('buffer_store_dwordx4 %s, v%d, s[4:7], s29 offen' % (v(W0 + 56, 4), vHNst))
    post_flag(p, 128)
    p('s_cmp_ge_u32 s%d, 22' % sC)
    p('s_cbranch_scc1 L_P2NOFFN')
    p('s_add_u32 s29, s%d, %d' % (sBase, P2_FL))
    poll_flags(p, 29, 128, sN, 32, 'F2')
    p('s_add_u32 s29, s%d, %d' % (sBase, P2_HN))
    p('s_lshl_b32 s%d, s3, 13' % sT)
    p('s_add_u32 s29, s29, s%d' % sT)
    p('s_add_u32 s%d, s%d, %d' % (sM, sT, HN_L))
    for k in range(8):
        p('s_mov_b32 m0, s%d' % sM)
        p('s_add_u32 s%d, s%d, 1024' % (sM, sM))
        p('buffer_load_dwordx4 v%d, s[4:7], s29 offen sc1 lds' % vL16)
        p('s_add_u32 s29, s29, 1024')
    p.wait(vm=0)
    p('s_barrier')
    GA = W0
    FR = W0 + 16
    p('v_add_u32 %s, %d, v%d' % (t2, HN_L, vL16))
    seq = [(ks, qt) for ks in range(16) for qt in range(2)]
    rd = lambda i: p('ds_read_b128 %s, %s offset:%d' % (v(FR + 4 * (i & 3), 4), t2, seq[i][1] * 16384 + seq[i][0] * 1024))
    for i in range(3): rd(i)
    for i, (ks, qt) in enumerate(seq):
        if i + 3 < 32: rd(i + 3)
        for mat in range(2):
            D = v(GA + (qt * 2 + mat) * 4, 4)
            p('v_mfma_f32_16x16x32_bf16 %s, %s, %s, %s' % (D, a(128 + (ks * 2 + mat) * 4, 4), v(FR + 4 * (i & 3), 4), '0' if ks == 0 else D))
    for qt in range(2):
        for hh in range(2):
            p('v_pk_mul_f32 %s, %s, %s' % (v(GA + qt * 8 + 2 * hh, 2), v(GA + qt * 8 + 2 * hh, 2), v(GA + qt * 8 + 4 + 2 * hh, 2)))
        for hh in range(2):
            p('v_cvt_pk_bf16_f32 %s, %s, %s' % (v(FR + 2 * qt + hh), v(GA + qt * 8 + 2 * hh), v(GA + qt * 8 + 2 * hh + 1)))
        p('ds_write_b64 v%d, %s offset:%d' % (vHMw, v(FR + 2 * qt, 2), qt * 2048))
    p.wait(lgkm=0)
    p('s_barrier')
    HF = W0
    p('v_lshlrev_b32 %s, 3, v0' % t2)
    for qt in range(2):
        for kp in range(2):
            for T in range(2):
                p('ds_read_b64 %s, %s offset:%d' % (v(HF + (qt * 2 + kp) * 4 + 2 * T, 2), t2, HM_L + qt * 2048 + (2 * kp + T) * 512))
    ACC = W0 + 32
    for qt in range(2):
        for kp in range(2):
            for G in range(4):
                for T in range(2):
                    D = v(ACC + ((qt * 4 + G) * 2 + T) * 4, 4)
                    p('v_mfma_f32_16x16x32_bf16 %s, %s, %s, %s' % (D, v(WD + ((G * 2 + T) * 2 + kp) * 4, 4), v(HF + (qt * 2 + kp) * 4, 4), '0' if kp == 0 else D))
    p('s_add_u32 s29, s%d, %d' % (sBase, P2_IN2))
    transposed_store(p, ACC, 29)
    post_flag(p, 256)
    p.label('L_P2NOFFN')
    p.forget()
    p('s_add_u32 s29, s%d, %d' % (sBase, P2_FL))
    poll_flags(p, 29, 256, sN, 22, 'F3')
    p('s_add_u32 s29, s%d, %d' % (sBase, P2_IN2))
    for k in range(6):
        p('buffer_load_dwordx4 %s, v%d, s[4:7], s29 offen sc1' % (v(LD + 4 * k, 4), vIn if k < 5 else vIn2))
        if k < 5: p('s_add_u32 s29, s29, 4096')
    for k in range(6): p('v_mfma_f32_16x16x32_bf16 %s, %s, %s, %s' % (v(H, 4), v(LD + 4 * k, 4), v(SEL, 4), v(H, 4)))
    row_out(p, H, W0 + 56)
    p('buffer_store_dwordx4 %s, v%d, s[40:43], s28 offen' % (v(W0 + 56, 4), vOrow))
    p('s_add_u32 s%d, s%d, 7' % (sSeg, sSeg))
    p('s_add_u32 s%d, s%d, 1' % (sN, sN))
    p('s_cmp_lt_u32 s%d, 64' % sSeg)
    p('s_cbranch_scc1 L_P2SEG')
    rts(p, 6)
    p.wait(vm=0)
    p('s_endpgm')
    p.label('L_P2BAIL')
    p('s_load_dwordx2 s[30:31], s[0:1], %d' % KA_DBG)
    p('v_mov_b32 v16, 0x200')
    p('v_or_b32 v16, s%d, v16' % sSeg)
    p('v_mov_b32 v17, 212')
    p('s_waitcnt lgkmcnt(0)')
    p('global_store_dword v17, v16, s[30:31]')
    p.wait(vm=0)
    p('s_endpgm')

def p2_init(p):
    make_srd(p, 8, KA_X, 2048 * 1024)
    make_srd(p, 40, KA_OUT, 2048 * 1024)
```

```python
from common import *
TOK_L = 0
sCG, sTG, sSeg0, sOut, sIsV, sN = 12, 13, 14, 15, 16, 17
sT, sT2, sM = 20, 21, 22
sFlag = 23
ACC = 32
FR = 96
PK = 112
vL16, vOut, vA0, vA1, vFl = 1, 2, 3, 4, 5
vD = [8, 9, 10, 11]

def qkv_load_weights(p):
    L = 'v0'
    p('s_load_dwordx4 s[48:51], s[0:1], %d' % KA_WQ)
    p('s_load_dwordx2 s[52:53], s[0:1], %d' % KA_WV)
    p('v_lshlrev_b32 v%d, 4, v0' % vL16)
    for q in range(4):
        p('v_bfe_u32 v6, v0, 4, 1')
        p('v_lshlrev_b32 v6, 1, v6')
        p('v_and_b32 v7, 15, v0')
        p('v_xor_b32 v6, v6, v7')
        p('v_xor_b32 v6, %d, v6' % (4 * (q & 1) + 8 * (q >> 1)))
        p('v_lshlrev_b32 v6, 4, v6')
        p('v_lshrrev_b32 v7, 4, v0')
        p('v_lshl_add_u32 v%d, v7, 13, v6' % vD[q])
    p('s_waitcnt lgkmcnt(0)')
    p('s_lshr_b32 s%d, s3, 1' % sT)
    p('s_cmp_lt_u32 s%d, 32' % sCG)
    p('s_cbranch_scc0 L_QKV_ISQ')
    p('s_cmp_eq_u32 s%d, 0' % sT)
    p('s_cselect_b32 s56, s50, s52')
    p('s_cselect_b32 s57, s51, s53')
    p('s_mov_b32 s54, s%d' % sCG)
    p('s_mov_b32 s%d, s%d' % (sIsV, sT))
    p('s_branch L_QKV_SRC')
    p.label('L_QKV_ISQ')
    p('s_mov_b32 s56, s48')
    p('s_mov_b32 s57, s49')
    p('s_sub_u32 s54, s%d, 32' % sCG)
    p('s_lshl_b32 s54, s54, 1')
    p('s_add_u32 s54, s54, s%d' % sT)
    p('s_mov_b32 s%d, 0' % sIsV)
    p.label('L_QKV_SRC')
    p('s_mov_b32 s58, 0x400000')
    p('s_mov_b32 s59, 0x20000')
    for t in range(2):
        for hh in range(2):
            reg = 12 + 2 * t + hh
            p('v_bfe_u32 v6, v0, 5, 1')
            p('v_lshlrev_b32 v6, 3, v6')
            p('v_bfe_u32 v7, v0, 2, 2')
            p('v_add_u32 v6, v6, v7')
            p('v_add_u32 v6, %d, v6' % (4 * hh))
            p('v_lshlrev_b32 v%d, 8, v6' % reg)
            p('v_bfe_u32 v6, v0, 2, 1')
            p('v_lshlrev_b32 v6, 1, v6')
            p('v_bfe_u32 v7, v0, 5, 1')
            p('v_lshl_add_u32 v6, v7, 3, v6')
            p('v_or_b32 v6, %d, v6' % (4 * hh))
            p('v_bfe_u32 v7, v0, 4, 1')
            p('v_lshlrev_b32 v7, 1, v7')
            p('v_bfe_u32 v16, v0, 1, 1')
            p('v_add_u32 v7, v7, v16')
            p('s_and_b32 s%d, s3, 1' % sT2)
            p('s_lshl_b32 s%d, s%d, 3' % (sT2, sT2))
            p('s_add_u32 s%d, s%d, %d' % (sT2, sT2, 4 * t))
            p('v_add_u32 v7, s%d, v7' % sT2)
            p('v_xor_b32 v6, v6, v7')
            p('v_lshlrev_b32 v6, 4, v6')
            p('v_and_b32 v7, 1, v0')
            p('v_lshl_add_u32 v6, v7, 3, v6')
            p('v_add_u32 v%d, v%d, v6' % (reg, reg))
            p('s_lshr_b32 s%d, s3, 1' % sT2)
            p('s_lshl_b32 s%d, s%d, 14' % (sT2, sT2))
            p('v_add_u32 v%d, s%d, v%d' % (reg, sT2, reg))
    NP, RING = 8, 4
    def issue(n):
        base = (n % RING) * 32768
        p('s_and_b32 s%d, s3, 1' % sT)
        p('s_lshl_b32 s%d, s%d, 5' % (sT, sT))
        p('s_add_u32 s%d, s%d, %d' % (sT, sT, 64 * n))
        p('s_lshl_b32 s%d, s%d, 13' % (sT, sT))
        p('s_lshl_b32 s%d, s54, 8' % sT2)
        p('s_add_u32 s%d, s%d, s%d' % (sT, sT, sT2))
        p('s_lshl_b32 s%d, s3, 13' % sM)
        p('s_add_u32 s%d, s%d, %d' % (sM, sM, base))
        for k in range(8):
            p('s_mov_b32 m0, s%d' % sM)
            p('s_add_u32 s%d, s%d, 1024' % (sM, sM))
            p('buffer_load_dwordx4 v%d, s[56:59], s%d offen lds' % (vD[k & 3], sT))
            p('s_add_u32 s%d, s%d, %d' % (sT, sT, 4 * 8192))
    for n in range(RING): issue(n)
    for n in range(NP):
        inflight = min(NP, n + RING) - n - 1
        p.wait(vm=8 * inflight)
        p('s_barrier')
        base = (n % RING) * 32768
        for t in range(2):
            for hh in range(2): p('v_add_u32 v%d, %d, v%d' % (16 + 2 * t + hh, base, 12 + 2 * t + hh))
        for kk in range(4):
            ks = 4 * n + kk
            for t in range(2):
                for hh in range(2):
                    p('ds_read_b64_tr_b16 %s, v%d offset:%d' % (a((ks * 2 + t) * 4 + 2 * hh, 2), 16 + 2 * t + hh, kk * 16 * 256))
        p.wait(lgkm=0)
        p('s_barrier')
        if n + RING < NP: issue(n + RING)

def qkv_main(p, nseg=16, flags=True, wait_b=None):
    L = 'v0'
    p('s_cmp_lt_u32 s%d, 32' % sCG)
    p('s_cselect_b32 s%d, 0x%x, 0x%x' % (sT, WS_KX, WS_QX))
    p('s_cmp_eq_u32 s%d, 1' % sIsV)
    p('s_cselect_b32 s%d, 0x%x, s%d' % (sT, WS_VX, sT))
    p('s_mov_b32 s%d, s%d' % (sSeg0, sTG))
    p('s_lshl_b32 s%d, s%d, 18' % (sT2, sSeg0))
    p('s_add_u32 s%d, s%d, s%d' % (sT, sT, sT2))
    p('s_lshl_b32 s%d, s54, 13' % sT2)
    p('s_add_u32 s%d, s%d, s%d' % (sOut, sT, sT2))
    p('v_and_b32 v6, 15, v0')
    p('v_lshlrev_b32 v6, 4, v6')
    p('v_lshrrev_b32 v7, 5, v0')
    p('v_lshl_add_u32 v6, v7, 8, v6')
    p('v_bfe_u32 v7, v0, 4, 1')
    p('s_cmp_eq_u32 s%d, 1' % sIsV)
    p('s_cselect_b32 s%d, 10, 12' % sT)
    p('s_cselect_b32 s%d, 12, 11' % sT2)
    p('v_lshlrev_b32 v7, s%d, v7' % sT)
    p('v_add_u32 v6, v6, v7')
    p('s_and_b32 s%d, s3, 1' % sM)
    p('s_lshl_b32 s%d, s%d, s%d' % (sM, sM, sT2))
    p('v_add_u32 v%d, s%d, v6' % (vOut, sM))
    p('s_mov_b32 s24, 1024')
    p('s_lshl_b32 s24, s24, s%d' % sIsV)
    p('s_lshl_b32 s25, s%d, 15' % sSeg0)
    p('s_lshl_b32 s%d, s3, 13' % sT)
    p('s_add_u32 s25, s25, s%d' % sT)
    p('s_add_u32 s25, s25, 0x%x' % WS_XN)
    p('s_lshl_b32 s26, s3, 13')
    p('s_mov_b32 s27, 0')
    def fetch():
        p('s_add_u32 s%d, s26, s27' % sM)
        for k in range(8):
            p('s_mov_b32 m0, s%d' % sM)
            p('s_add_u32 s%d, s%d, 1024' % (sM, sM))
            p('buffer_load_dwordx4 v%d, s[4:7], s25 offen lds' % vL16)
            p('s_add_u32 s25, s25, 1024')
        p('s_add_u32 s25, s25, %d' % (4 * 32768 - 8192))
        p('s_add_u32 s27, s27, 32768')
        p('s_cmp_eq_u32 s27, %d' % (3 * 32768))
        p('s_cselect_b32 s27, 0, s27')
    p('s_lshl_b32 s%d, s%d, 2' % (sFlag, sCG))
    p('s_add_u32 s%d, s%d, s%d' % (sFlag, sFlag, sTG))
    p('s_lshl_b32 s%d, s%d, 7' % (sFlag, sFlag))
    p('s_add_u32 s%d, s%d, 0x%x' % (sFlag, sFlag, WS_QFLAG))
    p('v_or_b32 v6, s3, v0')
    p('v_mov_b32 v7, 0x%x' % OOB)
    p('v_cmp_eq_u32 vcc, 0, v6')
    p('v_cndmask_b32 v%d, v7, 0, vcc' % vFl)
    p('s_mov_b32 s29, 0')
    p('s_mov_b32 s%d, 0' % sN)
    fetch(); fetch()
    uid = [0]
    def wait_b_emit(tag):
        from main_hooks import wait_dbg_fn
        wait_dbg_fn[0](p, tag)
    def emit_loop(isV):
        tg_ = 'V' if isV else 'K'
        def epi_ops(j):
            ops = []
            for t in range(2):
                D = ACC + 32 * j + 16 * t
                for ci, (g0, g1) in enumerate(((0, 2), (1, 3))):
                    P = PK + 8 * t + 4 * ci
                    for q, g in enumerate((g0, g1)):
                        for hh in range(2):
                            ops.append('v_cvt_pk_bf16_f32 %s, %s, %s' % (v(P + 2 * q + hh), v(D + 4 * g + 2 * hh), v(D + 4 * g + 2 * hh + 1)))
                    ops.append('buffer_store_dwordx4 %s, v%d, s[4:7], s%d offen offset:%d sc1' % (v(P, 4), vOut, sOut if t == 0 else 28, 512 * ci))
            return ops
        def iteration(j, epi, first=False):
            p.forget()
            p.wait(vm=(8 if not epi or first else 0))
            p('s_barrier')
            if wait_b is not None and epi and not first:
                p('s_cmp_eq_u32 s%d, 6' % sN)
                uid[0] += 1
                p('s_cbranch_scc0 L_QKV_NOB%s%d' % (tg_, uid[0]))
                wait_b_emit('%s%d' % (tg_, uid[0]))
                p.label('L_QKV_NOB%s%d' % (tg_, uid[0]))
            if flags:
                p('s_sub_i32 s%d, s%d, 1' % (sT, sN))
                p('s_max_i32 s%d, s%d, 0' % (sT, sT))
                p('v_mov_b32 v6, s%d' % sT)
                p('buffer_store_dword v6, v%d, s[4:7], s%d offen sc1' % (vFl, sFlag))
            else:
                p('buffer_store_dword v6, v7, s[4:7], s%d offen' % sFlag)
            fetch()
            p('v_add_u32 v%d, s29, v%d' % (vA0, vL16))
            p('s_add_u32 s29, s29, 32768')
            p('s_cmp_eq_u32 s29, %d' % (3 * 32768))
            p('s_cselect_b32 s29, 0, s29')
            ops = epi_ops(j ^ 1) if epi else []
            if epi: p('s_add_u32 s28, s%d, s24' % sOut)
            rd = lambda ks: p('ds_read_b128 %s, v%d offset:%d' % (v(FR + 4 * (ks & 3), 4), vA0, ks * 1024))
            for ks in range(3): rd(ks)
            for ks in range(32):
                if ks + 3 < 32: rd(ks + 3)
                for t in range(2):
                    D = v(ACC + 32 * j + 16 * t, 16)
                    W = a((ks * 2 + t) * 4, 4); T = v(FR + 4 * (ks & 3), 4)
                    A, B = (T, W) if isV else (W, T)
                    p('v_mfma_f32_32x32x16_bf16 %s, %s, %s, %s' % (D, A, B, '0' if ks == 0 else D))
                    if ks >= 1 and ops:
                        p(ops.pop(0))
                        if ops: p(ops.pop(0))
            assert not ops
            if epi: p('s_add_u32 s%d, s%d, %d' % (sOut, sOut, 4 * 32 * 8192))
            p('s_add_u32 s%d, s%d, 1' % (sN, sN))
        iteration(0, False)
        iteration(1, True, first=True)
        iteration(0, True)
        p.label('L_QKV_LOOP' + tg_)
        iteration(1, True)
        p('s_cmp_eq_u32 s%d, %d' % (sN, nseg))
        p('s_cbranch_scc1 L_QKV_END' + tg_)
        iteration(0, True)
        p('s_branch L_QKV_LOOP' + tg_)
        p.label('L_QKV_END' + tg_)
        p.forget()
        p('s_add_u32 s28, s%d, s24' % sOut)
        p.clear_hazards()
        for op in epi_ops(1): p(op)
        p.wait(vm=0)
        p('s_barrier')
        if flags:
            p('v_mov_b32 v6, %d' % nseg)
            p('buffer_store_dword v6, v%d, s[4:7], s%d offen sc1' % (vFl, sFlag))
    p('s_cmp_eq_u32 s%d, 1' % sIsV)
    p('s_cbranch_scc1 L_QKV_V')
    emit_loop(False)
    p('s_branch L_QKV_DONE')
    p.label('L_QKV_V')
    emit_loop(True)
    p.label('L_QKV_DONE')
```

```python
import sys
from common import *
import chain, ln1, qkv, p2
NAME = 'sequential_preLN__memory_aug_recurrent_mem_tr__glu_gated_bilinear__prompt_kernel'
HEADER = open('sequential_preLN__memory_aug_recurrent_mem_tr__glu_gated_bilinear__prompt.s.ref').read().split('; Override launch')[0]
DBG_REG, DBG_LNA, DBG_LNB, DBG_BAIL = 192, 196, 200, 208
sXCC, sTK = 92, 93
SPIN = 2000000

def wait_dbg(p, off, need, tag, cnt=94, vr=120):
    p('s_load_dwordx2 s[96:97], s[0:1], %d' % KA_DBG)
    p('v_mov_b32 v%d, %d' % (vr, off))
    p('s_mov_b32 s%d, 0' % cnt)
    p('s_waitcnt lgkmcnt(0)')
    p.label('L_WD' + tag)
    p('global_load_dword v%d, v%d, s[96:97] sc1' % (vr + 1, vr))
    p.wait(vm=0)
    p('v_readfirstlane_b32 s95, v%d' % (vr + 1))
    p('s_add_u32 s%d, s%d, 1' % (cnt, cnt))
    p('s_cmp_gt_u32 s%d, %d' % (cnt, SPIN))
    p('s_cbranch_scc1 L_GBAIL')
    p('s_cmp_lt_u32 s95, %d' % need)
    p('s_cbranch_scc1 L_WD' + tag)
    p.forget()

def add_dbg(p, off, tag, wait=True):
    if wait:
        p.wait(vm=0)
        p('s_barrier')
    p('s_load_dwordx2 s[96:97], s[0:1], %d' % KA_DBG)
    p('v_mov_b32 v120, %d' % off)
    p('v_mov_b32 v121, 1')
    p('v_or_b32 v122, s3, v0')
    p('s_waitcnt lgkmcnt(0)')
    p('v_cmp_eq_u32 vcc, 0, v122')
    p('s_and_saveexec_b64 s[98:99], vcc')
    p('s_cbranch_execz L_AD' + tag)
    p('global_atomic_add v120, v121, s[96:97]')
    p.label('L_AD' + tag)
    p('s_mov_b64 exec, s[98:99]')

def zero_p2_flags(p):
    p('s_lshl_b32 s20, s%d, 22' % p2.sX)
    p('s_add_u32 s20, s20, 0x%x' % (WS_P2 + P2_FL))
    p('s_lshl_b32 s21, s%d, 2' % p2.sC)
    p('s_add_u32 s20, s20, s21')
    p('v_lshlrev_b32 v120, 7, v0')
    p('v_mov_b32 v121, 0x%x' % OOB)
    p('v_cmp_gt_u32 vcc, 3, v0')
    p('v_cndmask_b32 v120, v121, v120, vcc')
    p('v_mov_b32 v121, 0')
    p('buffer_store_dword v121, v120, s[4:7], s20 offen')

RT = False
def rts(p, k):
    if not RT: return
    p.raw('    s_memrealtime s[84:85]')
    p.raw('    s_waitcnt lgkmcnt(0)')
    p.raw('    s_lshl_b32 s83, s%d, 5' % sXCC)
    p.raw('    s_add_u32 s83, s83, s%d' % sTK)
    p.raw('    s_lshl_b32 s83, s83, 6')
    p.raw('    s_add_u32 s83, s83, 0x%x' % (WS_FLAG + 8192 + 4 * k))
    p.raw('    v_mov_b32 v123, s84')
    p.raw('    buffer_store_dword v123, off, s[4:7], s83')
def build(opt=(), stamps=False):
    global RT
    RT = 'rt' in opt
    p2.rts = rts
    p = Prog()
    p.raw(HEADER.rstrip('\n'))
    p.raw('; @launch grid=(256,1,1) block=(256,1,1) lds=163840')
    p.raw('.amdgcn_target "amdgcn-amd-amdhsa--gfx950"\n.text\n.globl %s\n.p2align 8\n.type %s,@function\n%s:' % (NAME, NAME, NAME))
    p('s_cmp_ge_u32 s2, 256')
    p('s_cbranch_scc1 L_EXIT')
    p('s_getreg_b32 s%d, hwreg(HW_REG_XCC_ID, 0, 4)' % sXCC)
    p('s_load_dwordx2 s[8:9], s[0:1], %d' % KA_DBG)
    p('s_and_b32 s%d, s%d, 7' % (sXCC, sXCC))
    p('s_add_u32 s10, s%d, 2' % sXCC)
    p('s_mul_i32 s11, s10, 43')
    p('s_lshr_b32 s11, s11, 7')
    p('s_mul_i32 s12, s11, 3')
    p('s_sub_u32 s10, s10, s12')
    p('s_lshl_b32 s10, s10, 2')
    p('s_lshl_b32 s11, s11, 6')
    p('s_add_u32 s10, s10, s11')
    p('s_cmp_eq_u32 s%d, 0' % sXCC)
    p('s_cselect_b32 s10, 0, s10')
    p('s_cmp_eq_u32 s%d, 7' % sXCC)
    p('s_cselect_b32 s10, 4, s10')
    p('v_mov_b32 v2, s10')
    p('v_mov_b32 v3, 1')
    p('s_waitcnt lgkmcnt(0)')
    p('v_cmp_eq_u32 vcc, 0, v0')
    p('s_and_saveexec_b64 s[10:11], vcc')
    p('s_cbranch_execz L_NOTICKET')
    p('global_atomic_add v4, v2, v3, s[8:9] sc0')
    p.wait(vm=0)
    p('v_mov_b32 v2, 0')
    p('ds_write_b32 v2, v4')
    p.wait(lgkm=0)
    p.label('L_NOTICKET')
    p('s_mov_b64 exec, s[10:11]')
    p('s_barrier')
    p('v_mov_b32 v2, 0')
    p('ds_read_b32 v4, v2')
    p.wait(lgkm=0)
    p('v_readfirstlane_b32 s%d, v4' % sTK)
    p('s_barrier')
    p('s_cmp_ge_u32 s%d, 32' % sTK)
    p('s_cbranch_scc1 L_EXIT')
    p('s_cmp_eq_u32 s%d, 0' % sXCC)
    p('s_cbranch_scc0 L_WORKER')
    p('s_mov_b32 s%d, s%d' % (chain.sH, sTK))
    chain.chain_setup(p)
    rts(p, 0)
    p('s_lshl_b32 s30, s%d, 7' % chain.sH)
    p('s_add_u32 s30, s30, 0x%x' % WS_FLAG)
    p('v_mov_b32 v120, 0')
    p('buffer_store_dword v120, off, s[4:7], s30 sc1')
    chain.chain_init_globals(p)
    add_dbg(p, DBG_REG, 'C')
    chain.chain_load_weights(p)
    rts(p, 1)
    chain.chain_init_mem0(p)
    wait_dbg(p, DBG_REG, 256, 'C')
    p('s_barrier')
    rts(p, 2)
    chain.chain_loop(p, stamps=stamps, opt=tuple(opt) + ('kvflags',))
    p.label('L_DONE')
    p.forget()
    p.raw('    s_waitcnt lgkmcnt(0)')
    p('s_add_u32 %s, %s, %d' % (s(chain.sKM), s(chain.sKM), 32 * 4096))
    p('s_add_u32 %s, %s, %d' % (s(chain.sVM), s(chain.sVM), 32 * 4096))
    p('buffer_store_dwordx4 %s, %s, s[4:7], %s offen sc1' % (v(chain.MF + 16, 4), v(chain.vL16), s(chain.sKM)))
    p('buffer_store_dwordx4 %s, %s, s[4:7], %s offen sc1' % (v(chain.MF + 20, 4), v(chain.vL16), s(chain.sVM)))
    p.wait(vm=0)
    p('s_barrier')
    p('v_mov_b32 %s, 64' % v(chain.vFlag))
    p('buffer_store_dword %s, %s, s[4:7], %s offen sc1' % (v(chain.vFlag), v(chain.vFlagOff), s(chain.sFlagOff)))
    rts(p, 3)
    p.wait(vm=0)
    p('s_endpgm')
    p.label('L_BAIL')
    p('s_load_dwordx2 s[96:97], s[0:1], %d' % KA_DBG)
    p('v_mov_b32 v120, 0x100')
    p('v_or_b32 v120, %s, v120' % s(chain.sStep))
    p('v_mov_b32 v121, %d' % DBG_BAIL)
    p('s_waitcnt lgkmcnt(0)')
    p('global_store_dword v121, v120, s[96:97]')
    p.wait(vm=0)
    p('s_endpgm')
    p.label('L_WORKER')
    p.forget()
    ws_srd(p)
    p('s_sub_u32 s%d, s%d, 1' % (80, sXCC))
    p('s_mov_b32 s81, s%d' % sTK)
    p('s_mov_b32 s%d, s80' % p2.sX)
    p('s_mov_b32 s%d, s81' % p2.sC)
    rts(p, 0)
    zero_p2_flags(p)
    p('s_cmp_eq_u32 s80, 6')
    p('s_cbranch_scc1 L_LN')
    p('s_lshl_b32 s%d, s80, 3' % qkv.sCG)
    p('s_lshr_b32 s20, s81, 2')
    p('s_add_u32 s%d, s%d, s20' % (qkv.sCG, qkv.sCG))
    p('s_and_b32 s%d, s81, 3' % qkv.sTG)
    p('s_lshl_b32 s20, s%d, 2' % qkv.sCG)
    p('s_add_u32 s20, s20, s%d' % qkv.sTG)
    p('s_lshl_b32 s20, s20, 7')
    p('s_add_u32 s20, s20, 0x%x' % WS_QFLAG)
    p('v_mov_b32 v120, 0')
    p('buffer_store_dword v120, off, s[4:7], s20 sc1')
    add_dbg(p, DBG_REG, 'Q')
    qkv.qkv_load_weights(p)
    rts(p, 1)
    wait_dbg(p, DBG_REG, 256, 'Q')
    wait_dbg(p, DBG_LNA, 32, 'QL')
    rts(p, 2)
    import main_hooks
    main_hooks.wait_dbg_fn[0] = lambda pp, tag: wait_dbg(pp, DBG_LNB, 32, 'QLB' + tag, vr=6)
    qkv.qkv_main(p, flags=True, wait_b=True)
    rts(p, 3)
    p('s_branch L_P2')
    p.label('L_LN')
    p.forget()
    add_dbg(p, DBG_REG, 'L')
    make_srd(p, 8, KA_X, 2048 * 1024)
    p('s_mov_b32 s12, s81')
    ln1.ln1_load(p, 12, 0)
    p('s_add_u32 s13, s81, 32')
    ln1.ln1_load(p, 13, 1)
    ln1.ln1_compute(p, 12, 0, nvm_after=8)
    ln1.ln1_compute(p, 13, 1, nvm_after=8)
    p.wait(vm=8)
    p('s_barrier')
    add_dbg(p, DBG_LNA, 'LN0', wait=False)
    add_dbg(p, DBG_LNB, 'LN1')
    rts(p, 3)
    wait_dbg(p, DBG_REG, 256, 'L')
    p.label('L_P2')
    p.forget()
    p('s_barrier')
    p('s_mov_b32 s%d, s80' % p2.sX)
    p('s_mov_b32 s%d, s81' % p2.sC)
    p2.p2_init(p)
    p2.p2_load_weights(p)
    p2.p2_setup(p)
    rts(p, 4)
    p2.p2_segment_loop(p, xflags=True, rt=('rt' in opt))
    p.label('L_GBAIL')
    p.label('L_EXIT')
    p('s_endpgm')
    p.raw('''.section .rodata,"a"
.p2align 6
.amdhsa_kernel %s
  .amdhsa_next_free_vgpr 512
  .amdhsa_next_free_sgpr 102
  .amdhsa_accum_offset 256
  .amdhsa_group_segment_fixed_size 0
  .amdhsa_kernarg_size 112
  .amdhsa_user_sgpr_count 2
  .amdhsa_user_sgpr_kernarg_segment_ptr 1
  .amdhsa_system_sgpr_workgroup_id_x 1
.end_amdhsa_kernel''' % NAME)
    return p
def rt_out(p, k): pass
if __name__ == '__main__':
    out = sys.argv[1]
    p = build(opt=tuple(sys.argv[2:]))
    open(out, 'w').write(p.text())
    print('insts', p.count, 'nop states', p.nops, 'bytes', len(p.text()))
```

```python
from asmlib import *
from layout import *

VX_L = 0
KX_L = 8192
M_IMG, M_RS = 16384, 1088
Q_IMG = 25088
K_IMG = 27136
W_L = 32768
CHAIN_LDS = W_L + 4 * 32768

vLane = 0
vL16, vIdxQ, vIdxO, vMrd, vWrd0, vWrd1, vQwr, vKwr, vQtr, vKtr, vVX, vPst, vMst, vMld, vMwr, vTouch, vPld, vNeg1, vDummy = range(1, 20)
vFlag = vDummy
vFlagOff = 21
vT0, vT1, vT2 = 22, 23, 20
MF = 24
LAND = 56
AQK = 104
AV = 120
WQK = 128

sW = 3
SRD_WS = 4
SRD_T = 8
sH, sStep, sTag = 12, 13, 15
sPst = 16
sPld = 20
sMrd, sMwr, sMpo = 21, 22, 23
sKX, sVX, sKXn = 24, 25, 26
sKM, sVM = 27, 28
sCnt = 29
sTmp, sTmp2, sTmp3 = 30, 31, 32
sScale = 33
sM0kx, sM0vx = 34, 35
sFlagOff = 36
sW10 = 37
sScale2 = 76
sNfail = 78
sExK = 92
sKVoff, sKVneed, sKVbase = 88, 89, 90
vKVf = 0
sTagN = 14
sMwrOld = 18
sMaskA = 8
sFlagVal = 79
sDBG = 38
sStamp = 40
sAcc = 44
SPIN_MAX = 200000

LDSCH = [0, 1, 6, 7]

def smf(p, acc, A, B, idx):
    p('v_smfmac_f32_16x16x64_bf16 %s, %s, %s, %s' % (v(acc, 4), v(A, 4), B, v(idx)))

def w_lds_addr(u, half):
    slot, T = u >> 2, u & 3
    off = slot * 32768 + T * 2048 + half * 1024
    return (vWrd0, off) if slot < 2 else (vWrd1, off - 65536)

def read_w(p, u, land, half):
    r, off = w_lds_addr(u, half)
    p('ds_read_b128 %s, %s offset:%d' % (v(LAND + land * 8 + half * 4, 4), v(r), off))

RAW = [60, 62, 64, 66, 68, 70, 72, 74, 88, 90, 92, 94, 96, 98, 100]
def lstamp(p, k, enable):
    if enable == 'light': p.raw('    s_memtime s[%d:%d]' % (RAW[k], RAW[k] + 1))
    if enable == 'real': p.raw('    s_memrealtime s[%d:%d]' % (RAW[k], RAW[k] + 1))
def lstamp_save(p, enable):
    if enable not in ('light', 'real'): return
    p.raw('    s_cmp_eq_u32 %s, 31' % s(sStep))
    for k in range(15): p.raw('    s_cselect_b32 %s, s%d, %s' % (s(sAcc + k), RAW[k], s(sAcc + k)))
def stamp(p, k, enable):
    if enable in ('light', 'real'): return
    if not enable or (enable == 'total' and k != 4): return
    if enable == 'abs':
        p.raw('    s_memtime %s' % s(sStamp + 2, 2))
        p.raw('    s_waitcnt lgkmcnt(0)')
        p.lgkm = []
        p.raw('    s_cmp_eq_u32 %s, 30' % s(sStep))
        p.raw('    s_cselect_b32 %s, %s, %s' % (s(sAcc + k), s(sStamp + 2), s(sAcc + k)))
        return
    if k > 4: return
    p.raw('    s_memtime %s' % s(sStamp + 2, 2))
    p.raw('    s_waitcnt lgkmcnt(0)')
    p.lgkm = []
    p.raw('    s_sub_u32 %s, %s, %s' % (s(sTmp3), s(sStamp + 2), s(sStamp)))
    p.raw('    s_add_u32 %s, %s, %s' % (s(sAcc + k), s(sAcc + k), s(sTmp3)))
    p.raw('    s_mov_b32 %s, %s' % (s(sStamp), s(sStamp + 2)))


def optint(opt, name, default):
    return int(opt[opt.index(name) + 1]) if name in opt else default
def delay(p, cycles):
    n = cycles // 4
    while n > 0:
        k = min(n, 16); p('s_nop %d' % (k - 1)); n -= k

def chain_setup(p):
    p('s_load_dwordx2 s[4:5], s[0:1], %d' % KA_WS)
    p('s_load_dwordx2 %s, s[0:1], %d' % (s(sDBG, 2), KA_DBG))
    p('v_lshrrev_b32 v1, 6, v0')
    p('v_readfirstlane_b32 %s, v1' % s(sW))
    p('v_and_b32 v0, 63, v0')
    p('s_waitcnt lgkmcnt(0)')
    p('s_mov_b32 s6, 0x%x' % WS_SIZE)
    p('s_mov_b32 s7, 0x20000')
    L = v(vLane)
    t0, t1, t2 = v(vT0), v(vT1), v(vT2)
    p('v_lshlrev_b32 %s, 4, %s' % (v(vL16), L))
    p('v_bfe_u32 %s, %s, 1, 1' % (t0, L))
    p('v_mov_b32 %s, 0x4444' % t1)
    p('v_mov_b32 %s, 0xeeee' % t2)
    p('v_cmp_eq_u32 vcc, 1, %s' % t0)
    p('v_cndmask_b32 %s, %s, %s, vcc' % (v(vIdxQ), t1, t2))
    p('v_bfe_u32 %s, %s, 3, 1' % (t0, L))
    p('v_cmp_eq_u32 vcc, 1, %s' % t0)
    p('v_cndmask_b32 %s, %s, %s, vcc' % (v(vIdxO), t1, t2))
    p('v_bfe_u32 %s, %s, 2, 2' % (t0, L))
    p('v_lshlrev_b32 %s, 1, %s' % (t0, t0))
    p('v_and_b32 %s, 1, %s' % (t1, L))
    p('v_add_u32 %s, %s, %s' % (t0, t0, t1))
    p('v_mul_u32_u24 %s, %d, %s' % (t0, M_RS, t0))
    p('v_lshrrev_b32 %s, 4, %s' % (t1, L))
    p('v_lshlrev_b32 %s, 5, %s' % (t1, t1))
    p('v_add_u32 %s, %s, %s' % (t0, t0, t1))
    p('v_bfe_u32 %s, %s, 1, 1' % (t1, L))
    p('v_lshlrev_b32 %s, 4, %s' % (t1, t1))
    p('v_add_u32 %s, %s, %s' % (t0, t0, t1))
    p('v_add_u32 %s, %d, %s' % (v(vMrd), M_IMG, t0))
    p('s_lshl_b32 %s, %s, 13' % (s(sTmp), s(sW)))
    p('s_add_u32 %s, %s, %d' % (s(sTmp), s(sTmp), W_L))
    p('v_add_u32 %s, %s, %s' % (v(vWrd0), s(sTmp), v(vL16)))
    p('v_add_u32 %s, 0x10000, %s' % (v(vWrd1), v(vWrd0)))
    p('v_and_b32 %s, 15, %s' % (t0, L))
    p('s_lshl_b32 %s, %s, 5' % (s(sTmp), s(sW)))
    p('v_add_u32 %s, %s, %s' % (t0, s(sTmp), t0))
    p('v_lshrrev_b32 %s, 4, %s' % (t1, L))
    p('v_lshlrev_b32 %s, 4, %s' % (t2, t0))
    p('v_lshl_add_u32 %s, %s, 2, %s' % (t2, t1, t2))
    p('v_add_u32 %s, %d, %s' % (v(vQwr), Q_IMG, t2))
    p('v_lshlrev_b32 %s, 5, %s' % (t2, t0))
    p('v_lshl_add_u32 %s, %s, 3, %s' % (t2, t1, t2))
    p('v_add_u32 %s, %d, %s' % (v(vKwr), K_IMG, t2))
    p('v_lshrrev_b32 %s, 2, %s' % (t0, L))
    p('v_and_b32 %s, 1, %s' % (t1, L))
    p('v_lshlrev_b32 %s, 4, %s' % (t2, t0))
    p('v_lshl_add_u32 %s, %s, 3, %s' % (t2, t1, t2))
    p('v_add_u32 %s, %d, %s' % (v(vQtr), Q_IMG, t2))
    p('v_and_b32 %s, 3, %s' % (t1, L))
    p('v_lshlrev_b32 %s, 5, %s' % (t2, t0))
    p('v_lshl_add_u32 %s, %s, 3, %s' % (t2, t1, t2))
    p('v_add_u32 %s, %d, %s' % (v(vKtr), K_IMG, t2))
    p('s_lshl_b32 %s, %s, 11' % (s(sTmp), s(sW)))
    p('s_add_u32 %s, %s, %d' % (s(sM0vx), s(sTmp), VX_L))
    p('s_add_u32 %s, %s, %d' % (s(sM0kx), s(sTmp), KX_L))
    p('v_add_u32 %s, %s, %s' % (v(vVX), s(sM0vx), v(vL16)))
    p('v_lshrrev_b32 %s, 5, %s' % (t0, L))
    p('v_lshlrev_b32 %s, 2, %s' % (t0, t0))
    p('v_bfe_u32 %s, %s, 2, 2' % (t1, L))
    p('v_add_u32 %s, %s, %s' % (t0, t0, t1))
    p('s_lshl_b32 %s, %s, 3' % (s(sTmp), s(sW)))
    p('v_add_u32 %s, %s, %s' % (t0, s(sTmp), t0))
    p('v_lshlrev_b32 %s, 13, %s' % (t0, t0))
    p('v_bfe_u32 %s, %s, 4, 1' % (t1, L))
    p('v_lshlrev_b32 %s, 2, %s' % (t1, t1))
    p('v_and_b32 %s, 3, %s' % (t2, L))
    p('v_add_u32 %s, %s, %s' % (t1, t1, t2))
    p('v_lshlrev_b32 %s, 4, %s' % (t1, t1))
    p('s_lshl_b32 %s, %s, 7' % (s(sTmp), s(sH)))
    p('v_add3_u32 %s, %s, %s, %s' % (v(vPst), t0, t1, s(sTmp)))
    p('v_bfe_u32 %s, %s, 2, 1' % (t0, L))
    p('s_and_b32 %s, %s, 2' % (s(sTmp), s(sW)))
    p('v_add_u32 %s, %s, %s' % (t0, s(sTmp), t0))
    p('v_lshlrev_b32 %s, 5, %s' % (t0, t0))
    p('v_add_u32 %s, %s, %s' % (t0, s(sH), t0))
    p('v_lshlrev_b32 %s, 6, %s' % (t0, t0))
    p('v_and_b32 %s, 3, %s' % (t1, L))
    p('v_lshlrev_b32 %s, 1, %s' % (t1, t1))
    p('s_and_b32 %s, %s, 1' % (s(sTmp), s(sW)))
    p('v_add_u32 %s, %s, %s' % (t1, s(sTmp), t1))
    p('v_lshl_add_u32 %s, %s, 3, %s' % (t0, t1, t0))
    p('v_bfe_u32 %s, %s, 4, 1' % (t1, L))
    p('v_lshl_add_u32 %s, %s, 2, %s' % (t0, t1, t0))
    p('v_and_b32 %s, 0x28, %s' % (t1, L))
    p('v_mov_b32 %s, 0x%x' % (t2, OOB))
    p('v_cmp_eq_u32 vcc, 0, %s' % t1)
    p('v_cndmask_b32 %s, %s, %s, vcc' % (v(vMst), t2, t0))
    p('v_lshrrev_b32 %s, 2, %s' % (t0, L))
    p('v_lshlrev_b32 %s, 7, %s' % (t0, t0))
    p('v_and_b32 %s, 3, %s' % (t1, L))
    p('v_lshl_add_u32 %s, %s, 4, %s' % (t0, t1, t0))
    p('s_and_b32 %s, %s, 1' % (s(sTmp), s(sW)))
    p('s_lshl_b32 %s, %s, 6' % (s(sTmp), s(sTmp)))
    p('v_add_u32 %s, %s, %s' % (v(vPld), s(sTmp), t0))
    p('s_lshl_b32 %s, %s, 11' % (s(sTmp), s(sW)))
    p('v_add_u32 %s, %s, %s' % (v(vMld), s(sTmp), v(vL16)))
    p('v_and_b32 %s, 3, %s' % (t0, L))
    p('v_mul_u32_u24 %s, %d, %s' % (t0, M_RS, t0))
    p('v_lshrrev_b32 %s, 2, %s' % (t1, L))
    p('v_lshl_add_u32 %s, %s, 3, %s' % (t0, t1, t0))
    p('s_lshl_b32 %s, %s, 8' % (s(sTmp), s(sW)))
    p('s_add_u32 %s, %s, %d' % (s(sTmp), s(sTmp), M_IMG))
    p('v_add_u32 %s, %s, %s' % (v(vMwr), s(sTmp), t0))
    p('v_and_b32 %s, 31, %s' % (t0, L))
    p('v_lshlrev_b32 %s, 6, %s' % (t0, t0))
    p('s_lshl_b32 %s, %s, 11' % (s(sTmp), s(sW)))
    p('v_add_u32 %s, %s, %s' % (t0, s(sTmp), t0))
    p('v_lshrrev_b32 %s, 5, %s' % (t1, L))
    p('v_mul_u32_u24 %s, 0x100, %s' % (t1, t1))
    p('v_lshlrev_b32 %s, 16, %s' % (t1, t1))
    p('v_add_u32 %s, %s, %s' % (v(vTouch), t0, t1))
    p('v_mov_b32 %s, -1' % v(vNeg1))
    p('s_mov_b32 %s, 0x3e0293ee' % s(sScale))
    p('s_mov_b32 %s, 0x3e0293ee' % s(sScale2))
    p('s_mov_b32 %s, 0x3e0293ee' % s(sScale2 + 1))
    p('s_mov_b32 %s, 0' % s(sNfail))

def chain_load_weights(p):
    vD = [24, 25, 26, 27]
    vE = [28, 29, 30, 31]
    vA0, vA1, vAo = 32, 33, 34
    L = v(vLane); t0, t1, t2 = v(vT0), v(vT1), v(vT2)
    p('s_load_dwordx4 s[48:51], s[0:1], %d' % KA_WQ)
    p('s_load_dwordx4 s[52:55], s[0:1], %d' % KA_WV)
    for q in range(4):
        p('v_bfe_u32 %s, %s, 4, 1' % (t0, L))
        p('v_lshlrev_b32 %s, 1, %s' % (t0, t0))
        p('v_and_b32 %s, 15, %s' % (t1, L))
        p('v_xor_b32 %s, %s, %s' % (t0, t0, t1))
        p('v_xor_b32 %s, %d, %s' % (t0, 4 * (q & 1) + 8 * (q >> 1), t0))
        p('v_lshlrev_b32 %s, 4, %s' % (t0, t0))
        p('v_lshrrev_b32 %s, 4, %s' % (t1, L))
        p('v_lshl_add_u32 %s, %s, 13, %s' % (v(vD[q]), t1, t0))
    p('s_lshr_b32 %s, %s, 1' % (s(sTmp), s(sW)))
    p('s_lshl_b32 %s, %s, 3' % (s(sTmp), s(sTmp)))
    for q in range(2):
        p('v_xor_b32 %s, %d, %s' % (t0, 4 * q, L))
        p('v_xor_b32 %s, %s, %s' % (t0, s(sTmp), t0))
        p('v_lshlrev_b32 %s, 4, %s' % (v(vE[q]), t0))
    for t, reg in ((0, vA0), (1, vA1)):
        p('v_bfe_u32 %s, %s, 5, 1' % (t0, L))
        p('v_lshlrev_b32 %s, 4, %s' % (t0, t0))
        p('v_bfe_u32 %s, %s, 4, 1' % (t1, L))
        p('v_lshl_add_u32 %s, %s, 2, %s' % (t0, t1, t0))
        p('v_bfe_u32 %s, %s, 3, 1' % (t1, L))
        p('v_lshl_add_u32 %s, %s, 3, %s' % (t0, t1, t0))
        p('v_bfe_u32 %s, %s, 2, 1' % (t1, L))
        p('v_add_u32 %s, %s, %s' % (t0, t0, t1))
        p('v_lshlrev_b32 %s, 8, %s' % (v(reg), t0))
        p('v_bfe_u32 %s, %s, 2, 1' % (t0, L))
        p('v_lshlrev_b32 %s, 1, %s' % (t0, t0))
        p('v_bfe_u32 %s, %s, 4, 1' % (t1, L))
        p('v_lshl_add_u32 %s, %s, 2, %s' % (t0, t1, t0))
        p('v_bfe_u32 %s, %s, 3, 1' % (t1, L))
        p('v_lshl_add_u32 %s, %s, 3, %s' % (t0, t1, t0))
        p('v_bfe_u32 %s, %s, 1, 1' % (t1, L))
        p('s_lshl_b32 %s, %s, 2' % (s(sTmp), s(sW)))
        p('s_add_u32 %s, %s, %d' % (s(sTmp), s(sTmp), 2 * t))
        p('v_add_u32 %s, %s, %s' % (t1, s(sTmp), t1))
        p('v_xor_b32 %s, %s, %s' % (t0, t0, t1))
        p('v_lshlrev_b32 %s, 4, %s' % (t0, t0))
        p('v_and_b32 %s, 1, %s' % (t1, L))
        p('v_lshl_add_u32 %s, %s, 3, %s' % (t0, t1, t0))
        p('v_add_u32 %s, %s, %s' % (v(reg), v(reg), t0))
    p('v_bfe_u32 %s, %s, 4, 1' % (t0, L))
    p('v_lshlrev_b32 %s, 4, %s' % (t0, t0))
    p('v_bfe_u32 %s, %s, 5, 1' % (t1, L))
    p('v_lshl_add_u32 %s, %s, 2, %s' % (t0, t1, t0))
    p('v_bfe_u32 %s, %s, 2, 1' % (t1, L))
    p('v_add_u32 %s, %s, %s' % (t0, t0, t1))
    p('v_lshlrev_b32 %s, 10, %s' % (v(vAo), t0))
    p('v_bfe_u32 %s, %s, 2, 1' % (t0, L))
    p('v_lshlrev_b32 %s, 2, %s' % (t0, t0))
    p('v_bfe_u32 %s, %s, 4, 1' % (t1, L))
    p('v_lshl_add_u32 %s, %s, 3, %s' % (t0, t1, t0))
    p('v_bfe_u32 %s, %s, 3, 1' % (t1, L))
    p('v_lshlrev_b32 %s, 1, %s' % (t1, t1))
    p('v_bfe_u32 %s, %s, 1, 1' % (t2, L))
    p('v_add_u32 %s, %s, %s' % (t1, t1, t2))
    p('s_lshl_b32 %s, %s, 2' % (s(sTmp), s(sW)))
    p('v_add_u32 %s, %s, %s' % (t1, s(sTmp), t1))
    p('v_xor_b32 %s, %s, %s' % (t0, t0, t1))
    p('v_lshlrev_b32 %s, 4, %s' % (t0, t0))
    p('v_and_b32 %s, 1, %s' % (t1, L))
    p('v_lshl_add_u32 %s, %s, 3, %s' % (t0, t1, t0))
    p('v_add_u32 %s, %s, %s' % (v(vAo), v(vAo), t0))
    p('s_waitcnt lgkmcnt(0)')
    for k, (lo, base) in enumerate(((48, 56), (50, 60), (52, 64), (54, 68))):
        p('s_mov_b32 s%d, s%d' % (base, lo))
        p('s_mov_b32 s%d, s%d' % (base + 1, lo + 1))
        p('s_mov_b32 s%d, 0x400000' % (base + 2))
        p('s_mov_b32 s%d, 0x20000' % (base + 3))
    p('s_cmp_lt_u32 %s, 2' % s(sW))
    p('s_cselect_b32 s72, s56, s60')
    p('s_cselect_b32 s73, s57, s61')
    p('s_mov_b32 s74, 0x400000')
    p('s_mov_b32 s75, 0x20000')
    slot_base = lambda n: [W_L + 3 * 32768, 0, W_L, W_L + 32768, W_L + 2 * 32768][n % 5]
    QKCH = [2, 3, 4, 5] + LDSCH
    def issue(n):
        base = slot_base(n)
        sOff, sM = sTmp, sTmp2
        if n < 4:
            p('s_lshl_b32 %s, %s, 5' % (s(sOff), s(sW)))
            p('s_add_u32 %s, %s, %d' % (s(sOff), s(sOff), 128 * n))
            p('s_lshl_b32 %s, %s, 13' % (s(sOff), s(sOff)))
            p('s_lshl_b32 %s, %s, 8' % (s(sTmp3), s(sH)))
            p('s_add_u32 %s, %s, %s' % (s(sOff), s(sOff), s(sTmp3)))
            p('s_lshl_b32 %s, %s, 13' % (s(sM), s(sW)))
            p('s_add_u32 %s, %s, %d' % (s(sM), s(sM), base))
            for k in range(8):
                p('s_mov_b32 m0, %s' % s(sM))
                p('s_add_u32 %s, %s, 1024' % (s(sM), s(sM)))
                p('buffer_load_dwordx4 %s, s[64:67], %s offen lds' % (v(vD[k & 3]), s(sOff)))
                p('s_add_u32 %s, %s, %d' % (s(sOff), s(sOff), 4 * 8192))
        elif n < 8:
            ec = n - 4
            p('s_lshl_b32 %s, %s, 7' % (s(sOff), s(sH)))
            p('s_lshl_b32 %s, %s, 3' % (s(sTmp3), s(sW)))
            p('s_add_u32 %s, %s, %s' % (s(sOff), s(sOff), s(sTmp3)))
            p('s_add_u32 %s, %s, %d' % (s(sOff), s(sOff), 32 * ec))
            p('s_lshl_b32 %s, %s, 10' % (s(sOff), s(sOff)))
            p('s_lshl_b32 %s, %s, 13' % (s(sM), s(sW)))
            p('s_add_u32 %s, %s, %d' % (s(sM), s(sM), base))
            for k in range(8):
                p('s_mov_b32 m0, %s' % s(sM))
                p('s_add_u32 %s, %s, 1024' % (s(sM), s(sM)))
                p('buffer_load_dwordx4 %s, s[68:71], %s offen lds' % (v(vE[k & 1]), s(sOff)))
                p('s_add_u32 %s, %s, 1024' % (s(sOff), s(sOff)))
        else:
            ch = QKCH[n - 8]
            p('s_and_b32 %s, %s, 1' % (s(sOff), s(sW)))
            p('s_lshl_b32 %s, %s, 5' % (s(sOff), s(sOff)))
            p('s_add_u32 %s, %s, %d' % (s(sOff), s(sOff), 64 * ch))
            p('s_lshl_b32 %s, %s, 13' % (s(sOff), s(sOff)))
            p('s_lshl_b32 %s, %s, 8' % (s(sTmp3), s(sH)))
            p('s_add_u32 %s, %s, %s' % (s(sOff), s(sOff), s(sTmp3)))
            p('s_lshl_b32 %s, %s, 13' % (s(sM), s(sW)))
            p('s_add_u32 %s, %s, %d' % (s(sM), s(sM), base))
            for k in range(8):
                p('s_mov_b32 m0, %s' % s(sM))
                p('s_add_u32 %s, %s, 1024' % (s(sM), s(sM)))
                p('buffer_load_dwordx4 %s, s[72:75], %s offen lds' % (v(vD[k & 3]), s(sOff)))
                p('s_add_u32 %s, %s, %d' % (s(sOff), s(sOff), 4 * 8192))
    def consume(n):
        base = slot_base(n)
        va0, va1, vao = 36, 37, 38
        if n < 4:
            p('v_add_u32 %s, %d, %s' % (v(va0), base, v(vA0)))
            p('v_add_u32 %s, %d, %s' % (v(va1), base, v(vA1)))
            for cc in range(2):
                c = 2 * n + cc
                for t in range(2):
                    for r in (0, 2, 4, 6):
                        off = (cc * 64 + 32 * (r >> 2) + 2 * ((r >> 1) & 1)) * 256
                        p('ds_read_b64_tr_b16 %s, %s offset:%d' % (a((c * 2 + t) * 8 + r, 2), v(va0 if t == 0 else va1), off))
        elif n < 8:
            ec = n - 4
            p('v_add_u32 %s, %d, %s' % (v(vao), base, v(vAo)))
            for wv in range(4):
                if wv < 3:
                    p('s_cmp_lg_u32 %s, %d' % (s(sW), wv))
                    p('s_cbranch_scc1 L_WO%d_%d' % (ec, wv + 1))
                for pp in range(4):
                    for r in (0, 2, 4, 6):
                        off = (8 * (r >> 2) + 2 * ((r >> 1) & 1)) * 1024 + pp * 256
                        p('ds_read_b64_tr_b16 %s, %s offset:%d' % (a(128 + (pp * 4 + (ec ^ wv)) * 8 + r, 2), v(vao), off))
                if wv < 3:
                    p('s_branch L_WO%d_E' % ec)
                    p.label('L_WO%d_%d' % (ec, wv + 1))
            p.label('L_WO%d_E' % ec)
        else:
            p('v_add_u32 %s, %d, %s' % (v(va0), base, v(vA0)))
            p('v_add_u32 %s, %d, %s' % (v(va1), base, v(vA1)))
            j = n - 8
            for T in range(4):
                mat, t = T >> 1, T & 1
                for r in (0, 2, 4, 6):
                    off = (mat * 64 + 32 * (r >> 2) + 2 * ((r >> 1) & 1)) * 256
                    dst = WQK + (j * 4 + T) * 8 + r if j < 4 else LAND + T * 8 + r
                    p('ds_read_b64_tr_b16 %s, %s offset:%d' % (v(dst, 2), v(va0 if t == 0 else va1), off))
    for n in range(5): issue(n)
    for n in range(16):
        inflight = min(16, n + 5) - n - 1
        p.wait(vm=8 * inflight)
        p('s_barrier')
        consume(n)
        p.wait(lgkm=0)
        p('s_barrier')
        if n >= 12:
            slot = n - 12
            r = vWrd0 if slot < 2 else vWrd1
            for T in range(4):
                for half in range(2):
                    off = slot * 32768 + T * 2048 + half * 1024 - (0 if slot < 2 else 65536)
                    p('ds_write_b128 %s, %s offset:%d' % (v(r), v(LAND + T * 8 + half * 4, 4), off))
        if n + 5 < 16: issue(n + 5)
    p.wait(lgkm=0)


def chain_init_globals(p):
    L = v(vLane); t0, t1, t2 = v(vT0), v(vT1), v(vT2)
    for r in range(4): p('v_mov_b32 %s, 0' % v(MF + r))
    p('s_lshl_b32 %s, %s, 13' % (s(sTmp), s(sH)))
    p('s_lshl_b32 %s, %s, 11' % (s(sTmp2), s(sW)))
    p('s_add_u32 %s, %s, %s' % (s(sTmp), s(sTmp), s(sTmp2)))
    p('s_add_u32 %s, %s, 0x%x' % (s(sTmp), s(sTmp), WS_PART))
    p('s_add_u32 %s, %s, 0x40000' % (s(sTmp2), s(sTmp)))
    for k in range(2):
        p('buffer_store_dwordx4 %s, %s, s[4:7], %s offen offset:%d' % (v(MF, 4), v(vL16), s(sTmp), k * 1024))
        p('buffer_store_dwordx4 %s, %s, s[4:7], %s offen offset:%d' % (v(MF, 4), v(vL16), s(sTmp2), k * 1024))
    for slot in range(3):
        p('s_mov_b32 %s, 0x%x' % (s(sTmp), WS_M + slot * 8192))
        p('buffer_store_dword %s, %s, s[4:7], %s offen' % (v(vNeg1), v(vMst), s(sTmp)))

def chain_init_mem0(p):
    L = v(vLane); t0, t1, t2 = v(vT0), v(vT1), v(vT2)
    p('s_load_dwordx2 s[48:49], s[0:1], %d' % KA_MEM0)
    p('v_lshrrev_b32 %s, 3, %s' % (t0, L))
    p('v_and_b32 %s, 7, %s' % (t1, L))
    p('v_lshlrev_b32 %s, 4, %s' % (t1, t1))
    p('s_lshl_b32 %s, %s, 8' % (s(sTmp), s(sW)))
    p('v_add_u32 %s, %s, %s' % (t1, s(sTmp), t1))
    p('v_lshl_add_u32 %s, %s, 10, %s' % (t2, t0, t1))
    p('v_mul_u32_u24 %s, %d, %s' % (t0, M_RS, t0))
    p('v_add_u32 %s, %s, %s' % (t0, t0, t1))
    p('v_add_u32 %s, %d, %s' % (t0, M_IMG, t0))
    p('s_waitcnt lgkmcnt(0)')
    p('s_mov_b32 s50, 8192')
    p('s_mov_b32 s51, 0x20000')
    p('buffer_load_dwordx4 %s, %s, s[48:51], 0 offen' % (v(MF + 4, 4), t2))
    p('buffer_load_dwordx4 %s, %s, s[48:51], 0 offen offset:128' % (v(MF + 8, 4), t2))
    p('ds_write_b128 %s, %s' % (t0, v(MF + 4, 4)))
    p('ds_write_b128 %s, %s offset:128' % (t0, v(MF + 8, 4)))
    p.wait(vm=0, lgkm=0)

def chain_init_comm(p):
    chain_init_globals(p)
    chain_init_mem0(p)

def chain_loop(p, nsteps=64, stamps=False, opt=()):
    L = v(vLane); t0, t1, t2 = v(vT0), v(vT1), v(vT2)
    SC = '' if 'nosc1' in opt else ' sc1'
    p('s_mov_b32 %s, 0' % s(sStep))
    p('s_mov_b32 %s, 0' % s(sFlagVal))
    p('s_mov_b32 %s, 1' % s(sTag))
    for P in range(2):
        p('s_mov_b32 %s, 0x%x' % (s(sPst + P), WS_PART + P * 4096))
    p('s_lshl_b32 %s, %s, 13' % (s(sPld), s(sH)))
    p('s_lshr_b32 %s, %s, 1' % (s(sTmp), s(sW)))
    p('s_lshl_b32 %s, %s, 12' % (s(sTmp), s(sTmp)))
    p('s_add_u32 %s, %s, %s' % (s(sPld), s(sPld), s(sTmp)))
    p('s_add_u32 %s, %s, 0x%x' % (s(sPld), s(sPld), WS_PART))
    p('s_mov_b32 %s, 0x%x' % (s(sMrd), WS_M))
    p('s_mov_b32 %s, 0x%x' % (s(sMwr), WS_M + 8192))
    p('s_mov_b32 %s, 0x%x' % (s(sMpo), WS_M + 16384))
    p('s_lshl_b32 %s, %s, 13' % (s(sTmp), s(sH)))
    p('s_lshl_b32 %s, %s, 11' % (s(sTmp2), s(sW)))
    p('s_add_u32 %s, %s, %s' % (s(sKX), s(sTmp), s(sTmp2)))
    p('s_add_u32 %s, %s, 0x%x' % (s(sVX), s(sKX), WS_VX))
    p('s_add_u32 %s, %s, 0x%x' % (s(sKXn), s(sTmp), 32 * 8192))
    p('s_lshl_b32 %s, %s, 12' % (s(sTmp), s(sH)))
    p('s_lshl_b32 %s, %s, 10' % (s(sTmp2), s(sW)))
    p('s_add_u32 %s, %s, %s' % (s(sTmp), s(sTmp), s(sTmp2)))
    LAG = 0 if 'pubW7' in opt else 32 * 4096
    p('s_add_u32 %s, %s, 0x%x' % (s(sKM), s(sTmp), WS_KM - LAG))
    p('s_add_u32 %s, %s, 0x%x' % (s(sVM), s(sTmp), WS_VM - LAG))
    p('s_lshl_b32 %s, %s, 7' % (s(sTmp), s(sH)))
    p('s_add_u32 %s, %s, 0x%x' % (s(sFlagOff), s(sTmp), WS_FLAG))
    p('s_lshl_b32 %s, %s, 10' % (s(sW10), s(sW)))
    p('v_or_b32 %s, %s, %s' % (t0, s(sW), L))
    p('v_mov_b32 %s, 0x%x' % (t1, OOB))
    p('v_cmp_eq_u32 vcc, 0, %s' % t0)
    p('v_cndmask_b32 %s, %s, 0, vcc' % (v(vFlagOff), t1))
    if 'kvflags' in opt:
        p('s_lshl_b32 %s, %s, 9' % (s(sTmp), s(sH)))
        p('s_add_u32 %s, %s, 0x%x' % (s(sKVbase), s(sTmp), WS_QFLAG))
        for tg in range(2):
            p('s_add_u32 %s, %s, %d' % (s(sKVoff), s(sKVbase), 128 * tg))
            p('s_mov_b32 %s, 0' % s(sCnt))
            p.label('L_KV0%d' % tg)
            p('buffer_load_dword %s, off, s[4:7], %s sc1' % (v(vKVf), s(sKVoff)))
            p.wait(vm=0)
            p('v_readfirstlane_b32 %s, %s' % (s(sTmp), v(vKVf)))
            p('s_add_u32 %s, %s, 1' % (s(sCnt), s(sCnt)))
            p('s_cmp_gt_u32 %s, %d' % (s(sCnt), SPIN_MAX * 4))
            p('s_cbranch_scc1 L_BAIL')
            p('s_cmp_lt_u32 %s, 1' % s(sTmp))
            p('s_cbranch_scc1 L_KV0%d' % tg)
            p.forget()
        p('s_add_u32 %s, %s, 256' % (s(sKVoff), s(sKVbase)))
        p('s_mov_b32 %s, 1' % s(sKVneed))
        p('s_mov_b32 %s, 0' % s(sCnt))
    p('s_mov_b32 m0, %s' % s(sM0kx))
    p('s_nop 0')
    p('buffer_load_dwordx4 %s, s[4:7], %s offen lds' % (v(vL16), s(sKX)))
    p('buffer_load_dwordx4 %s, s[4:7], %s offen offset:1024 lds' % (v(vL16), s(sKX)))
    PRE = [(0, 0), (0, 1), (0, 2), (0, 3), (1, 0), (1, 1)]
    if 'qfirst' in opt: PRE = [(0, 0), (0, 1), (1, 0), (1, 1), (2, 0), (2, 1)]
    REF = [(2, 0), (2, 1), (3, 0), (3, 1), (1, 2), (1, 3), (2, 2), (2, 3), (3, 2), (3, 3)]
    def rd_w(st, land, half): read_w(p, st[0] * 4 + st[1], land, half)
    for u in range(6):
        rd_w(PRE[u], u, 0); rd_w(PRE[u], u, 1)
    for r in range(0, 24, 2): p('v_mov_b64 %s, 0' % v(AQK + r, 2))
    p.wait(vm=0, lgkm=0)
    if stamps:
        for k in range(15): p('s_mov_b32 %s, 0' % s(sAcc + k))
        p.raw('    s_memtime %s' % s(sStamp, 2)); p.raw('    s_waitcnt lgkmcnt(0)')
    p('s_barrier')
    p('s_branch L_T0')
    p.label('L_STEP', align=6)
    p.forget()
    PUB = MF + 16
    VA = MF + 20
    G = MF; GB = MF + 24
    def gpoll(R):
        p('buffer_load_dwordx4 %s, %s, s[4:7], %s offen sc1' % (v(R, 4), v(vMld), s(sMrd)))
        p('buffer_load_dwordx4 %s, %s, s[4:7], %s offen offset:1024 sc1' % (v(R + 4, 4), v(vMld), s(sMrd)))
    def gcheck(R, fail):
        for k in range(2):
            for hh in range(2):
                p('ds_write_b64 %s, %s offset:%d' % (v(vMwr), v(R + 4 * k + 2 * hh, 2), hh * 4 * M_RS + k * 128))
        p('v_max3_u32 %s, %s, %s, %s' % (t0, v(R), v(R + 1), v(R + 2)))
        p('v_max3_u32 %s, %s, %s, %s' % (t1, v(R + 3), v(R + 4), v(R + 5)))
        p('v_max3_u32 %s, %s, %s, %s' % (t0, t0, v(R + 6), v(R + 7)))
        p('v_max_u32 %s, %s, %s' % (t0, t0, t1))
        p('v_cmp_eq_u32 vcc, -1, %s' % t0)
        p('s_cbranch_vccnz %s' % fail)
    DG = optint(opt, 'dg', 0)
    gpoll(G)
    for r in range(0, 24, 2): p('v_mov_b64 %s, 0' % v(AQK + r, 2))
    if DG:
        delay(p, DG - 48)
        gpoll(GB)
        p.wait(vm=2)
        gcheck(G, 'L_GFAILA')
    else:
        p.label('L_GCHECK')
        p.wait(vm=0)
        gcheck(G, 'L_GFAIL')
    p.label('L_GOK')
    lstamp(p, 14, stamps)
    def pub():
        p('buffer_store_dwordx4 %s, %s, s[4:7], %s offen%s' % (v(PUB, 4), v(vL16), s(sKM), SC))
        p('buffer_store_dwordx4 %s, %s, s[4:7], %s offen%s' % (v(VA, 4), v(vL16), s(sVM), SC))
    if 'nopub' not in opt and 'pubT0' not in opt and 'pubW7' not in opt: pub()
    p.wait(lgkm=0)
    stamp(p, 0, stamps)
    p('s_barrier')
    p.label('L_T0')
    p.forget()
    lstamp_save(p, stamps)
    lstamp(p, 0, stamps)
    if 'qfirst' not in opt:
        def rd_m(c): p('ds_read_b128 %s, %s offset:%d' % (v(MF + 4 * c, 4), v(vMrd), c * 128))
        DGx = optint(opt, 'dg', 0)
        for c in ((0, 1, 2, 3) if DGx else (0, 1, 2, 6)): rd_m(c)
        p('s_mov_b32 m0, %s' % s(sM0vx))
        p('v_mov_b32 %s, %s' % (v(vFlag), s(sFlagVal)))
        p('buffer_load_dwordx4 %s, s[4:7], %s offen lds' % (v(vL16), s(sVX)))
        p('buffer_load_dwordx4 %s, s[4:7], %s offen offset:1024 lds' % (v(vL16), s(sVX)))
        if 'pubT0' in opt: pub()
        lstamp(p, 1, stamps)
        def U(i): return (LDSCH[PRE[i][0]], PRE[i][1], v(LAND + i * 8, 8))
        def F(i): return (LDSCH[REF[i][0]], REF[i][1], v(LAND + (i % 6) * 8, 8))
        def R(c, T): return (c, T, v(WQK + ((c - 2) * 4 + T) * 8, 8))
        order = [U(0), U(1), U(2), U(3), U(4), U(5), R(2, 0), R(2, 1), F(0), R(3, 0), F(1), R(3, 1), F(2), R(4, 0), R(4, 1), F(3),
                 R(5, 0), R(5, 1), F(4), R(2, 2), F(5), R(2, 3), F(6), R(3, 2), F(7), R(3, 3), F(8), R(4, 2), F(9), R(5, 2), R(4, 3), R(5, 3)]
        def refill(j, half):
            def rf(): rd_w(REF[j], j % 6, half)
            return rf
        def rd_m_late():
            if DGx:
                p.wait(vm=len(p.vm))
                rd_m(6)
            else: rd_m(3)
        fill = [refill(0, 0), refill(0, 1), rd_m_late, refill(1, 0), refill(1, 1), lambda: rd_m(7),
                refill(2, 0), refill(2, 1), lambda: rd_m(4), refill(3, 0), refill(3, 1), lambda: rd_m(5)]
        for j in range(4, 10): fill += [refill(j, 0), refill(j, 1)]
        def fold_add(T): p('v_pk_add_f32 %s, %s, %s' % (v(AQK + 4 * T, 2), v(AQK + 4 * T, 2), v(AQK + 4 * T + 2, 2)))
        def fold_cvt(T): p('v_cvt_pk_bf16_f32 %s, %s, %s' % (v(AQK + 4 * T), v(AQK + 4 * T), v(AQK + 4 * T + 1)))
        def fold_wr(T):
            if T < 2: p('ds_write_b32 %s, %s offset:%d' % (v(vQwr), v(AQK + 4 * T), T * 256))
            else: p('ds_write2_b32 %s, %s, %s offset0:%d offset1:%d' % (v(vKwr), v(AQK + 4 * T), v(AQK + 4 * T), (T - 2) * 128, (T - 2) * 128 + 1))
        XFr = [LAND + 32, LAND + 40, LAND + 0, LAND + 8]
        QR = LAND + 16
        KR = LAND + 24
        def rd_x(ks, jt): p('ds_read_b128 %s, %s offset:%d' % (v(XFr[ks] + 4 * jt, 4), v(vL16), KX_L + jt * 4096 + ks * 1024))
        fill += [lambda: rd_x(0, 0), lambda: rd_x(0, 1), lambda: rd_x(1, 0), lambda: rd_x(1, 1),
                 lambda: fold_add(0), lambda: fold_add(1), lambda: fold_cvt(0), lambda: fold_cvt(1)]
        for n, (c, T, B) in enumerate(order):
            smf(p, AQK + 4 * T, MF + 4 * c, B, vIdxQ)
            if n < len(fill): fill[n]()
        stamp(p, 6, stamps)
        lstamp(p, 2, stamps)
        vq = [(c, t) for c in range(8) for t in range(2)]
        def vs(k=1):
            for _ in range(k):
                if vq and 'nov' in opt: vq.pop(0)
                elif vq:
                    c, t = vq.pop(0)
                    smf(p, AV + 4 * t, MF + 4 * c, a((c * 2 + t) * 8, 8), vIdxQ)
        fold_wr(0); fold_wr(1)
        p('buffer_store_dword %s, %s, s[4:7], %s offen%s' % (v(vFlag), v(vFlagOff), s(sFlagOff), SC))
        fold_add(2); fold_cvt(2); fold_wr(2)
        fold_add(3); fold_cvt(3); fold_wr(3)
        def small_vmem():
            if 'poisA' not in opt and 'poisB' not in opt: p('buffer_store_dword %s, %s, s[4:7], %s offen' % (v(vNeg1), v(vMst), s(sMpo)))
            if 'samekv' in opt: pass
            elif 'notouch' not in opt: p('buffer_load_dword %s, %s, s[4:7], %s offen' % (v(vDummy), v(vTouch), s(sKXn)))
            if 'kvflags' in opt: p('buffer_load_dword %s, off, s[4:7], %s sc1' % (v(vKVf), s(sKVoff)))
        if 'smallS' not in opt: small_vmem()
        vs(optint(opt, 'v3', 3))
        lstamp(p, 3, stamps)
        p.wait(lgkm=0)
        stamp(p, 1, stamps)
        p('s_barrier')
        lstamp(p, 4, stamps)
        SA = AQK
        def rd_q(ks):
            for hh in range(2): p('ds_read_b64_tr_b16 %s, %s offset:%d' % (v(QR + 4 * (ks & 1) + 2 * hh, 2), v(vQtr), ks * 512 + hh * 256))
        def rd_k(ks):
            for hh in range(2): p('ds_read_b64_tr_b16 %s, %s offset:%d' % (v(KR + 4 * (ks & 1) + 2 * hh, 2), v(vKtr), ks * 1024 + hh * 512))
        Q3 = [QR, QR + 4, AQK + 12, QR]
        K3 = [KR, KR + 4, KR, KR + 4]
        def rq(ks, hh): p('ds_read_b64_tr_b16 %s, %s offset:%d' % (v(Q3[ks] + 2 * hh, 2), v(vQtr), ks * 512 + hh * 256))
        def rk(ks, hh): p('ds_read_b64_tr_b16 %s, %s offset:%d' % (v(K3[ks] + 2 * hh, 2), v(vKtr), ks * 1024 + hh * 512))
        rq(0, 0); rq(0, 1); rk(0, 0); rk(0, 1); rq(1, 0); rq(1, 1); rk(1, 0); rk(1, 1); rq(2, 0); rq(2, 1)
        vs(optint(opt, 'v4', 2))
        VXF = LAND + 32
        def mx_(ks, jt): p('v_mfma_f32_16x16x32_bf16 %s, %s, %s, %s' % (v(SA + 4 * jt, 4), v(XFr[ks] + 4 * jt, 4), v(Q3[ks], 4), '0' if ks == 0 else v(SA + 4 * jt, 4)))
        def mm_(ks): p('v_mfma_f32_16x16x32_bf16 %s, %s, %s, %s' % (v(SA + 8, 4), v(K3[ks], 4), v(Q3[ks], 4), '0' if ks == 0 else v(SA + 8, 4)))
        rd_x(2, 0)
        mx_(0, 0); rd_x(2, 1)
        mx_(0, 1); rd_x(3, 0)
        mm_(0); rd_x(3, 1)
        mx_(1, 0); rk(2, 0); rk(2, 1)
        mx_(1, 1)
        rq(3, 0); rq(3, 1)
        mm_(1); rk(3, 0); rk(3, 1)
        mx_(2, 0)
        if 'smallS' in opt: small_vmem()
        mx_(2, 1)
        p.wait(vm=len(p.vm) - 2 - (0 if 'smallS' not in opt else 0))
        mm_(2)
        for t in range(2): p('ds_read_b128 %s, %s offset:%d' % (v(VXF + 4 * t, 4), v(vVX), t * 1024))
        mx_(3, 0); mx_(3, 1); mm_(3)
        stamp(p, 7, stamps)
        lstamp(p, 5, stamps)
        if 'pubW7' in opt:
            PUB = LAND + 24
            p('v_add_u32 %s, %s, %s' % (t2, s(sW10), v(vKtr)))
            for hh in range(2): p('ds_read_b64_tr_b16 %s, %s offset:%d' % (v(PUB + 2 * hh, 2), t2, hh * 512))
        vs(2)
    else:
        def rd_m(c): p('ds_read_b128 %s, %s offset:%d' % (v(MF + 4 * c, 4), v(vMrd), c * 128))
        for c in (0, 1, 6, 2): rd_m(c)
        p('s_mov_b32 m0, %s' % s(sM0vx))
        p('v_mov_b32 %s, %s' % (v(vFlag), s(sFlagVal)))
        p('buffer_load_dwordx4 %s, s[4:7], %s offen lds' % (v(vL16), s(sVX)))
        p('buffer_load_dwordx4 %s, s[4:7], %s offen offset:1024 lds' % (v(vL16), s(sVX)))
        vxn = p.vmissued
        if 'pubT0' in opt: pub()
        lstamp(p, 1, stamps)
        Ls = [LAND + 8 * k for k in range(6)]
        slot_of = {0: 0, 1: 1, 6: 2, 7: 3}
        def Lop(c, T, land): return (c, T, v(Ls[land], 8))
        def R(c, T): return (c, T, v(WQK + ((c - 2) * 4 + T) * 8, 8))
        def rw(c, T, land, half): return lambda: read_w(p, slot_of[c] * 4 + T, land, half)
        order = [Lop(0, 0, 0), Lop(0, 1, 1), Lop(1, 0, 2), Lop(1, 1, 3), Lop(6, 0, 4), Lop(6, 1, 5),
                 R(2, 0), R(2, 1), R(3, 0), R(3, 1), R(4, 0), R(4, 1), R(5, 0), R(5, 1), Lop(7, 0, 0), Lop(7, 1, 1),
                 Lop(0, 2, 2), Lop(0, 3, 3), Lop(1, 2, 4), Lop(1, 3, 5)] + [R(c, T) for c in range(2, 6) for T in (2, 3)] + \
                [Lop(6, 2, 0), Lop(6, 3, 1), Lop(7, 2, 2), Lop(7, 3, 3)]
        def fold_add(T): p('v_pk_add_f32 %s, %s, %s' % (v(AQK + 4 * T, 2), v(AQK + 4 * T, 2), v(AQK + 4 * T + 2, 2)))
        def fold_cvt(T): p('v_cvt_pk_bf16_f32 %s, %s, %s' % (v(AQK + 4 * T), v(AQK + 4 * T), v(AQK + 4 * T + 1)))
        def fold_wr(T):
            if T < 2: p('ds_write_b32 %s, %s offset:%d' % (v(vQwr), v(AQK + 4 * T), T * 256))
            else: p('ds_write2_b32 %s, %s, %s offset0:%d offset1:%d' % (v(vKwr), v(AQK + 4 * T), v(AQK + 4 * T), (T - 2) * 128, (T - 2) * 128 + 1))
        QF = Ls[4]
        XFr = [AQK, Ls[0], Ls[1], AQK]
        SA = Ls[2]
        K3 = [AQK + 8, AQK + 12, Ls[3] + 4, AQK + 8]
        def rd_x(ks, jt): p('ds_read_b128 %s, %s offset:%d' % (v(XFr[ks] + 4 * jt, 4), v(vL16), KX_L + jt * 4096 + ks * 1024))
        def rq(ks, hh): p('ds_read_b64_tr_b16 %s, %s offset:%d' % (v(QF + 4 * ks + 2 * hh, 2), v(vQtr), ks * 512 + hh * 256))
        def rk(ks, hh): p('ds_read_b64_tr_b16 %s, %s offset:%d' % (v(K3[ks] + 2 * hh, 2), v(vKtr), ks * 1024 + hh * 512))
        mark = {}
        def wr_q(T):
            fold_wr(T); mark['q'] = len(p.lgkm) - 1; mark['n'] = 0
        def b2a():
            n_after = mark['cnt']()
            p.wait(lgkm=n_after)
            p('s_barrier')
        lg_issued = [0]
        fill = {0: [lambda: rd_m(3)], 1: [lambda: rd_m(4)], 2: [rw(7, 0, 0, 0)], 3: [rw(7, 0, 0, 1)], 4: [lambda: rd_m(5)],
                5: [rw(7, 1, 1, 0)], 6: [rw(7, 1, 1, 1)], 7: [lambda: rd_m(7)],
                8: [rw(0, 2, 2, 0)], 9: [rw(0, 2, 2, 1)], 10: [rw(0, 3, 3, 0)], 11: [rw(0, 3, 3, 1)],
                12: [rw(1, 2, 4, 0)], 13: [rw(1, 2, 4, 1)], 14: [rw(1, 3, 5, 0)], 15: [rw(1, 3, 5, 1)],
                16: [rw(6, 2, 0, 0)], 17: [rw(6, 2, 0, 1)], 18: [rw(6, 3, 1, 0)], 19: [rw(6, 3, 1, 1), lambda: fold_add(0)],
                20: [rw(7, 2, 2, 0), lambda: fold_add(1)], 21: [rw(7, 2, 2, 1), lambda: fold_cvt(0)], 22: [rw(7, 3, 3, 0), lambda: fold_cvt(1)],
                23: [rw(7, 3, 3, 1)], 24: [lambda: fold_wr(0), lambda: fold_wr(1)],
                25: [lambda: rd_x(0, 0)], 26: [lambda: rd_x(0, 1)],
                28: ['B2A'], 29: [lambda: rq(0, 0), lambda: rq(0, 1)], 30: [lambda: rq(1, 0), lambda: rq(1, 1)], 31: [lambda: rd_x(1, 0), lambda: rd_x(1, 1)]}
        for n, (c, T, B) in enumerate(order):
            smf(p, AQK + 4 * T, MF + 4 * c, B, vIdxQ)
            for f in fill.get(n, []):
                if f == 'B2A':
                    p.wait(lgkm=2)
                    p('s_barrier')
                else: f()
        stamp(p, 6, stamps)
        lstamp(p, 2, stamps)
        vq = [(c, t) for c in range(8) for t in range(2)]
        def vs(k=1):
            for _ in range(k):
                if vq:
                    c, t = vq.pop(0)
                    smf(p, AV + 4 * t, MF + 4 * c, a((c * 2 + t) * 8, 8), vIdxQ)
        def mx_(ks, jt): p('v_mfma_f32_16x16x32_bf16 %s, %s, %s, %s' % (v(SA + 4 * jt, 4), v(XFr[ks] + 4 * jt, 4), v(QF + 4 * ks, 4), '0' if ks == 0 else v(SA + 4 * jt, 4)))
        def mm_(ks): p('v_mfma_f32_16x16x32_bf16 %s, %s, %s, %s' % (v(SA + 8, 4), v(K3[ks], 4), v(QF + 4 * ks, 4), '0' if ks == 0 else v(SA + 8, 4)))
        rq(2, 0); rq(2, 1); rq(3, 0); rq(3, 1); rd_x(2, 0); rd_x(2, 1)
        p('buffer_store_dword %s, %s, s[4:7], %s offen%s' % (v(vFlag), v(vFlagOff), s(sFlagOff), SC))
        mx_(0, 0); fold_add(2); fold_add(3)
        mx_(0, 1); fold_cvt(2); fold_cvt(3)
        fold_wr(2); fold_wr(3)
        rd_x(3, 0); rd_x(3, 1)
        mx_(1, 0); mx_(1, 1)
        p('buffer_store_dword %s, %s, s[4:7], %s offen' % (v(vNeg1), v(vMst), s(sMpo)))
        mx_(2, 0)
        if 'samekv' in opt: pass
        elif 'notouch' not in opt: p('buffer_load_dword %s, %s, s[4:7], %s offen' % (v(vDummy), v(vTouch), s(sKXn)))
        mx_(2, 1)
        if 'kvflags' in opt: p('buffer_load_dword %s, off, s[4:7], %s sc1' % (v(vKVf), s(sKVoff)))
        lstamp(p, 3, stamps)
        p.wait(lgkm=2)
        stamp(p, 1, stamps)
        p('s_barrier')
        lstamp(p, 4, stamps)
        rk(0, 0); rk(0, 1); rk(1, 0); rk(1, 1); rk(2, 0); rk(2, 1)
        mx_(3, 0); mx_(3, 1)
        VXF = Ls[0]
        p.wait(vm=p.vmissued - vxn)
        for t in range(2): p('ds_read_b128 %s, %s offset:%d' % (v(VXF + 4 * t, 4), v(vVX), t * 1024))
        vs(optint(opt, 'v4', 2))
        mm_(0); rk(3, 0); rk(3, 1)
        mm_(1); mm_(2); mm_(3)
        stamp(p, 7, stamps)
        lstamp(p, 5, stamps)
        vs(2)
    X = SA
    mx = vT0
    WA = MF
    p('v_max3_f32 %s, %s, %s, %s' % (v(mx), v(X), v(X + 1), v(X + 2)))
    p('v_max3_f32 %s, %s, %s, %s' % (v(vT1), v(X + 3), v(X + 4), v(X + 5)))
    p('v_max3_f32 %s, %s, %s, %s' % (v(mx), v(mx), v(X + 6), v(X + 7)))
    p('v_max3_f32 %s, %s, %s, %s' % (v(vT1), v(vT1), v(X + 8), v(X + 9)))
    p('v_max_f32 %s, %s, %s' % (v(mx), v(mx), v(vT1)))
    p('v_mov_b32 %s, %s' % (v(vT1), v(mx)))
    vs(1)
    p('v_permlane16_swap_b32 %s, %s' % (v(vT1), v(mx)))
    p('v_max_f32 %s, %s, %s' % (v(mx), v(mx), v(vT1)))
    p('v_mov_b32 %s, %s' % (v(vT1), v(mx)))
    vs(1)
    p('v_permlane32_swap_b32 %s, %s' % (v(vT1), v(mx)))
    p('v_max_f32 %s, %s, %s' % (v(mx), v(mx), v(vT1)))
    p('v_mul_f32 %s, %s, %s' % (v(mx), s(sScale), v(mx)))
    for r in range(0, 10, 2):
        p('v_pk_fma_f32 %s, %s, %s, %s op_sel_hi:[1,0,0] neg_lo:[0,0,1] neg_hi:[0,0,1]' % (v(X + r, 2), v(X + r, 2), s(sScale2, 2), v(mx, 2)))
    vs(len(vq))
    lstamp(p, 6, stamps)
    QFI = 'qfirst' in opt
    PX = LAND + (32 if QFI else 16)
    PM = PX + 4
    for r in range(0, 8): p('v_exp_f32 %s, %s' % (v(X + r), v(X + r)))
    for r in range(4): p('v_cvt_pk_bf16_f32 %s, %s, %s' % (v(PX + r), v(X + 2 * r), v(X + 2 * r + 1)))
    OA = LAND + (8 if QFI else 0)
    p('v_mfma_f32_16x16x32_bf16 %s, %s, %s, 0' % (v(OA, 4), v(VXF, 4), v(PX, 4)))
    p('v_exp_f32 %s, %s' % (v(X + 8), v(X + 8)))
    p('v_mfma_f32_16x16x32_bf16 %s, %s, %s, 0' % (v(OA + 4, 4), v(VXF + 4, 4), v(PX, 4)))
    p('v_exp_f32 %s, %s' % (v(X + 9), v(X + 9)))
    for t in range(2):
        p('v_cvt_pk_bf16_f32 %s, %s, %s' % (v(VA + 2 * t), v(AV + 4 * t), v(AV + 4 * t + 1)))
        p('v_cvt_pk_bf16_f32 %s, %s, %s' % (v(VA + 2 * t + 1), v(AV + 4 * t + 2), v(AV + 4 * t + 3)))
    p('v_cvt_pk_bf16_f32 %s, %s, %s' % (v(PM), v(X + 8), v(X + 9)))
    p('v_cvt_pk_bf16_f32 %s, %s, %s' % (v(PM + 1), v(X + 8), v(X + 9)))
    stamp(p, 8, stamps)
    lstamp(p, 7, stamps)
    p('v_pk_add_f32 %s, %s, %s' % (v(X, 2), v(X, 2), v(X + 2, 2)))
    p('v_pk_add_f32 %s, %s, %s' % (v(X + 4, 2), v(X + 4, 2), v(X + 6, 2)))
    p('v_mfma_f32_16x16x16_bf16 %s, %s, %s, %s' % (v(OA, 4), v(VA, 2), v(PM, 2), v(OA, 4)))
    p('v_pk_add_f32 %s, %s, %s' % (v(X, 2), v(X, 2), v(X + 8, 2)))
    p('v_pk_add_f32 %s, %s, %s' % (v(X, 2), v(X, 2), v(X + 4, 2)))
    p('v_mfma_f32_16x16x16_bf16 %s, %s, %s, %s' % (v(OA + 4, 4), v(VA + 2, 2), v(PM, 2), v(OA + 4, 4)))
    p('v_add_f32 %s, %s, %s' % (v(X), v(X), v(X + 1)))
    p('v_mov_b32 %s, %s' % (v(X + 1), v(X)))
    p('v_mov_b64 %s, 0' % v(WA + 0, 2)); p('v_mov_b64 %s, 0' % v(WA + 2, 2))
    p('v_permlane16_swap_b32 %s, %s' % (v(X + 1), v(X)))
    p('v_add_f32 %s, %s, %s' % (v(X), v(X), v(X + 1)))
    p('v_mov_b32 %s, %s' % (v(X + 1), v(X)))
    p('v_mov_b64 %s, 0' % v(WA + 4, 2)); p('v_mov_b64 %s, 0' % v(WA + 6, 2))
    p('v_permlane32_swap_b32 %s, %s' % (v(X + 1), v(X)))
    p('v_add_f32 %s, %s, %s' % (v(X), v(X), v(X + 1)))
    p('v_rcp_f32 %s, %s' % (v(vT0), v(X)))
    p('v_mov_b64 %s, 0' % v(WA + 8, 2))
    OF = LAND + 32
    for t in range(2):
        for hh in range(2):
            p('v_pk_mul_f32 %s, %s, %s op_sel_hi:[1,0]' % (v(OA + 4 * t + 2 * hh, 2), v(OA + 4 * t + 2 * hh, 2), v(vT0, 2)))
    for t in range(2):
        for hh in range(2):
            p('v_cvt_pk_bf16_f32 %s, %s, %s' % (v(OF + 2 * t + hh), v(OA + 4 * t + 2 * hh), v(OA + 4 * t + 2 * hh + 1)))
    p('ds_write_b128 %s, %s' % (v(vVX), v(OF, 4)))
    lstamp(p, 8, stamps)
    XA = LAND + (0 if QFI else 8)
    p('v_mov_b64 %s, 0' % v(WA + 10, 2)); p('v_mov_b64 %s, 0' % v(WA + 12, 2)); p('v_mov_b64 %s, 0' % v(WA + 14, 2))
    smf(p, WA + 0, OF, a(128 + 0 * 32, 8), vIdxO)
    p('v_xor_b32 %s, 0x800, %s' % (v(XA), v(vVX)))
    smf(p, WA + 4, OF, a(128 + 1 * 32, 8), vIdxO)
    p('v_xor_b32 %s, 0x1000, %s' % (v(XA + 1), v(vVX)))
    smf(p, WA + 8, OF, a(128 + 2 * 32, 8), vIdxO)
    p('v_xor_b32 %s, 0x1800, %s' % (v(XA + 2), v(vVX)))
    if 'pubW7' in opt:
        p('buffer_store_dwordx4 %s, %s, s[4:7], %s offen%s' % (v(PUB, 4), v(vL16), s(sKM), SC))
        p('buffer_store_dwordx4 %s, %s, s[4:7], %s offen%s' % (v(VA, 4), v(vL16), s(sVM), SC))
    else: p('v_add_u32 %s, %s, %s' % (v(XA + 3), s(sW10), v(vKtr)))
    p('s_cmp_eq_u32 %s, %d' % (s(sStep), nsteps - 1))
    p.wait(lgkm=0)
    stamp(p, 2, stamps)
    p('s_barrier')
    lstamp(p, 9, stamps)
    for j in range(1, 4): p('ds_read_b128 %s, %s' % (v(OF + 4 * j, 4), v(XA + j - 1)))
    if 'pubW7' not in opt:
        for hh in range(2): p('ds_read_b64_tr_b16 %s, %s offset:%d' % (v(PUB + 2 * hh, 2), v(XA + 3), hh * 512))
    p('s_cbranch_scc1 L_DONE')
    smf(p, WA + 12, OF, a(128 + 3 * 32, 8), vIdxO)
    def kxdma():
        if 'samekv' not in opt: p('s_add_u32 %s, %s, %d' % (s(sKX), s(sKX), 32 * 8192))
        p('s_mov_b32 m0, %s' % s(sM0kx))
        if 'samekv' not in opt: p('s_add_u32 %s, %s, %d' % (s(sVX), s(sVX), 32 * 8192))
        if 'nokxdma' not in opt:
            p('buffer_load_dwordx4 %s, s[4:7], %s offen lds' % (v(vL16), s(sKX)))
            p('buffer_load_dwordx4 %s, s[4:7], %s offen offset:1024 lds' % (v(vL16), s(sKX)))
    if 'kxlate' not in opt: kxdma()
    E = LAND + (8 if QFI else 16)
    def pack(P, k):
        q = 2 * P + (k >> 1); hh = k & 1
        p('v_cvt_pk_bf16_f32 %s, %s, %s' % (v(E + 4 * P + k), v(WA + 4 * q + 2 * hh), v(WA + 4 * q + 2 * hh + 1)))
    for j in range(1, 4):
        for q in (0, 1): smf(p, WA + 4 * q, OF + 4 * j, a(128 + (q * 4 + j) * 8, 8), vIdxO)
    pend = [lambda k=k: pack(0, k) for k in range(4)]
    pend += [lambda: p('v_bfi_b32 %s, 1, %s, %s' % (v(E), s(sTag), v(E))),
             lambda: p('buffer_store_dwordx4 %s, %s, s[4:7], %s offen' % (v(E, 4), v(vPst), s(sPst)))]
    seq = [(q, j) for j in range(1, 4) for q in (2, 3)]
    for n, (q, j) in enumerate(seq):
        smf(p, WA + 4 * q, OF + 4 * j, a(128 + (q * 4 + j) * 8, 8), vIdxO)
        if n >= 3: pend.pop(0)()
    while pend: pend.pop(0)()
    for k in range(4): pack(1, k)
    p('v_bfi_b32 %s, 1, %s, %s' % (v(E + 4), s(sTag), v(E + 4)))
    p('buffer_store_dwordx4 %s, %s, s[4:7], %s offen' % (v(E + 4, 4), v(vPst), s(sPst + 1)))
    stamp(p, 3, stamps)
    lstamp(p, 10, stamps)
    PR = MF
    SEL = MF + 8
    RA = MF + 12
    def gen_sel():
        p('v_bfe_u32 %s, %s, 4, 4' % (t0, v(vL16)))
        p('v_and_b32 %s, 16, %s' % (t1, v(vL16)))
        p('v_mov_b32 %s, 0x3f80' % t2)
        p('v_lshlrev_b32 %s, %s, %s' % (t2, t1, t2))
        p('v_lshrrev_b32 %s, 1, %s' % (t0, t0))
        for q in range(4):
            p('v_cmp_eq_u32 %s, %d, %s' % (s(sMaskA + 2 * (q & 1), 2), q, t0))
            p('v_mov_b32 %s, 0' % v(SEL + q))
            if q & 1:
                p('v_cndmask_b32 %s, %s, %s, %s' % (v(SEL + q - 1), v(SEL + q - 1), t2, s(sMaskA, 2)))
                p('v_cndmask_b32 %s, %s, %s, %s' % (v(SEL + q), v(SEL + q), t2, s(sMaskA + 2, 2)))
    if 'kxlate' in opt: kxdma()
    gen_sel()
    if 'landlate' not in opt:
        for u in range(6):
            rd_w(PRE[u], u, 0); rd_w(PRE[u], u, 1)
    delay(p, optint(opt, 'd1', 0))
    if optint(opt, 'd1s', 0):
        p('s_cmp_lt_u32 %s, 2' % s(sW))
        p('s_cbranch_scc1 L_D1S')
        delay(p, optint(opt, 'd1s', 0))
        p.label('L_D1S')
    lstamp(p, 11, stamps)
    PB = MF + 24
    DP = optint(opt, 'dp', 0)
    def ppoll(R):
        for k in range(2):
            p('buffer_load_dwordx4 %s, %s, s[4:7], %s offen offset:%d sc1' % (v(R + 4 * k, 4), v(vPld), s(sPld), k * 2048))
    def pcheck(R, fail):
        p('v_mfma_f32_16x16x32_bf16 %s, %s, %s, 0' % (v(RA, 4), v(R, 4), v(SEL, 4)))
        p('v_bitop3_b32 %s, -1, %s, %s bitop3:0x90' % (t0, v(R), s(sTag)))
        p('v_bitop3_b32 %s, %s, %s, %s bitop3:0x90' % (t0, t0, v(R + 4), s(sTag)))
        p('v_mfma_f32_16x16x32_bf16 %s, %s, %s, %s' % (v(RA, 4), v(R + 4, 4), v(SEL, 4), v(RA, 4)))
        p('v_and_b32 %s, 1, %s' % (t0, t0))
        p('v_cmp_eq_u32 vcc, 0, %s' % t0)
        p('s_cbranch_vccnz %s' % fail)
    ppoll(PR)
    if 'landlate' in opt:
        for u in range(6):
            rd_w(PRE[u], u, 0); rd_w(PRE[u], u, 1)
    if 'kvflags' in opt:
        p('v_readfirstlane_b32 %s, %s' % (s(sTmp), v(vKVf)))
        p('s_cmp_ge_u32 %s, %s' % (s(sTmp), s(sKVneed)))
        p('s_cbranch_scc0 L_KVWAIT')
        p.label('L_KVOK')
        p('s_add_u32 %s, %s, 3' % (s(sTmp), s(sStep)))
        p('s_lshr_b32 %s, %s, 2' % (s(sKVneed), s(sTmp)))
        p('s_add_u32 %s, %s, 1' % (s(sKVneed), s(sKVneed)))
        p('s_cmp_lt_u32 %s, 64' % s(sTmp))
        p('s_cselect_b32 %s, %s, 0' % (s(sKVneed), s(sKVneed)))
        p('s_and_b32 %s, %s, 3' % (s(sTmp), s(sTmp)))
        p('s_lshl_b32 %s, %s, 7' % (s(sTmp), s(sTmp)))
        p('s_add_u32 %s, %s, %s' % (s(sKVoff), s(sKVbase), s(sTmp)))
    if 'pubW7' not in opt: p('s_mov_b32 %s, %s' % (s(sFlagVal), s(sStep)))
    p('s_add_u32 %s, %s, 1' % (s(sStep), s(sStep)))
    if 'pubW7' in opt: p('s_mov_b32 %s, %s' % (s(sFlagVal), s(sStep)))
    p('s_lshr_b32 %s, %s, 1' % (s(sTmp), s(sStep)))
    p('s_and_b32 %s, %s, 1' % (s(sTmp), s(sTmp)))
    p('s_xor_b32 %s, %s, 1' % (s(sTagN), s(sTmp)))
    for P in range(2): p('s_xor_b32 %s, %s, 0x40000' % (s(sPst + P), s(sPst + P)))
    p('s_mov_b32 %s, %s' % (s(sTmp), s(sMrd)))
    p('s_mov_b32 %s, %s' % (s(sMrd), s(sMwr)))
    p('s_mov_b32 %s, %s' % (s(sMwrOld), s(sMwr)))
    p('s_mov_b32 %s, %s' % (s(sMwr), s(sMpo)))
    p('s_mov_b32 %s, %s' % (s(sMpo), s(sTmp)))
    p('s_add_u32 %s, %s, %d' % (s(sKXn), s(sKXn), 32 * 8192))
    p('s_add_u32 %s, %s, %d' % (s(sKM), s(sKM), 32 * 4096))
    p('s_add_u32 %s, %s, %d' % (s(sVM), s(sVM), 32 * 4096))
    p('s_mov_b32 %s, 0' % s(sCnt))
    if DP:
        delay(p, max(DP - 130, 0))
        ppoll(PB)
        p.wait(vm=2)
        pcheck(PR, 'L_PFAILA')
    else:
        p.label('L_PCHECK')
        p.wait(vm=0)
        pcheck(PR, 'L_PFAIL')
    p.label('L_POK')
    stamp(p, 11, stamps)
    lstamp(p, 12, stamps)
    if 'poisA' in opt: p('buffer_store_dword %s, %s, s[4:7], %s offen' % (v(vNeg1), v(vMst), s(sMwr)))
    p('s_mov_b32 %s, %s' % (s(sTag), s(sTagN)))
    p('s_xor_b32 %s, %s, 0x40000' % (s(sPld), s(sPld)))
    p('v_permlane32_swap_b32 %s, %s' % (v(RA), v(RA + 1)))
    p('v_permlane32_swap_b32 %s, %s' % (v(RA + 2), v(RA + 3)))
    p('v_add_f32 %s, %s, %s' % (v(RA), v(RA), v(RA + 1)))
    p('v_add_f32 %s, %s, %s' % (v(RA + 2), v(RA + 2), v(RA + 3)))
    p('v_permlane16_swap_b32 %s, %s' % (v(RA), v(RA + 2)))
    p('v_add_f32 %s, %s, %s' % (v(RA), v(RA), v(RA + 2)))
    p('v_mov_b32 %s, %s' % (v(RA + 1), v(RA)))
    p('v_permlane32_swap_b32 %s, %s' % (v(RA), v(RA + 1)))
    p('v_cvt_pk_bf16_f32 %s, %s, %s' % (v(RA), v(RA), v(RA + 1)))
    p('v_min_u32 %s, 0xfffffffe, %s' % (v(RA), v(RA)))
    p('buffer_store_dword %s, %s, s[4:7], %s offen' % (v(RA), v(vMst), s(sMwrOld)))
    if 'poisB' in opt: p('buffer_store_dword %s, %s, s[4:7], %s offen' % (v(vNeg1), v(vMst), s(sMwr)))
    stamp(p, 4, stamps)
    lstamp(p, 13, stamps)
    delay(p, optint(opt, 'd2', 0))
    if optint(opt, 'd2s', 0):
        p('s_cmp_lt_u32 %s, 2' % s(sW))
        p('s_cbranch_scc1 L_STEP')
        delay(p, optint(opt, 'd2s', 0))
    p('s_branch L_STEP')
    if 'kvflags' in opt:
        p.label('L_KVWAIT')
        p('s_add_u32 %s, %s, 1' % (s(sCnt), s(sCnt)))
        p('s_cmp_gt_u32 %s, %d' % (s(sCnt), SPIN_MAX * 4))
        p('s_cbranch_scc1 L_BAIL')
        p.raw('    buffer_load_dword %s, off, s[4:7], %s sc1' % (v(vKVf), s(sKVoff)))
        p.raw('    s_waitcnt vmcnt(0)')
        p.raw('    s_nop 0')
        p.raw('    v_readfirstlane_b32 %s, %s' % (s(sTmp), v(vKVf)))
        p.raw('    s_nop 1')
        p('s_cmp_ge_u32 %s, %s' % (s(sTmp), s(sKVneed)))
        p('s_cbranch_scc0 L_KVWAIT')
        p('s_mov_b32 %s, 0' % s(sCnt))
        p('s_branch L_KVOK')
    def countfail(inc):
        p('s_add_u32 %s, %s, 1' % (s(sCnt), s(sCnt)))
        p('s_add_u32 %s, %s, 0x%x' % (s(sNfail), s(sNfail), inc))
        p('s_cmp_lt_u32 %s, %d' % (s(sCnt), SPIN_MAX))
        p('s_cbranch_scc0 L_BAIL')
    if DG:
        p.label('L_GFAILA')
        p.forget()
        p('s_add_u32 %s, %s, 1' % (s(sNfail), s(sNfail)))
        p.label('L_GCHECKB')
        p.wait(vm=0)
        gcheck(GB, 'L_GFAILB')
        p('s_branch L_GOK')
        p.label('L_GFAILB')
        countfail(1)
        p('s_mov_b64 exec, vcc')
        gpoll(GB)
        p('s_mov_b64 exec, -1')
        p('s_branch L_GCHECKB')
    else:
        p.label('L_GFAIL')
        p.forget()
        countfail(1)
        p('s_mov_b64 exec, vcc')
        gpoll(G)
        p('s_mov_b64 exec, -1')
        p('s_branch L_GCHECK')
    if DP:
        p.label('L_PFAILA')
        p.forget()
        p('s_add_u32 %s, %s, 0x10000' % (s(sNfail), s(sNfail)))
        p.label('L_PCHECKB')
        p.wait(vm=0)
        p('s_nop 7')
        pcheck(PB, 'L_PFAILB')
        p('s_nop 3')
        p('s_branch L_POK')
        p.label('L_PFAILB')
        countfail(0x10000)
        p('s_mov_b64 exec, vcc')
        ppoll(PB)
        p('s_mov_b64 exec, -1')
        p('s_branch L_PCHECKB')
    else:
        p.label('L_PFAIL')
        p.forget()
        countfail(0x10000)
        p('s_mov_b64 exec, vcc')
        ppoll(PR)
        p('s_mov_b64 exec, -1')
        p('s_branch L_PCHECK')
```

```python
from common import *
sX, sC, sSeg, sN = 12, 13, 14, 15
sT, sT2, sT3, sM = 20, 21, 22, 23
sBase = 16
sScale2 = 18
sCnt = 24
sMask = 64
SPIN = 400000
OX_L = 0
HM_L = 8192
ST_L = 12288
ROW_L = 12800
TR_L = 16384
TR_RS = 272
HN_L = 65536
vL16, vSelA, vTRw, vTRr, vIn, vOut, vRow, vFlagLd, vFlagSt, vHNst, vOXw, vHMw, vOrow = 1, 2, 3, 4, 5, 6, 7, 8, 9, 10, 11, 12, 13
vIn2 = 14
t0r, t1r, t2r, t3r = 16, 17, 18, 19
SEL = 20
H = 24
W0 = 32
WD = 192

def p2_load_weights(p):
    L = 'v0'
    p('s_load_dwordx2 s[48:49], s[0:1], %d' % KA_WO)
    p('s_load_dwordx4 s[52:55], s[0:1], %d' % KA_WG)
    p('s_load_dwordx2 s[56:57], s[0:1], %d' % KA_WD)
    p('v_lshlrev_b32 v%d, 4, v0' % vL16)
    vE = [32, 33, 34, 35]
    vG = 36
    vA = [40, 41, 42, 43]
    vB = 44
    for q in range(4):
        p('v_xor_b32 v%d, %d, v0' % (t0r, 4 * q))
        p('v_lshlrev_b32 v%d, 4, v%d' % (vE[q], t0r))
    p('v_lshrrev_b32 v%d, 3, v0' % t0r)
    p('v_mul_u32_u24 v%d, 2752, v%d' % (t0r, t0r))
    p('v_and_b32 v%d, 7, v0' % t1r)
    p('v_lshl_add_u32 v%d, v%d, 4, v%d' % (vG, t1r, t0r))
    for G in range(4):
        p('v_lshrrev_b32 v%d, 2, v0' % t0r)
        p('v_lshlrev_b32 v%d, 10, v%d' % (vA[G], t0r))
        p('v_bfe_u32 v%d, v0, 2, 2' % t0r)
        p('v_xor_b32 v%d, %d, v%d' % (t0r, G, t0r))
        p('v_lshlrev_b32 v%d, 2, v%d' % (t0r, t0r))
        p('v_and_b32 v%d, 3, v0' % t1r)
        p('v_add_u32 v%d, v%d, v%d' % (t0r, t0r, t1r))
        p('s_lshl_b32 s%d, s3, 4' % sT)
        p('v_add_u32 v%d, s%d, v%d' % (t0r, sT, t0r))
        p('v_lshl_add_u32 v%d, v%d, 4, v%d' % (vA[G], t0r, vA[G]))
    p('v_lshrrev_b32 v%d, 4, v0' % t0r)
    p('v_lshlrev_b32 v%d, 3, v%d' % (t0r, t0r))
    p('v_bfe_u32 v%d, v0, 2, 2' % t1r)
    p('v_add_u32 v%d, v%d, v%d' % (t0r, t0r, t1r))
    p('v_lshlrev_b32 v%d, 7, v%d' % (t0r, t0r))
    p('v_and_b32 v%d, 3, v0' % t1r)
    p('v_lshl_add_u32 v%d, v%d, 3, v%d' % (t0r, t1r, t0r))
    p('s_lshl_b32 s%d, s3, 5' % sT)
    p('v_add_u32 v%d, s%d, v%d' % (vB, sT, t0r))
    p('s_waitcnt lgkmcnt(0)')
    p('s_mov_b32 s50, 0x400000'); p('s_mov_b32 s51, 0x20000')
    p('s_mov_b32 s60, s52'); p('s_mov_b32 s61, s53'); p('s_mov_b32 s62, %d' % (512 * 1376 * 2)); p('s_mov_b32 s63, 0x20000')
    p('s_mov_b32 s52, s54'); p('s_mov_b32 s53, s55'); p('s_mov_b32 s54, %d' % (512 * 1376 * 2)); p('s_mov_b32 s55, 0x20000')
    p('s_mov_b32 s58, %d' % (1376 * 512 * 2)); p('s_mov_b32 s59, 0x20000')
    p('s_cmp_lt_u32 s3, 2')
    p('s_cselect_b32 s44, s60, s52'); p('s_cselect_b32 s45, s61, s53')
    p('s_mov_b32 s46, %d' % (512 * 1376 * 2)); p('s_mov_b32 s47, 0x20000')
    NP, RING = 10, 5
    def issue(n):
        base = (n % RING) * 32768
        p('s_lshl_b32 s%d, s3, 13' % sM)
        p('s_add_u32 s%d, s%d, %d' % (sM, sM, base))
        if n < 6:
            if n < 4:
                p('s_lshl_b32 s%d, s%d, 7' % (sT, sC)); off = 32 * n; srd = 48
            else:
                p('s_lshl_b32 s%d, s%d, 6' % (sT, sC)); off = 32 * (n - 4); srd = 56
            p('s_lshl_b32 s%d, s3, 3' % sT2)
            p('s_add_u32 s%d, s%d, s%d' % (sT, sT, sT2))
            p('s_add_u32 s%d, s%d, %d' % (sT, sT, off))
            p('s_lshl_b32 s%d, s%d, 10' % (sT, sT))
            for k in range(8):
                p('s_mov_b32 m0, s%d' % sM)
                p('s_add_u32 s%d, s%d, 1024' % (sM, sM))
                p('buffer_load_dwordx4 v%d, s[%d:%d], s%d offen lds' % (vE[k & 3], srd, srd + 3, sT))
                p('s_add_u32 s%d, s%d, 1024' % (sT, sT))
        else:
            j = n - 6
            p('s_and_b32 s%d, s3, 1' % sT)
            p('s_lshl_b32 s%d, s%d, 6' % (sT, sT))
            p('s_add_u32 s%d, s%d, %d' % (sT, sT, 128 * j))
            p('s_mul_i32 s%d, s%d, 2752' % (sT, sT))
            p('s_lshl_b32 s%d, s%d, 7' % (sT2, sC))
            p('s_add_u32 s%d, s%d, s%d' % (sT, sT, sT2))
            for k in range(8):
                p('s_mov_b32 m0, s%d' % sM)
                p('s_add_u32 s%d, s%d, 1024' % (sM, sM))
                p('buffer_load_dwordx4 v%d, s[44:47], s%d offen lds' % (vG, sT))
                p('s_add_u32 s%d, s%d, %d' % (sT, sT, 8 * 2752))
    def consume(n):
        base = (n % RING) * 32768
        if n < 6:
            for G in range(4): p('v_add_u32 v%d, %d, v%d' % (48 + G, base, vA[G]))
            for G in range(4):
                for T in range(2):
                    for hh in range(2):
                        off = 8 * T + hh * 16384
                        if n < 4: dst = a(((G * 2 + T) * 4 + n) * 4 + 2 * hh, 2)
                        else: dst = v(WD + ((G * 2 + T) * 2 + (n - 4)) * 4 + 2 * hh, 2)
                        p('ds_read_b64_tr_b16 %s, v%d offset:%d' % (dst, 48 + G, off))
        else:
            j = n - 6
            p('v_add_u32 v48, %d, v%d' % (base, vB))
            for kk in range(4):
                ks = 4 * j + kk
                for mat in range(2):
                    for hh in range(2):
                        off = mat * 16384 + (32 * kk + 4 * hh) * 128
                        p('ds_read_b64_tr_b16 %s, v48 offset:%d' % (a(128 + (ks * 2 + mat) * 4 + 2 * hh, 2), off))
    for n in range(RING): issue(n)
    for n in range(NP):
        inflight = min(NP, n + RING) - n - 1
        p.wait(vm=8 * inflight)
        p('s_barrier')
        consume(n)
        p.wait(lgkm=0)
        p('s_barrier')
        if n + RING < NP: issue(n + RING)

def p2_setup(p):
    L = 'v0'; t0, t1, t2 = v(t0r), v(t1r), v(t2r)
    p('s_lshl_b32 s%d, s%d, 22' % (sBase, sX))
    p('s_add_u32 s%d, s%d, 0x%x' % (sBase, sBase, WS_P2))
    p('s_mov_b32 s%d, 0x3e0293ee' % sScale2); p('s_mov_b32 s%d, 0x3e0293ee' % (sScale2 + 1))
    p('v_lshlrev_b32 v%d, 4, v0' % vL16)
    p('v_and_b32 %s, 15, v0' % t0)
    p('v_and_b32 %s, 1, v0' % t1)
    p('v_lshlrev_b32 %s, 4, %s' % (t1, t1))
    p('v_mov_b32 %s, 0x3f80' % t2)
    p('v_lshlrev_b32 %s, %s, %s' % (t2, t1, t2))
    p('v_lshrrev_b32 %s, 1, %s' % (t0, t0))
    for q in range(4):
        p('v_cmp_eq_u32 vcc, %d, %s' % (q, t0))
        p('v_mov_b32 %s, 0' % v(SEL + q))
        p('v_cndmask_b32 %s, %s, %s, vcc' % (v(SEL + q), v(SEL + q), t2))
    p('s_mul_i32 s%d, s3, 8704' % sT)
    p('s_add_u32 s%d, s%d, %d' % (sT, sT, TR_L))
    p('v_and_b32 %s, 15, v0' % t0)
    p('v_mul_u32_u24 %s, %d, %s' % (t0, TR_RS, t0))
    p('v_lshrrev_b32 %s, 4, v0' % t1)
    p('v_lshl_add_u32 %s, %s, 4, %s' % (t0, t1, t0))
    p('v_add_u32 v%d, s%d, %s' % (vTRw, sT, t0))
    p('v_mul_u32_u24 %s, %d, %s' % (t0, TR_RS, t1))
    p('v_and_b32 %s, 15, v0' % t2)
    p('v_lshl_add_u32 %s, %s, 4, %s' % (t0, t2, t0))
    p('v_add_u32 v%d, s%d, %s' % (vTRr, sT, t0))
    p('v_lshlrev_b32 %s, 15, %s' % (t0, t1))
    p('v_lshl_add_u32 %s, %s, 4, %s' % (t0, t2, t0))
    p('s_lshl_b32 s%d, s%d, 10' % (sT, sC))
    p('s_lshl_b32 s%d, s3, 8' % sT2)
    p('s_add_u32 s%d, s%d, s%d' % (sT, sT, sT2))
    p('v_add_u32 v%d, s%d, %s' % (vOut, sT, t0))
    p('v_lshlrev_b32 %s, 10, %s' % (t0, t1))
    p('v_lshl_add_u32 %s, %s, 4, %s' % (t0, t2, t0))
    p('s_lshl_b32 s%d, s%d, 15' % (sT, sC))
    p('s_add_u32 s%d, s%d, s%d' % (sT, sT, sT2))
    p('v_add_u32 v%d, s%d, %s' % (vIn, sT, t0))
    p('v_mov_b32 %s, 0x%x' % (t0, OOB))
    p('v_cmp_gt_u32 vcc, 32, v0')
    p('v_cndmask_b32 v%d, %s, v%d, vcc' % (vIn2, t0, vIn))
    p('v_lshlrev_b32 %s, 4, v0' % t0)
    p('v_add_u32 %s, s%d, %s' % (t0, sT2, t0))
    p('v_mov_b32 %s, 0x%x' % (t1, OOB))
    p('v_cmp_gt_u32 vcc, 16, v0')
    p('v_cndmask_b32 v%d, %s, %s, vcc' % (vOrow, t1, t0))
    p('v_lshrrev_b32 %s, 4, v0' % t0)
    p('v_lshlrev_b32 %s, 6, %s' % (t0, t0))
    p('v_and_b32 %s, 7, v0' % t1)
    p('v_lshl_add_u32 %s, %s, 1, %s' % (t0, t1, t0))
    p('s_add_u32 s%d, s%d, %d' % (sT, sT2, ROW_L))
    p('v_add_u32 %s, s%d, %s' % (t0, sT, t0))
    p('v_mov_b32 %s, %d' % (t1, ST_L + 128))
    p('v_bfe_u32 %s, v0, 3, 1' % t2)
    p('v_cmp_eq_u32 vcc, 0, %s' % t2)
    p('v_cndmask_b32 v%d, %s, %s, vcc' % (vRow, t1, t0))
    p('v_bfe_u32 %s, v0, 2, 2' % t0)
    p('v_lshlrev_b32 %s, 10, %s' % (t0, t0))
    p('v_and_b32 %s, 3, v0' % t1)
    p('v_lshl_add_u32 %s, %s, 8, %s' % (t0, t1, t0))
    p('s_lshl_b32 s%d, s3, 12' % sT)
    p('s_lshr_b32 s%d, s%d, 4' % (sT3, sC))
    p('s_lshl_b32 s%d, s%d, 14' % (sT3, sT3))
    p('s_add_u32 s%d, s%d, s%d' % (sT, sT, sT3))
    p('s_and_b32 s%d, s%d, 15' % (sT3, sC))
    p('s_lshl_b32 s%d, s%d, 4' % (sT3, sT3))
    p('s_add_u32 s%d, s%d, s%d' % (sT, sT, sT3))
    p('v_add_u32 %s, s%d, %s' % (t0, sT, t0))
    p('v_mov_b32 %s, 0x%x' % (t1, OOB))
    p('v_cmp_gt_u32 vcc, 16, v0')
    p('v_cndmask_b32 v%d, %s, %s, vcc' % (vHNst, t1, t0))
    p('s_and_b32 s%d, s3, 1' % sT)
    p('s_lshl_b32 s%d, s%d, 12' % (sT, sT))
    p('s_lshr_b32 s%d, s3, 1' % sT3)
    p('s_lshl_b32 s%d, s%d, 11' % (sT3, sT3))
    p('s_add_u32 s%d, s%d, s%d' % (sT, sT, sT3))
    p('s_add_u32 s%d, s%d, %d' % (sT, sT, OX_L))
    p('v_add_u32 v%d, s%d, v%d' % (vOXw, sT, vL16))
    p('v_lshlrev_b32 %s, 3, v0' % t0)
    p('s_lshl_b32 s%d, s3, 9' % sT)
    p('s_add_u32 s%d, s%d, %d' % (sT, sT, HM_L))
    p('v_add_u32 v%d, s%d, %s' % (vHMw, sT, t0))
    p('v_lshlrev_b32 %s, 2, v0' % t0)
    p('v_mov_b32 %s, 0x%x' % (t1, OOB))
    p('v_cmp_gt_u32 vcc, 32, v0')
    p('v_cndmask_b32 v%d, %s, %s, vcc' % (vFlagLd, t1, t0))
    p('v_or_b32 %s, s3, v0' % t0)
    p('s_lshl_b32 s%d, s%d, 2' % (sT, sC))
    p('v_mov_b32 %s, s%d' % (t2, sT))
    p('v_cmp_eq_u32 vcc, 0, %s' % t0)
    p('v_cndmask_b32 v%d, %s, %s, vcc' % (vFlagSt, t1, t2))
    p('v_and_b32 %s, 15, v0' % t0)
    p('s_and_b32 s%d, s3, 1' % sT)
    p('s_lshl_b32 s%d, s%d, 4' % (sT, sT))
    p('v_add_u32 %s, s%d, %s' % (t0, sT, t0))
    p('v_lshrrev_b32 %s, 4, v0' % t1)
    p('v_lshlrev_b32 %s, 2, %s' % (t1, t1))
    for jt in range(2):
        for r in range(4):
            p('v_add_u32 %s, %d, %s' % (t2, 16 * jt + r, t1))
            p('v_cmp_le_u32 %s, %s, %s' % (s(sMask + 2 * (4 * jt + r), 2), t2, t0))

WBL2 = False
PST = False
PREG = [48, 50, 52, 54, 56, 58, 60, 62, 30, 32, 34, 36, 44, 46]
def pst(p, k):
    if PST: p.raw('    s_memtime s[%d:%d]' % (PREG[k], PREG[k] + 1))
def rts(p, k): pass
def rtd(p, w, x, t=0): pass

def poll_flags(p, off_sreg, imm, seq_sreg, nlanes, tag):
    p('s_mov_b32 s%d, 0' % sCnt)
    p.label('L_P2POLL' + tag)
    p('buffer_load_dword v%d, v%d, s[4:7], s%d offen offset:%d sc1' % (t0r, vFlagLd, off_sreg, imm))
    p.wait(vm=0)
    p('v_cmp_gt_u32 vcc, s%d, v%d' % (seq_sreg, t0r))
    p('s_and_b32 vcc_hi, vcc_hi, 0')
    if nlanes < 32: p('s_and_b32 vcc_lo, vcc_lo, 0x%x' % ((1 << nlanes) - 1))
    p('s_cbranch_vccz L_P2OK' + tag)
    p('s_add_u32 s%d, s%d, 1' % (sCnt, sCnt))
    p('s_cmp_lt_u32 s%d, %d' % (sCnt, SPIN))
    p('s_cbranch_scc1 L_P2POLL' + tag)
    p('s_branch L_P2BAIL')
    p.label('L_P2OK' + tag)
    p.forget()

def poll_one(p, off_sreg, need_sreg, tag):
    p('s_mov_b32 s%d, 0' % sCnt)
    p('v_mov_b32 v%d, 0' % t1r)
    p.label('L_P2POLL' + tag)
    p('buffer_load_dword v%d, v%d, s[4:7], s%d offen sc1' % (t0r, t1r, off_sreg))
    p.wait(vm=0)
    p('v_readfirstlane_b32 s%d, v%d' % (sT3, t0r))
    p('s_cmp_ge_u32 s%d, s%d' % (sT3, need_sreg))
    p('s_cbranch_scc1 L_P2OK' + tag)
    p('s_add_u32 s%d, s%d, 1' % (sCnt, sCnt))
    p('s_cmp_lt_u32 s%d, %d' % (sCnt, SPIN))
    p('s_cbranch_scc1 L_P2POLL' + tag)
    p('s_branch L_P2BAIL')
    p.label('L_P2OK' + tag)
    p.forget()

def post_flag(p, imm):
    p.wait(vm=0)
    p('s_barrier')
    p('v_mov_b32 v%d, s%d' % (t0r, sN))
    p('s_add_u32 s%d, s%d, %d' % (sT, sBase, P2_FL))
    p('buffer_store_dword v%d, v%d, s[4:7], s%d offen offset:%d' % (t0r, vFlagSt, sT, imm))

def reduce_all(p, r, tmp):
    for k in (1, 2, 4, 8):
        p('v_add_f32_dpp %s, %s, %s row_ror:%d row_mask:0xf bank_mask:0xf' % (v(r), v(r), v(r), k))
    p('v_mov_b32 %s, %s' % (v(tmp), v(r)))
    p('v_permlane16_swap_b32 %s, %s' % (v(tmp), v(r)))
    p('v_add_f32 %s, %s, %s' % (v(r), v(r), v(tmp)))
    p('v_mov_b32 %s, %s' % (v(tmp), v(r)))
    p('v_permlane32_swap_b32 %s, %s' % (v(tmp), v(r)))
    p('v_add_f32 %s, %s, %s' % (v(r), v(r), v(tmp)))

def transposed_ops(p, ACC, soff_reg, qt, PKR):
    ops = []
    for G in range(4):
        D = ACC + (qt * 4 + G) * 8
        R = PKR + G * 4
        for T in range(2):
            for hh in range(2):
                ops.append(lambda R=R, D=D, T=T, hh=hh: p('v_cvt_pk_bf16_f32 %s, %s, %s' % (v(R + 2 * T + hh), v(D + 4 * T + 2 * hh), v(D + 4 * T + 2 * hh + 1))))
        ops.append(lambda R=R, G=G: p('ds_write_b128 v%d, %s offset:%d' % (vTRw, v(R, 4), qt * 16 * TR_RS + G * 64)))
    for k in range(4): ops.append(lambda k=k: p('ds_read_b128 %s, v%d offset:%d' % (v(PKR + 4 * k, 4), vTRr, (4 * qt + k) * 4 * TR_RS)))
    for k in range(4):
        def st(k=k):
            p('buffer_store_dwordx4 %s, v%d, s[4:7], s%d offen' % (v(PKR + 4 * k, 4), vOut, soff_reg))
            if not (qt == 1 and k == 3): p('s_add_u32 s%d, s%d, %d' % (soff_reg, soff_reg, 4 * 32768))
        ops.append(st)
    return ops

def gemm_with_store(p, mf, nper, ACC, soff_reg, PK0, PK1):
    for i in range(nper): mf(0, i)
    ops = transposed_ops(p, ACC, soff_reg, 0, PK0)
    per = -(-len(ops) // (nper - 4))
    for i in range(nper):
        mf(1, i)
        if i >= 3:
            for _ in range(per):
                if ops: ops.pop(0)()
    while ops: ops.pop(0)()
    for op in transposed_ops(p, ACC, soff_reg, 1, PK1): op()

def row_out(p, R4, RD):
    for r in range(4):
        p('v_cvt_pk_bf16_f32 %s, %s, %s' % (v(RD + r), v(R4 + r), v(R4 + r)))
        p('ds_write_b16 v%d, %s offset:%d' % (vRow, v(RD + r), 16 * r))
    p('s_lshl_b32 s%d, s3, 8' % sT)
    p('s_add_u32 s%d, s%d, %d' % (sT, sT, ROW_L))
    p('v_and_b32 v%d, 15, v0' % t0r)
    p('v_lshlrev_b32 v%d, 4, v%d' % (t0r, t0r))
    p('v_add_u32 v%d, s%d, v%d' % (t0r, sT, t0r))
    p.wait(lgkm=0)
    p('ds_read_b128 %s, v%d' % (v(RD, 4), t0r))

def p2_segment_loop(p, xflags=True, rt=False):
    t0, t1, t2 = v(t0r), v(t1r), v(t2r)
    p('s_mov_b32 s%d, s%d' % (sSeg, sX))
    p('s_mov_b32 s%d, 1' % sN)
    p.label('L_P2SEG')
    p.forget()
    sKV = 25
    if xflags:
        p('s_and_b32 s%d, s%d, 3' % (sT2, sSeg))
        p('s_lshr_b32 s26, s%d, 2' % sSeg)
        p('s_add_u32 s26, s26, 1')
        p('s_lshl_b32 s%d, s%d, 2' % (sT, sC))
        p('s_add_u32 s%d, s%d, s%d' % (sT, sT, sT2))
        p('s_lshl_b32 s%d, s%d, 7' % (sT, sT))
        p('s_add_u32 s27, s%d, 0x%x' % (sT, WS_QFLAG))
        poll_one(p, 27, 26, 'KV')
        p('s_lshr_b32 s%d, s%d, 1' % (sT, sC))
        p('s_add_u32 s%d, s%d, 32' % (sT, sT))
        p('s_lshl_b32 s%d, s%d, 2' % (sT, sT))
        p('s_add_u32 s%d, s%d, s%d' % (sT, sT, sT2))
        p('s_lshl_b32 s%d, s%d, 7' % (sT, sT))
        p('s_add_u32 s27, s%d, 0x%x' % (sT, WS_QFLAG))
        poll_one(p, 27, 26, 'Q')
    p('s_lshl_b32 s%d, s%d, 5' % (sKV, sSeg))
    p('s_add_u32 s%d, s%d, s%d' % (sKV, sKV, sC))
    QF, KF, KMF, VF, VMF = W0, W0 + 16, W0 + 48, W0 + 64, W0 + 80
    SA = W0 + 88
    p('s_lshl_b32 s%d, s%d, 13' % (sT, sKV))
    p('s_and_b32 s%d, s3, 1' % sT2)
    p('s_lshl_b32 s%d, s%d, 12' % (sT2, sT2))
    p('s_add_u32 s%d, s%d, s%d' % (sT2, sT2, sT))
    p('s_add_u32 s%d, s%d, 0x%x' % (sT2, sT2, WS_QX))
    for ks in range(4): p('buffer_load_dwordx4 %s, v%d, s[4:7], s%d offen offset:%d' % (v(QF + 4 * ks, 4), vL16, sT2, ks * 1024))
    p('s_add_u32 s%d, s%d, 0x%x' % (sT2, sT, WS_KX))
    for ks in range(4): p('buffer_load_dwordx4 %s, v%d, s[4:7], s%d offen offset:%d' % (v(KF + 4 * ks, 4), vL16, sT2, ks * 1024))
    p('s_add_u32 s%d, s%d, 4096' % (sT2, sT2))
    for ks in range(4): p('buffer_load_dwordx4 %s, v%d, s[4:7], s%d offen offset:%d' % (v(KF + 16 + 4 * ks, 4), vL16, sT2, ks * 1024))
    p('s_lshr_b32 s%d, s3, 1' % sT2)
    p('s_lshl_b32 s%d, s%d, 12' % (sT2, sT2))
    p('s_add_u32 s%d, s%d, s%d' % (sT2, sT2, sT))
    p('s_add_u32 s%d, s%d, 0x%x' % (sT2, sT2, WS_VX))
    for et in range(4): p('buffer_load_dwordx4 %s, v%d, s[4:7], s%d offen offset:%d' % (v(VF + 4 * et, 4), vL16, sT2, et * 1024))
    XR = W0 + 100
    p('s_lshl_b32 s%d, s%d, 5' % (sT2, sSeg))
    p('s_add_u32 s%d, s%d, s%d' % (sT2, sT2, sC))
    p('s_lshl_b32 s28, s%d, 10' % sT2)
    p('buffer_load_dwordx4 %s, v%d, s[8:11], s28 offen' % (v(XR, 4), vOrow))
    if xflags:
        p('s_lshl_b32 s%d, s%d, 7' % (sT2, sC))
        p('s_add_u32 s27, s%d, 0x%x' % (sT2, WS_FLAG))
        p('s_add_u32 s26, s%d, 1' % sSeg)
        poll_one(p, 27, 26, 'CH')
    pst(p, 0)
    p('s_lshl_b32 s%d, s%d, 12' % (sT, sKV))
    p('s_add_u32 s%d, s%d, 0x%x' % (sT2, sT, WS_KM))
    for ks in range(4): p('buffer_load_dwordx4 %s, v%d, s[4:7], s%d offen offset:%d' % (v(KMF + 4 * ks, 4), vL16, sT2, ks * 1024))
    p('s_lshr_b32 s%d, s3, 1' % sT2)
    p('s_lshl_b32 s%d, s%d, 11' % (sT2, sT2))
    p('s_add_u32 s%d, s%d, s%d' % (sT2, sT2, sT))
    p('s_add_u32 s%d, s%d, 0x%x' % (sT2, sT2, WS_VM))
    for j in range(2): p('buffer_load_dwordx4 %s, v%d, s[4:7], s%d offen offset:%d' % (v(VMF + 4 * j, 4), vL16, sT2, j * 1024))
    if rt:
        rts(p, 5)
    for ks in range(4):
        C = lambda r: '0' if ks == 0 else v(r, 4)
        for jt in range(2):
            p('v_mfma_f32_16x16x32_bf16 %s, %s, %s, %s' % (v(SA + 4 * jt, 4), v(KF + 16 * jt + 4 * ks, 4), v(QF + 4 * ks, 4), C(SA + 4 * jt)))
    for ks in range(4):
        p('v_mfma_f32_16x16x32_bf16 %s, %s, %s, %s' % (v(SA + 8, 4), v(KMF + 4 * ks, 4), v(QF + 4 * ks, 4), '0' if ks == 0 else v(SA + 8, 4)))
    pst(p, 1)
    X = SA
    p('v_mov_b32 %s, 0xf149f2ca' % t2)
    for r in range(8): p('v_cndmask_b32 %s, %s, %s, %s' % (v(X + r), t2, v(X + r), s(sMask + 2 * r, 2)))
    p('v_max3_f32 %s, %s, %s, %s' % (t0, v(X), v(X + 1), v(X + 2)))
    p('v_max3_f32 %s, %s, %s, %s' % (t1, v(X + 3), v(X + 4), v(X + 5)))
    p('v_max3_f32 %s, %s, %s, %s' % (t0, t0, v(X + 6), v(X + 7)))
    p('v_max3_f32 %s, %s, %s, %s' % (t1, t1, v(X + 8), v(X + 9)))
    p('v_max_f32 %s, %s, %s' % (t0, t0, t1))
    p('v_mov_b32 %s, %s' % (t1, t0))
    p('v_permlane16_swap_b32 %s, %s' % (t1, t0))
    p('v_max_f32 %s, %s, %s' % (t0, t0, t1))
    p('v_mov_b32 %s, %s' % (t1, t0))
    p('v_permlane32_swap_b32 %s, %s' % (t1, t0))
    p('v_max_f32 %s, %s, %s' % (t0, t0, t1))
    p('v_mul_f32 %s, s%d, %s' % (t0, sScale2, t0))
    for r in range(0, 10, 2):
        p('v_pk_fma_f32 %s, %s, %s, %s op_sel_hi:[1,0,0] neg_lo:[0,0,1] neg_hi:[0,0,1]' % (v(X + r, 2), v(X + r, 2), s(sScale2, 2), v(t0r, 2)))
    for r in range(10): p('v_exp_f32 %s, %s' % (v(X + r), v(X + r)))
    PX, PM = QF, QF + 4
    for r in range(4): p('v_cvt_pk_bf16_f32 %s, %s, %s' % (v(PX + r), v(X + 2 * r), v(X + 2 * r + 1)))
    p('v_cvt_pk_bf16_f32 %s, %s, %s' % (v(PM), v(X + 8), v(X + 9)))
    p('v_cvt_pk_bf16_f32 %s, %s, %s' % (v(PM + 1), v(X + 8), v(X + 9)))
    OA = KF
    for et in range(4): p('v_mfma_f32_16x16x32_bf16 %s, %s, %s, 0' % (v(OA + 4 * et, 4), v(VF + 4 * et, 4), v(PX, 4)))
    for et in range(4): p('v_mfma_f32_16x16x16_bf16 %s, %s, %s, %s' % (v(OA + 4 * et, 4), v(VMF + 2 * et, 2), v(PM, 2), v(OA + 4 * et, 4)))
    p('v_pk_add_f32 %s, %s, %s' % (v(X, 2), v(X, 2), v(X + 2, 2)))
    p('v_pk_add_f32 %s, %s, %s' % (v(X + 4, 2), v(X + 4, 2), v(X + 6, 2)))
    p('v_pk_add_f32 %s, %s, %s' % (v(X, 2), v(X, 2), v(X + 8, 2)))
    p('v_pk_add_f32 %s, %s, %s' % (v(X, 2), v(X, 2), v(X + 4, 2)))
    p('v_add_f32 %s, %s, %s' % (v(X), v(X), v(X + 1)))
    p('v_mov_b32 %s, %s' % (v(X + 1), v(X)))
    p('v_permlane16_swap_b32 %s, %s' % (v(X + 1), v(X)))
    p('v_add_f32 %s, %s, %s' % (v(X), v(X), v(X + 1)))
    p('v_mov_b32 %s, %s' % (v(X + 1), v(X)))
    p('v_permlane32_swap_b32 %s, %s' % (v(X + 1), v(X)))
    p('v_add_f32 %s, %s, %s' % (v(X), v(X), v(X + 1)))
    p('v_rcp_f32 %s, %s' % (t0, v(X)))
    for r in range(0, 16, 2): p('v_pk_mul_f32 %s, %s, %s op_sel_hi:[1,0]' % (v(OA + r, 2), v(OA + r, 2), v(t0r, 2)))
    OP = QF + 8
    for j in range(2):
        for T in range(2):
            for hh in range(2):
                p('v_cvt_pk_bf16_f32 %s, %s, %s' % (v(OP + 4 * j + 2 * T + hh), v(OA + 8 * j + 4 * T + 2 * hh), v(OA + 8 * j + 4 * T + 2 * hh + 1)))
        p('ds_write_b128 v%d, %s offset:%d' % (vOXw, v(OP + 4 * j, 4), j * 1024))
    XR2 = 28
    for r in range(4): p('v_mov_b32 %s, %s' % (v(XR2 + r), v(XR + r)))
    p.wait(lgkm=0)
    p('s_barrier')
    pst(p, 2)
    OF = W0
    ACC = W0 + 32
    for qt in range(2):
        for ec in range(4): p('ds_read_b128 %s, v%d offset:%d' % (v(OF + (qt * 4 + ec) * 4, 4), vL16, OX_L + qt * 4096 + ec * 1024))
    p('s_add_u32 s29, s%d, %d' % (sBase, P2_IN1))
    def mf_wo(qt, i):
        ec, G, T = i >> 3, (i >> 1) & 3, i & 1
        D = v(ACC + ((qt * 4 + G) * 2 + T) * 4, 4)
        p('v_mfma_f32_16x16x32_bf16 %s, %s, %s, %s' % (D, a(((G * 2 + T) * 4 + ec) * 4, 4), v(OF + (qt * 4 + ec) * 4, 4), '0' if ec == 0 else D))
    pst(p, 3)
    gemm_with_store(p, mf_wo, 32, ACC, 29, W0 + 96, W0 + 112)
    post_flag(p, 0)
    pst(p, 4)
    p('s_add_u32 s29, s%d, %d' % (sBase, P2_FL))
    poll_flags(p, 29, 0, sN, 32, 'F1')
    pst(p, 5)
    LD = W0
    p('s_add_u32 s29, s%d, %d' % (sBase, P2_IN1))
    for k in range(8):
        p('buffer_load_dwordx4 %s, v%d, s[4:7], s29 offen sc1' % (v(LD + 4 * k, 4), vIn))
        if k < 7: p('s_add_u32 s29, s29, 4096')
    p('v_mfma_f32_16x16x32_bf16 %s, %s, %s, 0' % (v(H, 4), v(XR2, 4), v(SEL, 4)))
    for k in range(8): p('v_mfma_f32_16x16x32_bf16 %s, %s, %s, %s' % (v(H, 4), v(LD + 4 * k, 4), v(SEL, 4), v(H, 4)))
    pst(p, 6)
    S1, S2 = W0 + 40, W0 + 41
    p('v_add_f32 %s, %s, %s' % (v(S1), v(H), v(H + 1)))
    p('v_mul_f32 %s, %s, %s' % (v(S2), v(H), v(H)))
    p('v_add_f32 %s, %s, %s' % (v(S1), v(S1), v(H + 2)))
    p('v_fmac_f32 %s, %s, %s' % (v(S2), v(H + 1), v(H + 1)))
    p('v_add_f32 %s, %s, %s' % (v(S1), v(S1), v(H + 3)))
    p('v_fmac_f32 %s, %s, %s' % (v(S2), v(H + 2), v(H + 2)))
    p('v_fmac_f32 %s, %s, %s' % (v(S2), v(H + 3), v(H + 3)))
    reduce_all(p, S1, t0r)
    reduce_all(p, S2, t1r)
    p('s_lshl_b32 s%d, s3, 3' % sT)
    p('s_add_u32 s%d, s%d, %d' % (sT, sT, ST_L))
    p('v_mov_b32 %s, s%d' % (t2, sT))
    p('ds_write_b64 %s, %s' % (t2, v(S1, 2)))
    p.wait(lgkm=0)
    p('s_barrier')
    p('v_mov_b32 %s, %d' % (t2, ST_L))
    p('ds_read_b128 %s, %s' % (v(W0 + 44, 4), t2))
    p('ds_read_b128 %s, %s offset:16' % (v(W0 + 48, 4), t2))
    p('v_pk_add_f32 %s, %s, %s' % (v(W0 + 44, 2), v(W0 + 44, 2), v(W0 + 46, 2)))
    p('v_pk_add_f32 %s, %s, %s' % (v(W0 + 48, 2), v(W0 + 48, 2), v(W0 + 50, 2)))
    p('v_pk_add_f32 %s, %s, %s' % (v(W0 + 44, 2), v(W0 + 44, 2), v(W0 + 48, 2)))
    p('v_mul_f32 %s, 0x3b000000, %s' % (v(W0 + 44), v(W0 + 44)))
    p('v_mul_f32 %s, 0x3b000000, %s' % (v(W0 + 45), v(W0 + 45)))
    p('v_fma_f32 %s, -%s, %s, %s' % (v(W0 + 45), v(W0 + 44), v(W0 + 44), v(W0 + 45)))
    p('v_max_f32 %s, 0, %s' % (v(W0 + 45), v(W0 + 45)))
    p('v_add_f32 %s, 0x3727c5ac, %s' % (v(W0 + 45), v(W0 + 45)))
    p('v_rsq_f32 %s, %s' % (v(W0 + 45), v(W0 + 45)))
    HNV = W0 + 52
    for r in range(4): p('v_sub_f32 %s, %s, %s' % (v(HNV + r), v(H + r), v(W0 + 44)))
    for r in range(4): p('v_mul_f32 %s, %s, %s' % (v(HNV + r), v(HNV + r), v(W0 + 45)))
    row_out(p, HNV, W0 + 56)
    p('s_add_u32 s29, s%d, %d' % (sBase, P2_HN))
    p('buffer_store_dwordx4 %s, v%d, s[4:7], s29 offen' % (v(W0 + 56, 4), vHNst))
    post_flag(p, 128)
    pst(p, 7)
    p('s_cmp_ge_u32 s%d, 22' % sC)
    p('s_cbranch_scc1 L_P2NOFFN')
    p('s_add_u32 s29, s%d, %d' % (sBase, P2_FL))
    poll_flags(p, 29, 128, sN, 32, 'F2')
    p('s_add_u32 s29, s%d, %d' % (sBase, P2_HN))
    p('s_lshl_b32 s%d, s3, 13' % sT)
    p('s_add_u32 s29, s29, s%d' % sT)
    p('s_add_u32 s%d, s%d, %d' % (sM, sT, HN_L))
    for k in range(8):
        p('s_mov_b32 m0, s%d' % sM)
        p('s_add_u32 s%d, s%d, 1024' % (sM, sM))
        p('buffer_load_dwordx4 v%d, s[4:7], s29 offen sc1 lds' % vL16)
        p('s_add_u32 s29, s29, 1024')
    p.wait(vm=0)
    p('s_barrier')
    pst(p, 8)
    GA = W0
    FR = W0 + 16
    p('v_add_u32 %s, %d, v%d' % (t2, HN_L, vL16))
    seq = [(ks, qt) for ks in range(16) for qt in range(2)]
    rd = lambda i: p('ds_read_b128 %s, %s offset:%d' % (v(FR + 4 * (i & 3), 4), t2, seq[i][1] * 16384 + seq[i][0] * 1024))
    for i in range(3): rd(i)
    for i, (ks, qt) in enumerate(seq):
        if i + 3 < 32: rd(i + 3)
        for mat in range(2):
            D = v(GA + (qt * 2 + mat) * 4, 4)
            p('v_mfma_f32_16x16x32_bf16 %s, %s, %s, %s' % (D, a(128 + (ks * 2 + mat) * 4, 4), v(FR + 4 * (i & 3), 4), '0' if ks == 0 else D))
    for qt in range(2):
        for hh in range(2):
            p('v_pk_mul_f32 %s, %s, %s' % (v(GA + qt * 8 + 2 * hh, 2), v(GA + qt * 8 + 2 * hh, 2), v(GA + qt * 8 + 4 + 2 * hh, 2)))
        for hh in range(2):
            p('v_cvt_pk_bf16_f32 %s, %s, %s' % (v(FR + 2 * qt + hh), v(GA + qt * 8 + 2 * hh), v(GA + qt * 8 + 2 * hh + 1)))
        p('ds_write_b64 v%d, %s offset:%d' % (vHMw, v(FR + 2 * qt, 2), qt * 2048))
    p.wait(lgkm=0)
    p('s_barrier')
    HF = W0
    p('v_lshlrev_b32 %s, 3, v0' % t2)
    for qt in range(2):
        for kp in range(2):
            for T in range(2):
                p('ds_read_b64 %s, %s offset:%d' % (v(HF + (qt * 2 + kp) * 4 + 2 * T, 2), t2, HM_L + qt * 2048 + (2 * kp + T) * 512))
    ACC = W0 + 32
    p('s_add_u32 s29, s%d, %d' % (sBase, P2_IN2))
    def mf_wd(qt, i):
        kp, G, T = i >> 3, (i >> 1) & 3, i & 1
        D = v(ACC + ((qt * 4 + G) * 2 + T) * 4, 4)
        p('v_mfma_f32_16x16x32_bf16 %s, %s, %s, %s' % (D, v(WD + ((G * 2 + T) * 2 + kp) * 4, 4), v(HF + (qt * 2 + kp) * 4, 4), '0' if kp == 0 else D))
    pst(p, 9)
    gemm_with_store(p, mf_wd, 16, ACC, 29, W0 + 96, W0 + 112)
    post_flag(p, 256)
    pst(p, 10)
    p.label('L_P2NOFFN')
    p.forget()
    p('s_add_u32 s29, s%d, %d' % (sBase, P2_FL))
    poll_flags(p, 29, 256, sN, 22, 'F3')
    pst(p, 11)
    p('s_add_u32 s29, s%d, %d' % (sBase, P2_IN2))
    for k in range(6):
        p('buffer_load_dwordx4 %s, v%d, s[4:7], s29 offen sc1' % (v(LD + 4 * k, 4), vIn if k < 5 else vIn2))
        if k < 5: p('s_add_u32 s29, s29, 4096')
    for k in range(6): p('v_mfma_f32_16x16x32_bf16 %s, %s, %s, %s' % (v(H, 4), v(LD + 4 * k, 4), v(SEL, 4), v(H, 4)))
    row_out(p, H, W0 + 56)
    p('buffer_store_dwordx4 %s, v%d, s[40:43], s28 offen' % (v(W0 + 56, 4), vOrow))
    pst(p, 12)
    p('s_add_u32 s%d, s%d, 7' % (sSeg, sSeg))
    p('s_add_u32 s%d, s%d, 1' % (sN, sN))
    p('s_cmp_lt_u32 s%d, 64' % sSeg)
    p('s_cbranch_scc1 L_P2SEG')
    rts(p, 6)
    rtd(p, 9, 1); rtd(p, 10, 7); rtd(p, 11, 6)
    if PST:
        p.raw('    s_waitcnt lgkmcnt(0)')
        p('s_lshl_b32 s20, s%d, 5' % sX)
        p('s_add_u32 s20, s20, s%d' % sC)
        p('s_lshl_b32 s20, s20, 6')
        p('s_add_u32 s20, s20, 0x%x' % (WS_FLAG + 32768))
        for k in range(13):
            p('v_mov_b32 v16, s%d' % PREG[k])
            p('buffer_store_dword v16, off, s[4:7], s20 offset:%d' % (4 * k))
    p.wait(vm=0)
    if WBL2:
        p('buffer_wbl2 sc1')
        p.wait(vm=0)
    p('s_endpgm')
    p.label('L_P2BAIL')
    p('s_load_dwordx2 s[30:31], s[0:1], %d' % KA_DBG)
    p('v_mov_b32 v16, 0x200')
    p('v_or_b32 v16, s%d, v16' % sSeg)
    p('v_mov_b32 v17, 212')
    p('s_waitcnt lgkmcnt(0)')
    p('global_store_dword v17, v16, s[30:31]')
    p.wait(vm=0)
    p('s_endpgm')

def p2_init(p):
    make_srd(p, 8, KA_X, 2048 * 1024)
    make_srd(p, 40, KA_OUT, 2048 * 1024)
```

```python
import sys
from common import *
import chain, ln1, qkv, p2
NAME = 'sequential_preLN__memory_aug_recurrent_mem_tr__glu_gated_bilinear__prompt_kernel'
HEADER = open('sequential_preLN__memory_aug_recurrent_mem_tr__glu_gated_bilinear__prompt.s.ref').read().split('; Override launch')[0]
DBG_REG, DBG_LNA, DBG_LNB, DBG_BAIL = 192, 196, 200, 208
sXCC, sTK = 92, 93
SPIN = 2000000

def wait_dbg(p, off, need, tag, cnt=94, vr=120):
    p('s_load_dwordx2 s[96:97], s[0:1], %d' % KA_DBG)
    p('v_mov_b32 v%d, %d' % (vr, off))
    p('s_mov_b32 s%d, 0' % cnt)
    p('s_waitcnt lgkmcnt(0)')
    p.label('L_WD' + tag)
    p('global_load_dword v%d, v%d, s[96:97] sc1' % (vr + 1, vr))
    p.wait(vm=0)
    p('v_readfirstlane_b32 s95, v%d' % (vr + 1))
    p('s_add_u32 s%d, s%d, 1' % (cnt, cnt))
    p('s_cmp_gt_u32 s%d, %d' % (cnt, SPIN))
    p('s_cbranch_scc1 L_GBAIL')
    p('s_cmp_lt_u32 s95, %d' % need)
    p('s_cbranch_scc1 L_WD' + tag)
    p.forget()

def add_dbg(p, off, tag, wait=True):
    if wait:
        p.wait(vm=0)
        p('s_barrier')
    p('s_load_dwordx2 s[96:97], s[0:1], %d' % KA_DBG)
    p('v_mov_b32 v120, %d' % off)
    p('v_mov_b32 v121, 1')
    p('v_or_b32 v122, s3, v0')
    p('s_waitcnt lgkmcnt(0)')
    p('v_cmp_eq_u32 vcc, 0, v122')
    p('s_and_saveexec_b64 s[98:99], vcc')
    p('s_cbranch_execz L_AD' + tag)
    p('global_atomic_add v120, v121, s[96:97]')
    p.label('L_AD' + tag)
    p('s_mov_b64 exec, s[98:99]')

def zero_p2_flags(p):
    p('s_lshl_b32 s20, s%d, 22' % p2.sX)
    p('s_add_u32 s20, s20, 0x%x' % (WS_P2 + P2_FL))
    p('s_lshl_b32 s21, s%d, 2' % p2.sC)
    p('s_add_u32 s20, s20, s21')
    p('v_lshlrev_b32 v120, 7, v0')
    p('v_mov_b32 v121, 0x%x' % OOB)
    p('v_cmp_gt_u32 vcc, 3, v0')
    p('v_cndmask_b32 v120, v121, v120, vcc')
    p('v_mov_b32 v121, 0')
    p('buffer_store_dword v121, v120, s[4:7], s20 offen')

RT = False
def rts(p, k):
    if not RT: return
    p.raw('    s_memrealtime s[84:85]')
    p.raw('    s_waitcnt lgkmcnt(0)')
    p.raw('    s_lshl_b32 s83, s%d, 5' % sXCC)
    p.raw('    s_add_u32 s83, s83, s%d' % sTK)
    p.raw('    s_lshl_b32 s83, s83, 6')
    p.raw('    s_add_u32 s83, s83, 0x%x' % (WS_FLAG + 8192 + 4 * k))
    p.raw('    v_mov_b32 v123, s84')
    p.raw('    buffer_store_dword v123, off, s[4:7], s83')
def build(opt=(), stamps=False):
    global RT
    RT = 'rt' in opt
    p2.rts = rts
    p2.WBL2 = 'wbl2' in opt
    p2.PST = 'pst' in opt
    p = Prog()
    p.raw(HEADER.rstrip('\n'))
    p.raw('; @launch grid=(256,1,1) block=(256,1,1) lds=163840')
    p.raw('.amdgcn_target "amdgcn-amd-amdhsa--gfx950"\n.text\n.globl %s\n.p2align 8\n.type %s,@function\n%s:' % (NAME, NAME, NAME))
    p('s_cmp_ge_u32 s2, 256')
    p('s_cbranch_scc1 L_EXIT')
    p('s_getreg_b32 s%d, hwreg(HW_REG_XCC_ID, 0, 4)' % sXCC)
    p('s_load_dwordx2 s[8:9], s[0:1], %d' % KA_DBG)
    p('s_and_b32 s%d, s%d, 7' % (sXCC, sXCC))
    p('s_add_u32 s10, s%d, 2' % sXCC)
    p('s_mul_i32 s11, s10, 43')
    p('s_lshr_b32 s11, s11, 7')
    p('s_mul_i32 s12, s11, 3')
    p('s_sub_u32 s10, s10, s12')
    p('s_lshl_b32 s10, s10, 2')
    p('s_lshl_b32 s11, s11, 6')
    p('s_add_u32 s10, s10, s11')
    p('s_cmp_eq_u32 s%d, 0' % sXCC)
    p('s_cselect_b32 s10, 0, s10')
    p('s_cmp_eq_u32 s%d, 7' % sXCC)
    p('s_cselect_b32 s10, 4, s10')
    p('v_mov_b32 v2, s10')
    p('v_mov_b32 v3, 1')
    p('s_waitcnt lgkmcnt(0)')
    p('v_cmp_eq_u32 vcc, 0, v0')
    p('s_and_saveexec_b64 s[10:11], vcc')
    p('s_cbranch_execz L_NOTICKET')
    p('global_atomic_add v4, v2, v3, s[8:9] sc0')
    p.wait(vm=0)
    p('v_mov_b32 v2, 0')
    p('ds_write_b32 v2, v4')
    p.wait(lgkm=0)
    p.label('L_NOTICKET')
    p('s_mov_b64 exec, s[10:11]')
    p('s_barrier')
    p('v_mov_b32 v2, 0')
    p('ds_read_b32 v4, v2')
    p.wait(lgkm=0)
    p('v_readfirstlane_b32 s%d, v4' % sTK)
    p('s_barrier')
    p('s_cmp_ge_u32 s%d, 32' % sTK)
    p('s_cbranch_scc1 L_EXIT')
    p('s_cmp_eq_u32 s%d, 0' % sXCC)
    p('s_cbranch_scc0 L_WORKER')
    p('s_mov_b32 s%d, s%d' % (chain.sH, sTK))
    chain.chain_setup(p)
    rts(p, 0)
    p('s_lshl_b32 s30, s%d, 7' % chain.sH)
    p('s_add_u32 s30, s30, 0x%x' % WS_FLAG)
    p('v_mov_b32 v120, 0')
    p('buffer_store_dword v120, off, s[4:7], s30 sc1')
    chain.chain_init_globals(p)
    add_dbg(p, DBG_REG, 'C')
    chain.chain_load_weights(p)
    rts(p, 1)
    chain.chain_init_mem0(p)
    wait_dbg(p, DBG_REG, 256, 'C')
    p('s_barrier')
    rts(p, 2)
    chain.chain_loop(p, stamps=stamps, opt=tuple(opt) + ('kvflags',))
    p.label('L_DONE')
    p.forget()
    p.raw('    s_waitcnt lgkmcnt(0)')
    if 'pubW7' not in opt:
        p('s_add_u32 %s, %s, %d' % (s(chain.sKM), s(chain.sKM), 32 * 4096))
        p('s_add_u32 %s, %s, %d' % (s(chain.sVM), s(chain.sVM), 32 * 4096))
        p('buffer_store_dwordx4 %s, %s, s[4:7], %s offen sc1' % (v(chain.MF + 16, 4), v(chain.vL16), s(chain.sKM)))
        p('buffer_store_dwordx4 %s, %s, s[4:7], %s offen sc1' % (v(chain.MF + 20, 4), v(chain.vL16), s(chain.sVM)))
    p.wait(vm=0)
    p('s_barrier')
    p('v_mov_b32 %s, 64' % v(chain.vFlag))
    p('buffer_store_dword %s, %s, s[4:7], %s offen sc1' % (v(chain.vFlag), v(chain.vFlagOff), s(chain.sFlagOff)))
    rts(p, 3)
    p.wait(vm=0)
    p('s_endpgm')
    p.label('L_BAIL')
    p('s_load_dwordx2 s[96:97], s[0:1], %d' % KA_DBG)
    p('v_mov_b32 v120, 0x100')
    p('v_or_b32 v120, %s, v120' % s(chain.sStep))
    p('v_mov_b32 v121, %d' % DBG_BAIL)
    p('s_waitcnt lgkmcnt(0)')
    p('global_store_dword v121, v120, s[96:97]')
    p.wait(vm=0)
    p('s_endpgm')
    p.label('L_WORKER')
    p.forget()
    ws_srd(p)
    p('s_sub_u32 s%d, s%d, 1' % (80, sXCC))
    p('s_mov_b32 s81, s%d' % sTK)
    p('s_mov_b32 s%d, s80' % p2.sX)
    p('s_mov_b32 s%d, s81' % p2.sC)
    rts(p, 0)
    zero_p2_flags(p)
    p('s_cmp_eq_u32 s80, 6')
    p('s_cbranch_scc1 L_LN')
    p('s_lshl_b32 s%d, s80, 3' % qkv.sCG)
    p('s_lshr_b32 s20, s81, 2')
    p('s_add_u32 s%d, s%d, s20' % (qkv.sCG, qkv.sCG))
    p('s_and_b32 s%d, s81, 3' % qkv.sTG)
    p('s_lshl_b32 s20, s%d, 2' % qkv.sCG)
    p('s_add_u32 s20, s20, s%d' % qkv.sTG)
    p('s_lshl_b32 s20, s20, 7')
    p('s_add_u32 s20, s20, 0x%x' % WS_QFLAG)
    p('v_mov_b32 v120, 0')
    p('buffer_store_dword v120, off, s[4:7], s20 sc1')
    add_dbg(p, DBG_REG, 'Q')
    qkv.qkv_load_weights(p)
    rts(p, 1)
    wait_dbg(p, DBG_REG, 256, 'Q')
    wait_dbg(p, DBG_LNA, 32, 'QL')
    rts(p, 2)
    import main_hooks
    main_hooks.wait_dbg_fn[0] = lambda pp, tag: wait_dbg(pp, DBG_LNB, 32, 'QLB' + tag, vr=6)
    qkv.qkv_main(p, flags=True, wait_b=True)
    rts(p, 3)
    p('s_branch L_P2')
    p.label('L_LN')
    p.forget()
    add_dbg(p, DBG_REG, 'L')
    make_srd(p, 8, KA_X, 2048 * 1024)
    p('s_mov_b32 s12, s81')
    ln1.ln1_load(p, 12, 0)
    p('s_add_u32 s13, s81, 32')
    ln1.ln1_load(p, 13, 1)
    ln1.ln1_compute(p, 12, 0, nvm_after=8)
    ln1.ln1_compute(p, 13, 1, nvm_after=8)
    p.wait(vm=8)
    p('s_barrier')
    add_dbg(p, DBG_LNA, 'LN0', wait=False)
    add_dbg(p, DBG_LNB, 'LN1')
    rts(p, 3)
    wait_dbg(p, DBG_REG, 256, 'L')
    p.label('L_P2')
    p.forget()
    p('s_barrier')
    p('s_mov_b32 s%d, s80' % p2.sX)
    p('s_mov_b32 s%d, s81' % p2.sC)
    p2.p2_init(p)
    p2.p2_load_weights(p)
    p2.p2_setup(p)
    rts(p, 4)
    p2.p2_segment_loop(p, xflags=True, rt=('rt' in opt))
    p.label('L_GBAIL')
    p.label('L_EXIT')
    p('s_endpgm')
    p.raw('''.section .rodata,"a"
.p2align 6
.amdhsa_kernel %s
  .amdhsa_next_free_vgpr 512
  .amdhsa_next_free_sgpr 102
  .amdhsa_accum_offset 256
  .amdhsa_group_segment_fixed_size 0
  .amdhsa_kernarg_size 112
  .amdhsa_user_sgpr_count 2
  .amdhsa_user_sgpr_kernarg_segment_ptr 1
  .amdhsa_system_sgpr_workgroup_id_x 1
.end_amdhsa_kernel''' % NAME)
    return p
def rt_out(p, k): pass
if __name__ == '__main__':
    out = sys.argv[1]
    p = build(opt=tuple(sys.argv[2:]))
    open(out, 'w').write(p.text())
    print('insts', p.count, 'nop states', p.nops, 'bytes', len(p.text()))
```

```python
import sys
from common import *
import chain, ln1, qkv, p2
NAME = 'sequential_preLN__memory_aug_recurrent_mem_tr__glu_gated_bilinear__prompt_kernel'
HEADER = open('sequential_preLN__memory_aug_recurrent_mem_tr__glu_gated_bilinear__prompt.s.ref').read().split('; Override launch')[0]
DBG_REG, DBG_LNA, DBG_LNB, DBG_BAIL = 192, 196, 200, 208
sXCC, sTK = 92, 93
SPIN = 2000000

def wait_dbg(p, off, need, tag, cnt=94, vr=120):
    p('s_load_dwordx2 s[96:97], s[0:1], %d' % KA_DBG)
    p('v_mov_b32 v%d, %d' % (vr, off))
    p('s_mov_b32 s%d, 0' % cnt)
    p('s_waitcnt lgkmcnt(0)')
    p.label('L_WD' + tag)
    p('global_load_dword v%d, v%d, s[96:97] sc1' % (vr + 1, vr))
    p.wait(vm=0)
    p('v_readfirstlane_b32 s95, v%d' % (vr + 1))
    p('s_add_u32 s%d, s%d, 1' % (cnt, cnt))
    p('s_cmp_gt_u32 s%d, %d' % (cnt, SPIN))
    p('s_cbranch_scc1 L_GBAIL')
    p('s_cmp_lt_u32 s95, %d' % need)
    p('s_cbranch_scc1 L_WD' + tag)
    p.forget()

def add_dbg(p, off, tag, wait=True):
    if wait:
        p.wait(vm=0)
        p('s_barrier')
    p('s_load_dwordx2 s[96:97], s[0:1], %d' % KA_DBG)
    p('v_mov_b32 v120, %d' % off)
    p('v_mov_b32 v121, 1')
    p('v_or_b32 v122, s3, v0')
    p('s_waitcnt lgkmcnt(0)')
    p('v_cmp_eq_u32 vcc, 0, v122')
    p('s_and_saveexec_b64 s[98:99], vcc')
    p('s_cbranch_execz L_AD' + tag)
    p('global_atomic_add v120, v121, s[96:97]')
    p.label('L_AD' + tag)
    p('s_mov_b64 exec, s[98:99]')

def zero_p2_flags(p):
    p('s_lshl_b32 s20, s%d, 22' % p2.sX)
    p('s_add_u32 s20, s20, 0x%x' % (WS_P2 + P2_FL))
    p('s_lshl_b32 s21, s%d, 2' % p2.sC)
    p('s_add_u32 s20, s20, s21')
    p('v_lshlrev_b32 v120, 7, v0')
    p('v_mov_b32 v121, 0x%x' % OOB)
    p('v_cmp_gt_u32 vcc, 3, v0')
    p('v_cndmask_b32 v120, v121, v120, vcc')
    p('v_mov_b32 v121, 0')
    p('buffer_store_dword v121, v120, s[4:7], s20 offen')

RT = False
RTD = False
def rtd(p, word, cond_xcc, cond_tk=0):
    if not RTD: return
    lab = 'L_RTD%d' % word
    p.raw('    s_cmp_eq_u32 s%d, %d' % (sXCC, cond_xcc))
    p.raw('    s_cbranch_scc0 %s' % lab)
    p.raw('    s_cmp_eq_u32 s%d, %d' % (sTK, cond_tk))
    p.raw('    s_cbranch_scc0 %s' % lab)
    p.raw('    s_memrealtime s[84:85]')
    p.raw('    s_load_dwordx2 s[86:87], s[0:1], %d' % KA_DBG)
    p.raw('    s_waitcnt lgkmcnt(0)')
    p.raw('    v_mov_b32 v123, s84')
    p.raw('    v_mov_b32 v124, %d' % (4 * word))
    p.raw('    global_store_dword v124, v123, s[86:87]')
    p.raw('%s:' % lab)
def rts(p, k):
    if not RT: return
    p.raw('    s_memrealtime s[84:85]')
    p.raw('    s_waitcnt lgkmcnt(0)')
    p.raw('    s_lshl_b32 s83, s%d, 5' % sXCC)
    p.raw('    s_add_u32 s83, s83, s%d' % sTK)
    p.raw('    s_lshl_b32 s83, s83, 6')
    p.raw('    s_add_u32 s83, s83, 0x%x' % (WS_FLAG + 8192 + 4 * k))
    p.raw('    v_mov_b32 v123, s84')
    p.raw('    buffer_store_dword v123, off, s[4:7], s83')
def build(opt=(), stamps=False):
    global RT, RTD
    RT = 'rt' in opt
    RTD = 'rtdbg' in opt
    p2.rtd = rtd
    p2.rts = rts
    p2.WBL2 = 'wbl2' in opt
    p2.PST = 'pst' in opt
    p = Prog()
    p.raw(HEADER.rstrip('\n'))
    p.raw('; @launch grid=(256,1,1) block=(256,1,1) lds=163840')
    p.raw('.amdgcn_target "amdgcn-amd-amdhsa--gfx950"\n.text\n.globl %s\n.p2align 8\n.type %s,@function\n%s:' % (NAME, NAME, NAME))
    p('s_cmp_ge_u32 s2, 256')
    p('s_cbranch_scc1 L_EXIT')
    p('s_getreg_b32 s%d, hwreg(HW_REG_XCC_ID, 0, 4)' % sXCC)
    p('s_load_dwordx2 s[8:9], s[0:1], %d' % KA_DBG)
    p('s_and_b32 s%d, s%d, 7' % (sXCC, sXCC))
    p('s_add_u32 s10, s%d, 2' % sXCC)
    p('s_mul_i32 s11, s10, 43')
    p('s_lshr_b32 s11, s11, 7')
    p('s_mul_i32 s12, s11, 3')
    p('s_sub_u32 s10, s10, s12')
    p('s_lshl_b32 s10, s10, 2')
    p('s_lshl_b32 s11, s11, 6')
    p('s_add_u32 s10, s10, s11')
    p('s_cmp_eq_u32 s%d, 0' % sXCC)
    p('s_cselect_b32 s10, 0, s10')
    p('s_cmp_eq_u32 s%d, 7' % sXCC)
    p('s_cselect_b32 s10, 4, s10')
    p('v_mov_b32 v2, s10')
    p('v_mov_b32 v3, 1')
    p('s_waitcnt lgkmcnt(0)')
    p('v_cmp_eq_u32 vcc, 0, v0')
    p('s_and_saveexec_b64 s[10:11], vcc')
    p('s_cbranch_execz L_NOTICKET')
    p('global_atomic_add v4, v2, v3, s[8:9] sc0')
    p.wait(vm=0)
    p('v_mov_b32 v2, 0')
    p('ds_write_b32 v2, v4')
    p.wait(lgkm=0)
    p.label('L_NOTICKET')
    p('s_mov_b64 exec, s[10:11]')
    p('s_barrier')
    p('v_mov_b32 v2, 0')
    p('ds_read_b32 v4, v2')
    p.wait(lgkm=0)
    p('v_readfirstlane_b32 s%d, v4' % sTK)
    p('s_barrier')
    p('s_cmp_ge_u32 s%d, 32' % sTK)
    p('s_cbranch_scc1 L_EXIT')
    p('s_cmp_eq_u32 s%d, 0' % sXCC)
    p('s_cbranch_scc0 L_WORKER')
    p('s_mov_b32 s%d, s%d' % (chain.sH, sTK))
    chain.chain_setup(p)
    rts(p, 0)
    rtd(p, 2, 0)
    p('s_lshl_b32 s30, s%d, 7' % chain.sH)
    p('s_add_u32 s30, s30, 0x%x' % WS_FLAG)
    p('v_mov_b32 v120, 0')
    p('buffer_store_dword v120, off, s[4:7], s30 sc1')
    chain.chain_init_globals(p)
    add_dbg(p, DBG_REG, 'C')
    chain.chain_load_weights(p)
    rts(p, 1)
    rtd(p, 3, 0)
    chain.chain_init_mem0(p)
    wait_dbg(p, DBG_REG, 256, 'C')
    p('s_barrier')
    rts(p, 2)
    rtd(p, 4, 0)
    chain.chain_loop(p, stamps=stamps, opt=tuple(opt) + ('kvflags',))
    p.label('L_DONE')
    p.forget()
    p.raw('    s_waitcnt lgkmcnt(0)')
    if 'pubW7' not in opt:
        p('s_add_u32 %s, %s, %d' % (s(chain.sKM), s(chain.sKM), 32 * 4096))
        p('s_add_u32 %s, %s, %d' % (s(chain.sVM), s(chain.sVM), 32 * 4096))
        p('buffer_store_dwordx4 %s, %s, s[4:7], %s offen sc1' % (v(chain.MF + 16, 4), v(chain.vL16), s(chain.sKM)))
        p('buffer_store_dwordx4 %s, %s, s[4:7], %s offen sc1' % (v(chain.MF + 20, 4), v(chain.vL16), s(chain.sVM)))
    p.wait(vm=0)
    p('s_barrier')
    p('v_mov_b32 %s, 64' % v(chain.vFlag))
    p('buffer_store_dword %s, %s, s[4:7], %s offen sc1' % (v(chain.vFlag), v(chain.vFlagOff), s(chain.sFlagOff)))
    rts(p, 3)
    rtd(p, 5, 0)
    p.wait(vm=0)
    p('s_endpgm')
    p.label('L_BAIL')
    p('s_load_dwordx2 s[96:97], s[0:1], %d' % KA_DBG)
    p('v_mov_b32 v120, 0x100')
    p('v_or_b32 v120, %s, v120' % s(chain.sStep))
    p('v_mov_b32 v121, %d' % DBG_BAIL)
    p('s_waitcnt lgkmcnt(0)')
    p('global_store_dword v121, v120, s[96:97]')
    p.wait(vm=0)
    p('s_endpgm')
    p.label('L_WORKER')
    p.forget()
    ws_srd(p)
    p('s_sub_u32 s%d, s%d, 1' % (80, sXCC))
    p('s_mov_b32 s81, s%d' % sTK)
    p('s_mov_b32 s%d, s80' % p2.sX)
    p('s_mov_b32 s%d, s81' % p2.sC)
    rts(p, 0)
    zero_p2_flags(p)
    p('s_cmp_eq_u32 s80, 6')
    p('s_cbranch_scc1 L_LN')
    p('s_lshl_b32 s%d, s80, 3' % qkv.sCG)
    p('s_lshr_b32 s20, s81, 2')
    p('s_add_u32 s%d, s%d, s20' % (qkv.sCG, qkv.sCG))
    p('s_and_b32 s%d, s81, 3' % qkv.sTG)
    p('s_lshl_b32 s20, s%d, 2' % qkv.sCG)
    p('s_add_u32 s20, s20, s%d' % qkv.sTG)
    p('s_lshl_b32 s20, s20, 7')
    p('s_add_u32 s20, s20, 0x%x' % WS_QFLAG)
    p('v_mov_b32 v120, 0')
    p('buffer_store_dword v120, off, s[4:7], s20 sc1')
    add_dbg(p, DBG_REG, 'Q')
    qkv.qkv_load_weights(p)
    rts(p, 1)
    wait_dbg(p, DBG_REG, 256, 'Q')
    wait_dbg(p, DBG_LNA, 32, 'QL')
    rts(p, 2)
    rtd(p, 6, 1)
    import main_hooks
    main_hooks.wait_dbg_fn[0] = lambda pp, tag: wait_dbg(pp, DBG_LNB, 32, 'QLB' + tag, vr=6)
    qkv.qkv_main(p, flags=True, wait_b=True)
    rts(p, 3)
    rtd(p, 7, 1)
    p('s_branch L_P2')
    p.label('L_LN')
    p.forget()
    add_dbg(p, DBG_REG, 'L')
    make_srd(p, 8, KA_X, 2048 * 1024)
    p('s_mov_b32 s12, s81')
    ln1.ln1_load(p, 12, 0)
    p('s_add_u32 s13, s81, 32')
    ln1.ln1_load(p, 13, 1)
    ln1.ln1_compute(p, 12, 0, nvm_after=8)
    ln1.ln1_compute(p, 13, 1, nvm_after=8)
    p.wait(vm=8)
    p('s_barrier')
    add_dbg(p, DBG_LNA, 'LN0', wait=False)
    add_dbg(p, DBG_LNB, 'LN1')
    rts(p, 3)
    wait_dbg(p, DBG_REG, 256, 'L')
    p.label('L_P2')
    p.forget()
    p('s_barrier')
    p('s_mov_b32 s%d, s80' % p2.sX)
    p('s_mov_b32 s%d, s81' % p2.sC)
    p2.p2_init(p)
    p2.p2_load_weights(p)
    p2.p2_setup(p)
    rts(p, 4)
    rtd(p, 8, 1)
    p2.p2_segment_loop(p, xflags=True, rt=('rt' in opt))
    p.label('L_GBAIL')
    p.label('L_EXIT')
    p('s_endpgm')
    p.raw('''.section .rodata,"a"
.p2align 6
.amdhsa_kernel %s
  .amdhsa_next_free_vgpr 512
  .amdhsa_next_free_sgpr 102
  .amdhsa_accum_offset 256
  .amdhsa_group_segment_fixed_size 0
  .amdhsa_kernarg_size 112
  .amdhsa_user_sgpr_count 2
  .amdhsa_user_sgpr_kernarg_segment_ptr 1
  .amdhsa_system_sgpr_workgroup_id_x 1
.end_amdhsa_kernel''' % NAME)
    return p
def rt_out(p, k): pass
if __name__ == '__main__':
    out = sys.argv[1]
    p = build(opt=tuple(sys.argv[2:]))
    open(out, 'w').write(p.text())
    print('insts', p.count, 'nop states', p.nops, 'bytes', len(p.text()))
```

```python
from common import *
sX, sC, sSeg, sN = 12, 13, 14, 15
sT, sT2, sT3, sM = 20, 21, 22, 23
sBase = 16
sScale2 = 18
sCnt = 24
sMask = 64
SPIN = 400000
SLEEP = 4
OX_L = 0
HM_L = 8192
ST_L = 12288
ROW_L = 12800
TR_L = 16384
TR_RS = 272
HN_L = 65536
vL16, vSelA, vTRw, vTRr, vIn, vOut, vRow, vFlagLd, vFlagSt, vHNst, vOXw, vHMw, vOrow = 1, 2, 3, 4, 5, 6, 7, 8, 9, 10, 11, 12, 13
vIn2 = 14
t0r, t1r, t2r, t3r = 16, 17, 18, 19
SEL = 20
H = 24
W0 = 32
WD = 192

def p2_load_weights(p):
    L = 'v0'
    p('s_load_dwordx2 s[48:49], s[0:1], %d' % KA_WO)
    p('s_load_dwordx4 s[52:55], s[0:1], %d' % KA_WG)
    p('s_load_dwordx2 s[56:57], s[0:1], %d' % KA_WD)
    p('v_lshlrev_b32 v%d, 4, v0' % vL16)
    vE = [32, 33, 34, 35]
    vG = 36
    vA = [40, 41, 42, 43]
    vB = 44
    for q in range(4):
        p('v_xor_b32 v%d, %d, v0' % (t0r, 4 * q))
        p('v_lshlrev_b32 v%d, 4, v%d' % (vE[q], t0r))
    p('v_lshrrev_b32 v%d, 3, v0' % t0r)
    p('v_mul_u32_u24 v%d, 2752, v%d' % (t0r, t0r))
    p('v_and_b32 v%d, 7, v0' % t1r)
    p('v_lshl_add_u32 v%d, v%d, 4, v%d' % (vG, t1r, t0r))
    for G in range(4):
        p('v_lshrrev_b32 v%d, 2, v0' % t0r)
        p('v_lshlrev_b32 v%d, 10, v%d' % (vA[G], t0r))
        p('v_bfe_u32 v%d, v0, 2, 2' % t0r)
        p('v_xor_b32 v%d, %d, v%d' % (t0r, G, t0r))
        p('v_lshlrev_b32 v%d, 2, v%d' % (t0r, t0r))
        p('v_and_b32 v%d, 3, v0' % t1r)
        p('v_add_u32 v%d, v%d, v%d' % (t0r, t0r, t1r))
        p('s_lshl_b32 s%d, s3, 4' % sT)
        p('v_add_u32 v%d, s%d, v%d' % (t0r, sT, t0r))
        p('v_lshl_add_u32 v%d, v%d, 4, v%d' % (vA[G], t0r, vA[G]))
    p('v_lshrrev_b32 v%d, 4, v0' % t0r)
    p('v_lshlrev_b32 v%d, 3, v%d' % (t0r, t0r))
    p('v_bfe_u32 v%d, v0, 2, 2' % t1r)
    p('v_add_u32 v%d, v%d, v%d' % (t0r, t0r, t1r))
    p('v_lshlrev_b32 v%d, 7, v%d' % (t0r, t0r))
    p('v_and_b32 v%d, 3, v0' % t1r)
    p('v_lshl_add_u32 v%d, v%d, 3, v%d' % (t0r, t1r, t0r))
    p('s_lshl_b32 s%d, s3, 5' % sT)
    p('v_add_u32 v%d, s%d, v%d' % (vB, sT, t0r))
    p('s_waitcnt lgkmcnt(0)')
    p('s_mov_b32 s50, 0x400000'); p('s_mov_b32 s51, 0x20000')
    p('s_mov_b32 s60, s52'); p('s_mov_b32 s61, s53'); p('s_mov_b32 s62, %d' % (512 * 1376 * 2)); p('s_mov_b32 s63, 0x20000')
    p('s_mov_b32 s52, s54'); p('s_mov_b32 s53, s55'); p('s_mov_b32 s54, %d' % (512 * 1376 * 2)); p('s_mov_b32 s55, 0x20000')
    p('s_mov_b32 s58, %d' % (1376 * 512 * 2)); p('s_mov_b32 s59, 0x20000')
    p('s_cmp_lt_u32 s3, 2')
    p('s_cselect_b32 s44, s60, s52'); p('s_cselect_b32 s45, s61, s53')
    p('s_mov_b32 s46, %d' % (512 * 1376 * 2)); p('s_mov_b32 s47, 0x20000')
    NP, RING = 10, 5
    def issue(n):
        base = (n % RING) * 32768
        p('s_lshl_b32 s%d, s3, 13' % sM)
        p('s_add_u32 s%d, s%d, %d' % (sM, sM, base))
        if n < 6:
            if n < 4:
                p('s_lshl_b32 s%d, s%d, 7' % (sT, sC)); off = 32 * n; srd = 48
            else:
                p('s_lshl_b32 s%d, s%d, 6' % (sT, sC)); off = 32 * (n - 4); srd = 56
            p('s_lshl_b32 s%d, s3, 3' % sT2)
            p('s_add_u32 s%d, s%d, s%d' % (sT, sT, sT2))
            p('s_add_u32 s%d, s%d, %d' % (sT, sT, off))
            p('s_lshl_b32 s%d, s%d, 10' % (sT, sT))
            for k in range(8):
                p('s_mov_b32 m0, s%d' % sM)
                p('s_add_u32 s%d, s%d, 1024' % (sM, sM))
                p('buffer_load_dwordx4 v%d, s[%d:%d], s%d offen lds' % (vE[k & 3], srd, srd + 3, sT))
                p('s_add_u32 s%d, s%d, 1024' % (sT, sT))
        else:
            j = n - 6
            p('s_and_b32 s%d, s3, 1' % sT)
            p('s_lshl_b32 s%d, s%d, 6' % (sT, sT))
            p('s_add_u32 s%d, s%d, %d' % (sT, sT, 128 * j))
            p('s_mul_i32 s%d, s%d, 2752' % (sT, sT))
            p('s_lshl_b32 s%d, s%d, 7' % (sT2, sC))
            p('s_add_u32 s%d, s%d, s%d' % (sT, sT, sT2))
            for k in range(8):
                p('s_mov_b32 m0, s%d' % sM)
                p('s_add_u32 s%d, s%d, 1024' % (sM, sM))
                p('buffer_load_dwordx4 v%d, s[44:47], s%d offen lds' % (vG, sT))
                p('s_add_u32 s%d, s%d, %d' % (sT, sT, 8 * 2752))
    def consume(n):
        base = (n % RING) * 32768
        if n < 6:
            for G in range(4): p('v_add_u32 v%d, %d, v%d' % (48 + G, base, vA[G]))
            for G in range(4):
                for T in range(2):
                    for hh in range(2):
                        off = 8 * T + hh * 16384
                        if n < 4: dst = a(((G * 2 + T) * 4 + n) * 4 + 2 * hh, 2)
                        else: dst = v(WD + ((G * 2 + T) * 2 + (n - 4)) * 4 + 2 * hh, 2)
                        p('ds_read_b64_tr_b16 %s, v%d offset:%d' % (dst, 48 + G, off))
        else:
            j = n - 6
            p('v_add_u32 v48, %d, v%d' % (base, vB))
            for kk in range(4):
                ks = 4 * j + kk
                for mat in range(2):
                    for hh in range(2):
                        off = mat * 16384 + (32 * kk + 4 * hh) * 128
                        p('ds_read_b64_tr_b16 %s, v48 offset:%d' % (a(128 + (ks * 2 + mat) * 4 + 2 * hh, 2), off))
    for n in range(RING): issue(n)
    for n in range(NP):
        inflight = min(NP, n + RING) - n - 1
        p.wait(vm=8 * inflight)
        p('s_barrier')
        consume(n)
        p.wait(lgkm=0)
        p('s_barrier')
        if n + RING < NP: issue(n + RING)

def p2_setup(p):
    L = 'v0'; t0, t1, t2 = v(t0r), v(t1r), v(t2r)
    p('s_lshl_b32 s%d, s%d, 22' % (sBase, sX))
    p('s_add_u32 s%d, s%d, 0x%x' % (sBase, sBase, WS_P2))
    p('s_mov_b32 s%d, 0x3e0293ee' % sScale2); p('s_mov_b32 s%d, 0x3e0293ee' % (sScale2 + 1))
    p('v_lshlrev_b32 v%d, 4, v0' % vL16)
    p('v_and_b32 %s, 15, v0' % t0)
    p('v_and_b32 %s, 1, v0' % t1)
    p('v_lshlrev_b32 %s, 4, %s' % (t1, t1))
    p('v_mov_b32 %s, 0x3f80' % t2)
    p('v_lshlrev_b32 %s, %s, %s' % (t2, t1, t2))
    p('v_lshrrev_b32 %s, 1, %s' % (t0, t0))
    for q in range(4):
        p('v_cmp_eq_u32 vcc, %d, %s' % (q, t0))
        p('v_mov_b32 %s, 0' % v(SEL + q))
        p('v_cndmask_b32 %s, %s, %s, vcc' % (v(SEL + q), v(SEL + q), t2))
    p('s_mul_i32 s%d, s3, 8704' % sT)
    p('s_add_u32 s%d, s%d, %d' % (sT, sT, TR_L))
    p('v_and_b32 %s, 15, v0' % t0)
    p('v_mul_u32_u24 %s, %d, %s' % (t0, TR_RS, t0))
    p('v_lshrrev_b32 %s, 4, v0' % t1)
    p('v_lshl_add_u32 %s, %s, 4, %s' % (t0, t1, t0))
    p('v_add_u32 v%d, s%d, %s' % (vTRw, sT, t0))
    p('v_mul_u32_u24 %s, %d, %s' % (t0, TR_RS, t1))
    p('v_and_b32 %s, 15, v0' % t2)
    p('v_lshl_add_u32 %s, %s, 4, %s' % (t0, t2, t0))
    p('v_add_u32 v%d, s%d, %s' % (vTRr, sT, t0))
    p('v_lshlrev_b32 %s, 15, %s' % (t0, t1))
    p('v_lshl_add_u32 %s, %s, 4, %s' % (t0, t2, t0))
    p('s_lshl_b32 s%d, s%d, 10' % (sT, sC))
    p('s_lshl_b32 s%d, s3, 8' % sT2)
    p('s_add_u32 s%d, s%d, s%d' % (sT, sT, sT2))
    p('v_add_u32 v%d, s%d, %s' % (vOut, sT, t0))
    p('v_lshlrev_b32 %s, 10, %s' % (t0, t1))
    p('v_lshl_add_u32 %s, %s, 4, %s' % (t0, t2, t0))
    p('s_lshl_b32 s%d, s%d, 15' % (sT, sC))
    p('s_add_u32 s%d, s%d, s%d' % (sT, sT, sT2))
    p('v_add_u32 v%d, s%d, %s' % (vIn, sT, t0))
    p('v_mov_b32 %s, 0x%x' % (t0, OOB))
    p('v_cmp_gt_u32 vcc, 32, v0')
    p('v_cndmask_b32 v%d, %s, v%d, vcc' % (vIn2, t0, vIn))
    p('v_lshlrev_b32 %s, 4, v0' % t0)
    p('v_add_u32 %s, s%d, %s' % (t0, sT2, t0))
    p('v_mov_b32 %s, 0x%x' % (t1, OOB))
    p('v_cmp_gt_u32 vcc, 16, v0')
    p('v_cndmask_b32 v%d, %s, %s, vcc' % (vOrow, t1, t0))
    p('v_lshrrev_b32 %s, 4, v0' % t0)
    p('v_lshlrev_b32 %s, 6, %s' % (t0, t0))
    p('v_and_b32 %s, 7, v0' % t1)
    p('v_lshl_add_u32 %s, %s, 1, %s' % (t0, t1, t0))
    p('s_add_u32 s%d, s%d, %d' % (sT, sT2, ROW_L))
    p('v_add_u32 %s, s%d, %s' % (t0, sT, t0))
    p('v_mov_b32 %s, %d' % (t1, ST_L + 128))
    p('v_bfe_u32 %s, v0, 3, 1' % t2)
    p('v_cmp_eq_u32 vcc, 0, %s' % t2)
    p('v_cndmask_b32 v%d, %s, %s, vcc' % (vRow, t1, t0))
    p('v_bfe_u32 %s, v0, 2, 2' % t0)
    p('v_lshlrev_b32 %s, 10, %s' % (t0, t0))
    p('v_and_b32 %s, 3, v0' % t1)
    p('v_lshl_add_u32 %s, %s, 8, %s' % (t0, t1, t0))
    p('s_lshl_b32 s%d, s3, 12' % sT)
    p('s_lshr_b32 s%d, s%d, 4' % (sT3, sC))
    p('s_lshl_b32 s%d, s%d, 14' % (sT3, sT3))
    p('s_add_u32 s%d, s%d, s%d' % (sT, sT, sT3))
    p('s_and_b32 s%d, s%d, 15' % (sT3, sC))
    p('s_lshl_b32 s%d, s%d, 4' % (sT3, sT3))
    p('s_add_u32 s%d, s%d, s%d' % (sT, sT, sT3))
    p('v_add_u32 %s, s%d, %s' % (t0, sT, t0))
    p('v_mov_b32 %s, 0x%x' % (t1, OOB))
    p('v_cmp_gt_u32 vcc, 16, v0')
    p('v_cndmask_b32 v%d, %s, %s, vcc' % (vHNst, t1, t0))
    p('s_and_b32 s%d, s3, 1' % sT)
    p('s_lshl_b32 s%d, s%d, 12' % (sT, sT))
    p('s_lshr_b32 s%d, s3, 1' % sT3)
    p('s_lshl_b32 s%d, s%d, 11' % (sT3, sT3))
    p('s_add_u32 s%d, s%d, s%d' % (sT, sT, sT3))
    p('s_add_u32 s%d, s%d, %d' % (sT, sT, OX_L))
    p('v_add_u32 v%d, s%d, v%d' % (vOXw, sT, vL16))
    p('v_lshlrev_b32 %s, 3, v0' % t0)
    p('s_lshl_b32 s%d, s3, 9' % sT)
    p('s_add_u32 s%d, s%d, %d' % (sT, sT, HM_L))
    p('v_add_u32 v%d, s%d, %s' % (vHMw, sT, t0))
    p('v_lshlrev_b32 %s, 2, v0' % t0)
    p('v_mov_b32 %s, 0x%x' % (t1, OOB))
    p('v_cmp_gt_u32 vcc, 32, v0')
    p('v_cndmask_b32 v%d, %s, %s, vcc' % (vFlagLd, t1, t0))
    p('v_or_b32 %s, s3, v0' % t0)
    p('s_lshl_b32 s%d, s%d, 2' % (sT, sC))
    p('v_mov_b32 %s, s%d' % (t2, sT))
    p('v_cmp_eq_u32 vcc, 0, %s' % t0)
    p('v_cndmask_b32 v%d, %s, %s, vcc' % (vFlagSt, t1, t2))
    p('v_and_b32 %s, 15, v0' % t0)
    p('s_and_b32 s%d, s3, 1' % sT)
    p('s_lshl_b32 s%d, s%d, 4' % (sT, sT))
    p('v_add_u32 %s, s%d, %s' % (t0, sT, t0))
    p('v_lshrrev_b32 %s, 4, v0' % t1)
    p('v_lshlrev_b32 %s, 2, %s' % (t1, t1))
    for jt in range(2):
        for r in range(4):
            p('v_add_u32 %s, %d, %s' % (t2, 16 * jt + r, t1))
            p('v_cmp_le_u32 %s, %s, %s' % (s(sMask + 2 * (4 * jt + r), 2), t2, t0))

WBL2 = False
PST = False
PREG = [48, 50, 52, 54, 56, 58, 60, 62, 30, 32, 34, 36, 44, 46]
def pst(p, k):
    if PST: p.raw('    s_memtime s[%d:%d]' % (PREG[k], PREG[k] + 1))
def rts(p, k): pass
def rtd(p, w, x, t=0): pass

def poll_flags(p, off_sreg, imm, seq_sreg, nlanes, tag):
    p('s_mov_b32 s%d, 0' % sCnt)
    p.label('L_P2POLL' + tag)
    p('buffer_load_dword v%d, v%d, s[4:7], s%d offen offset:%d sc1' % (t0r, vFlagLd, off_sreg, imm))
    p.wait(vm=0)
    p('v_cmp_gt_u32 vcc, s%d, v%d' % (seq_sreg, t0r))
    p('s_and_b32 vcc_hi, vcc_hi, 0')
    if nlanes < 32: p('s_and_b32 vcc_lo, vcc_lo, 0x%x' % ((1 << nlanes) - 1))
    p('s_cbranch_vccz L_P2OK' + tag)
    p('s_add_u32 s%d, s%d, 1' % (sCnt, sCnt))
    p('s_cmp_lt_u32 s%d, %d' % (sCnt, SPIN))
    p('s_cbranch_scc1 L_P2POLL' + tag)
    p('s_branch L_P2BAIL')
    p.label('L_P2OK' + tag)
    p.forget()

def poll_one(p, off_sreg, need_sreg, tag):
    saved_vm = list(p.vm); saved_lg = list(p.lgkm)
    p('s_cmp_eq_u32 s3, 0')
    p('s_cbranch_scc0 L_P2OK' + tag)
    p('s_mov_b32 s%d, 0' % sCnt)
    p.label('L_P2POLL' + tag)
    p('buffer_load_dword v%d, off, s[4:7], s%d sc1' % (t0r, off_sreg))
    p.wait(vm=0)
    p('v_readfirstlane_b32 s%d, v%d' % (sT3, t0r))
    p('s_cmp_ge_u32 s%d, s%d' % (sT3, need_sreg))
    p('s_cbranch_scc1 L_P2OK' + tag)
    p('s_sleep %d' % SLEEP)
    p('s_add_u32 s%d, s%d, 1' % (sCnt, sCnt))
    p('s_cmp_lt_u32 s%d, %d' % (sCnt, SPIN))
    p('s_cbranch_scc1 L_P2POLL' + tag)
    p('s_branch L_P2BAIL')
    p.label('L_P2OK' + tag)
    p.vm = saved_vm; p.lgkm = saved_lg
    p('s_barrier')

def post_flag(p, imm):
    p.wait(vm=0)
    p('s_barrier')
    p('v_mov_b32 v%d, s%d' % (t0r, sN))
    p('s_add_u32 s%d, s%d, %d' % (sT, sBase, P2_FL))
    p('buffer_store_dword v%d, v%d, s[4:7], s%d offen offset:%d' % (t0r, vFlagSt, sT, imm))

def reduce_all(p, r, tmp):
    for k in (1, 2, 4, 8):
        p('v_add_f32_dpp %s, %s, %s row_ror:%d row_mask:0xf bank_mask:0xf' % (v(r), v(r), v(r), k))
    p('v_mov_b32 %s, %s' % (v(tmp), v(r)))
    p('v_permlane16_swap_b32 %s, %s' % (v(tmp), v(r)))
    p('v_add_f32 %s, %s, %s' % (v(r), v(r), v(tmp)))
    p('v_mov_b32 %s, %s' % (v(tmp), v(r)))
    p('v_permlane32_swap_b32 %s, %s' % (v(tmp), v(r)))
    p('v_add_f32 %s, %s, %s' % (v(r), v(r), v(tmp)))

def transposed_ops(p, ACC, soff_reg, qt, PKR):
    ops = []
    for G in range(4):
        D = ACC + (qt * 4 + G) * 8
        R = PKR + G * 4
        for T in range(2):
            for hh in range(2):
                ops.append(lambda R=R, D=D, T=T, hh=hh: p('v_cvt_pk_bf16_f32 %s, %s, %s' % (v(R + 2 * T + hh), v(D + 4 * T + 2 * hh), v(D + 4 * T + 2 * hh + 1))))
        ops.append(lambda R=R, G=G: p('ds_write_b128 v%d, %s offset:%d' % (vTRw, v(R, 4), qt * 16 * TR_RS + G * 64)))
    for k in range(4): ops.append(lambda k=k: p('ds_read_b128 %s, v%d offset:%d' % (v(PKR + 4 * k, 4), vTRr, (4 * qt + k) * 4 * TR_RS)))
    for k in range(4):
        def st(k=k):
            p('buffer_store_dwordx4 %s, v%d, s[4:7], s%d offen' % (v(PKR + 4 * k, 4), vOut, soff_reg))
            if not (qt == 1 and k == 3): p('s_add_u32 s%d, s%d, %d' % (soff_reg, soff_reg, 4 * 32768))
        ops.append(st)
    return ops

def gemm_with_store(p, mf, nper, ACC, soff_reg, PK0, PK1):
    for i in range(nper): mf(0, i)
    ops = transposed_ops(p, ACC, soff_reg, 0, PK0)
    per = -(-len(ops) // (nper - 4))
    for i in range(nper):
        mf(1, i)
        if i >= 3:
            for _ in range(per):
                if ops: ops.pop(0)()
    while ops: ops.pop(0)()
    for op in transposed_ops(p, ACC, soff_reg, 1, PK1): op()

def row_out(p, R4, RD):
    for r in range(4):
        p('v_cvt_pk_bf16_f32 %s, %s, %s' % (v(RD + r), v(R4 + r), v(R4 + r)))
        p('ds_write_b16 v%d, %s offset:%d' % (vRow, v(RD + r), 16 * r))
    p('s_lshl_b32 s%d, s3, 8' % sT)
    p('s_add_u32 s%d, s%d, %d' % (sT, sT, ROW_L))
    p('v_and_b32 v%d, 15, v0' % t0r)
    p('v_lshlrev_b32 v%d, 4, v%d' % (t0r, t0r))
    p('v_add_u32 v%d, s%d, v%d' % (t0r, sT, t0r))
    p.wait(lgkm=0)
    p('ds_read_b128 %s, v%d' % (v(RD, 4), t0r))

def p2_segment_loop(p, xflags=True, rt=False):
    t0, t1, t2 = v(t0r), v(t1r), v(t2r)
    p('s_mov_b32 s%d, s%d' % (sSeg, sX))
    p('s_mov_b32 s%d, 1' % sN)
    p.label('L_P2SEG')
    p.forget()
    sKV = 25
    if xflags:
        p('s_and_b32 s%d, s%d, 3' % (sT2, sSeg))
        p('s_lshr_b32 s26, s%d, 2' % sSeg)
        p('s_add_u32 s26, s26, 1')
        p('s_lshl_b32 s%d, s%d, 2' % (sT, sC))
        p('s_add_u32 s%d, s%d, s%d' % (sT, sT, sT2))
        p('s_lshl_b32 s%d, s%d, 7' % (sT, sT))
        p('s_add_u32 s27, s%d, 0x%x' % (sT, WS_QFLAG))
        poll_one(p, 27, 26, 'KV')
        p('s_lshr_b32 s%d, s%d, 1' % (sT, sC))
        p('s_add_u32 s%d, s%d, 32' % (sT, sT))
        p('s_lshl_b32 s%d, s%d, 2' % (sT, sT))
        p('s_add_u32 s%d, s%d, s%d' % (sT, sT, sT2))
        p('s_lshl_b32 s%d, s%d, 7' % (sT, sT))
        p('s_add_u32 s27, s%d, 0x%x' % (sT, WS_QFLAG))
        poll_one(p, 27, 26, 'Q')
    p('s_lshl_b32 s%d, s%d, 5' % (sKV, sSeg))
    p('s_add_u32 s%d, s%d, s%d' % (sKV, sKV, sC))
    QF, KF, KMF, VF, VMF = W0, W0 + 16, W0 + 48, W0 + 64, W0 + 80
    SA = W0 + 88
    p('s_lshl_b32 s%d, s%d, 13' % (sT, sKV))
    p('s_and_b32 s%d, s3, 1' % sT2)
    p('s_lshl_b32 s%d, s%d, 12' % (sT2, sT2))
    p('s_add_u32 s%d, s%d, s%d' % (sT2, sT2, sT))
    p('s_add_u32 s%d, s%d, 0x%x' % (sT2, sT2, WS_QX))
    for ks in range(4): p('buffer_load_dwordx4 %s, v%d, s[4:7], s%d offen offset:%d' % (v(QF + 4 * ks, 4), vL16, sT2, ks * 1024))
    p('s_add_u32 s%d, s%d, 0x%x' % (sT2, sT, WS_KX))
    for ks in range(4): p('buffer_load_dwordx4 %s, v%d, s[4:7], s%d offen offset:%d' % (v(KF + 4 * ks, 4), vL16, sT2, ks * 1024))
    p('s_add_u32 s%d, s%d, 4096' % (sT2, sT2))
    for ks in range(4): p('buffer_load_dwordx4 %s, v%d, s[4:7], s%d offen offset:%d' % (v(KF + 16 + 4 * ks, 4), vL16, sT2, ks * 1024))
    p('s_lshr_b32 s%d, s3, 1' % sT2)
    p('s_lshl_b32 s%d, s%d, 12' % (sT2, sT2))
    p('s_add_u32 s%d, s%d, s%d' % (sT2, sT2, sT))
    p('s_add_u32 s%d, s%d, 0x%x' % (sT2, sT2, WS_VX))
    for et in range(4): p('buffer_load_dwordx4 %s, v%d, s[4:7], s%d offen offset:%d' % (v(VF + 4 * et, 4), vL16, sT2, et * 1024))
    XR = W0 + 100
    p('s_lshl_b32 s%d, s%d, 5' % (sT2, sSeg))
    p('s_add_u32 s%d, s%d, s%d' % (sT2, sT2, sC))
    p('s_lshl_b32 s28, s%d, 10' % sT2)
    p('buffer_load_dwordx4 %s, v%d, s[8:11], s28 offen' % (v(XR, 4), vOrow))
    if xflags:
        p('s_lshl_b32 s%d, s%d, 7' % (sT2, sC))
        p('s_add_u32 s27, s%d, 0x%x' % (sT2, WS_FLAG))
        p('s_add_u32 s26, s%d, 1' % sSeg)
        poll_one(p, 27, 26, 'CH')
    pst(p, 0)
    p('s_lshl_b32 s%d, s%d, 12' % (sT, sKV))
    p('s_add_u32 s%d, s%d, 0x%x' % (sT2, sT, WS_KM))
    for ks in range(4): p('buffer_load_dwordx4 %s, v%d, s[4:7], s%d offen offset:%d' % (v(KMF + 4 * ks, 4), vL16, sT2, ks * 1024))
    p('s_lshr_b32 s%d, s3, 1' % sT2)
    p('s_lshl_b32 s%d, s%d, 11' % (sT2, sT2))
    p('s_add_u32 s%d, s%d, s%d' % (sT2, sT2, sT))
    p('s_add_u32 s%d, s%d, 0x%x' % (sT2, sT2, WS_VM))
    for j in range(2): p('buffer_load_dwordx4 %s, v%d, s[4:7], s%d offen offset:%d' % (v(VMF + 4 * j, 4), vL16, sT2, j * 1024))
    if rt:
        rts(p, 5)
    for ks in range(4):
        C = lambda r: '0' if ks == 0 else v(r, 4)
        for jt in range(2):
            p('v_mfma_f32_16x16x32_bf16 %s, %s, %s, %s' % (v(SA + 4 * jt, 4), v(KF + 16 * jt + 4 * ks, 4), v(QF + 4 * ks, 4), C(SA + 4 * jt)))
    for ks in range(4):
        p('v_mfma_f32_16x16x32_bf16 %s, %s, %s, %s' % (v(SA + 8, 4), v(KMF + 4 * ks, 4), v(QF + 4 * ks, 4), '0' if ks == 0 else v(SA + 8, 4)))
    pst(p, 1)
    X = SA
    p('v_mov_b32 %s, 0xf149f2ca' % t2)
    for r in range(8): p('v_cndmask_b32 %s, %s, %s, %s' % (v(X + r), t2, v(X + r), s(sMask + 2 * r, 2)))
    p('v_max3_f32 %s, %s, %s, %s' % (t0, v(X), v(X + 1), v(X + 2)))
    p('v_max3_f32 %s, %s, %s, %s' % (t1, v(X + 3), v(X + 4), v(X + 5)))
    p('v_max3_f32 %s, %s, %s, %s' % (t0, t0, v(X + 6), v(X + 7)))
    p('v_max3_f32 %s, %s, %s, %s' % (t1, t1, v(X + 8), v(X + 9)))
    p('v_max_f32 %s, %s, %s' % (t0, t0, t1))
    p('v_mov_b32 %s, %s' % (t1, t0))
    p('v_permlane16_swap_b32 %s, %s' % (t1, t0))
    p('v_max_f32 %s, %s, %s' % (t0, t0, t1))
    p('v_mov_b32 %s, %s' % (t1, t0))
    p('v_permlane32_swap_b32 %s, %s' % (t1, t0))
    p('v_max_f32 %s, %s, %s' % (t0, t0, t1))
    p('v_mul_f32 %s, s%d, %s' % (t0, sScale2, t0))
    for r in range(0, 10, 2):
        p('v_pk_fma_f32 %s, %s, %s, %s op_sel_hi:[1,0,0] neg_lo:[0,0,1] neg_hi:[0,0,1]' % (v(X + r, 2), v(X + r, 2), s(sScale2, 2), v(t0r, 2)))
    for r in range(10): p('v_exp_f32 %s, %s' % (v(X + r), v(X + r)))
    PX, PM = QF, QF + 4
    for r in range(4): p('v_cvt_pk_bf16_f32 %s, %s, %s' % (v(PX + r), v(X + 2 * r), v(X + 2 * r + 1)))
    p('v_cvt_pk_bf16_f32 %s, %s, %s' % (v(PM), v(X + 8), v(X + 9)))
    p('v_cvt_pk_bf16_f32 %s, %s, %s' % (v(PM + 1), v(X + 8), v(X + 9)))
    OA = KF
    for et in range(4): p('v_mfma_f32_16x16x32_bf16 %s, %s, %s, 0' % (v(OA + 4 * et, 4), v(VF + 4 * et, 4), v(PX, 4)))
    for et in range(4): p('v_mfma_f32_16x16x16_bf16 %s, %s, %s, %s' % (v(OA + 4 * et, 4), v(VMF + 2 * et, 2), v(PM, 2), v(OA + 4 * et, 4)))
    p('v_pk_add_f32 %s, %s, %s' % (v(X, 2), v(X, 2), v(X + 2, 2)))
    p('v_pk_add_f32 %s, %s, %s' % (v(X + 4, 2), v(X + 4, 2), v(X + 6, 2)))
    p('v_pk_add_f32 %s, %s, %s' % (v(X, 2), v(X, 2), v(X + 8, 2)))
    p('v_pk_add_f32 %s, %s, %s' % (v(X, 2), v(X, 2), v(X + 4, 2)))
    p('v_add_f32 %s, %s, %s' % (v(X), v(X), v(X + 1)))
    p('v_mov_b32 %s, %s' % (v(X + 1), v(X)))
    p('v_permlane16_swap_b32 %s, %s' % (v(X + 1), v(X)))
    p('v_add_f32 %s, %s, %s' % (v(X), v(X), v(X + 1)))
    p('v_mov_b32 %s, %s' % (v(X + 1), v(X)))
    p('v_permlane32_swap_b32 %s, %s' % (v(X + 1), v(X)))
    p('v_add_f32 %s, %s, %s' % (v(X), v(X), v(X + 1)))
    p('v_rcp_f32 %s, %s' % (t0, v(X)))
    for r in range(0, 16, 2): p('v_pk_mul_f32 %s, %s, %s op_sel_hi:[1,0]' % (v(OA + r, 2), v(OA + r, 2), v(t0r, 2)))
    OP = QF + 8
    for j in range(2):
        for T in range(2):
            for hh in range(2):
                p('v_cvt_pk_bf16_f32 %s, %s, %s' % (v(OP + 4 * j + 2 * T + hh), v(OA + 8 * j + 4 * T + 2 * hh), v(OA + 8 * j + 4 * T + 2 * hh + 1)))
        p('ds_write_b128 v%d, %s offset:%d' % (vOXw, v(OP + 4 * j, 4), j * 1024))
    XR2 = 28
    for r in range(4): p('v_mov_b32 %s, %s' % (v(XR2 + r), v(XR + r)))
    p.wait(lgkm=0)
    p('s_barrier')
    pst(p, 2)
    OF = W0
    ACC = W0 + 32
    for qt in range(2):
        for ec in range(4): p('ds_read_b128 %s, v%d offset:%d' % (v(OF + (qt * 4 + ec) * 4, 4), vL16, OX_L + qt * 4096 + ec * 1024))
    p('s_add_u32 s29, s%d, %d' % (sBase, P2_IN1))
    def mf_wo(qt, i):
        ec, G, T = i >> 3, (i >> 1) & 3, i & 1
        D = v(ACC + ((qt * 4 + G) * 2 + T) * 4, 4)
        p('v_mfma_f32_16x16x32_bf16 %s, %s, %s, %s' % (D, a(((G * 2 + T) * 4 + ec) * 4, 4), v(OF + (qt * 4 + ec) * 4, 4), '0' if ec == 0 else D))
    pst(p, 3)
    gemm_with_store(p, mf_wo, 32, ACC, 29, W0 + 96, W0 + 112)
    post_flag(p, 0)
    pst(p, 4)
    p('s_add_u32 s29, s%d, %d' % (sBase, P2_FL))
    poll_flags(p, 29, 0, sN, 32, 'F1')
    pst(p, 5)
    LD = W0
    p('s_add_u32 s29, s%d, %d' % (sBase, P2_IN1))
    for k in range(8):
        p('buffer_load_dwordx4 %s, v%d, s[4:7], s29 offen sc1' % (v(LD + 4 * k, 4), vIn))
        if k < 7: p('s_add_u32 s29, s29, 4096')
    p('v_mfma_f32_16x16x32_bf16 %s, %s, %s, 0' % (v(H, 4), v(XR2, 4), v(SEL, 4)))
    for k in range(8): p('v_mfma_f32_16x16x32_bf16 %s, %s, %s, %s' % (v(H, 4), v(LD + 4 * k, 4), v(SEL, 4), v(H, 4)))
    pst(p, 6)
    S1, S2 = W0 + 40, W0 + 41
    p('v_add_f32 %s, %s, %s' % (v(S1), v(H), v(H + 1)))
    p('v_mul_f32 %s, %s, %s' % (v(S2), v(H), v(H)))
    p('v_add_f32 %s, %s, %s' % (v(S1), v(S1), v(H + 2)))
    p('v_fmac_f32 %s, %s, %s' % (v(S2), v(H + 1), v(H + 1)))
    p('v_add_f32 %s, %s, %s' % (v(S1), v(S1), v(H + 3)))
    p('v_fmac_f32 %s, %s, %s' % (v(S2), v(H + 2), v(H + 2)))
    p('v_fmac_f32 %s, %s, %s' % (v(S2), v(H + 3), v(H + 3)))
    reduce_all(p, S1, t0r)
    reduce_all(p, S2, t1r)
    p('s_lshl_b32 s%d, s3, 3' % sT)
    p('s_add_u32 s%d, s%d, %d' % (sT, sT, ST_L))
    p('v_mov_b32 %s, s%d' % (t2, sT))
    p('ds_write_b64 %s, %s' % (t2, v(S1, 2)))
    p.wait(lgkm=0)
    p('s_barrier')
    p('v_mov_b32 %s, %d' % (t2, ST_L))
    p('ds_read_b128 %s, %s' % (v(W0 + 44, 4), t2))
    p('ds_read_b128 %s, %s offset:16' % (v(W0 + 48, 4), t2))
    p('v_pk_add_f32 %s, %s, %s' % (v(W0 + 44, 2), v(W0 + 44, 2), v(W0 + 46, 2)))
    p('v_pk_add_f32 %s, %s, %s' % (v(W0 + 48, 2), v(W0 + 48, 2), v(W0 + 50, 2)))
    p('v_pk_add_f32 %s, %s, %s' % (v(W0 + 44, 2), v(W0 + 44, 2), v(W0 + 48, 2)))
    p('v_mul_f32 %s, 0x3b000000, %s' % (v(W0 + 44), v(W0 + 44)))
    p('v_mul_f32 %s, 0x3b000000, %s' % (v(W0 + 45), v(W0 + 45)))
    p('v_fma_f32 %s, -%s, %s, %s' % (v(W0 + 45), v(W0 + 44), v(W0 + 44), v(W0 + 45)))
    p('v_max_f32 %s, 0, %s' % (v(W0 + 45), v(W0 + 45)))
    p('v_add_f32 %s, 0x3727c5ac, %s' % (v(W0 + 45), v(W0 + 45)))
    p('v_rsq_f32 %s, %s' % (v(W0 + 45), v(W0 + 45)))
    HNV = W0 + 52
    for r in range(4): p('v_sub_f32 %s, %s, %s' % (v(HNV + r), v(H + r), v(W0 + 44)))
    for r in range(4): p('v_mul_f32 %s, %s, %s' % (v(HNV + r), v(HNV + r), v(W0 + 45)))
    row_out(p, HNV, W0 + 56)
    p('s_add_u32 s29, s%d, %d' % (sBase, P2_HN))
    p('buffer_store_dwordx4 %s, v%d, s[4:7], s29 offen' % (v(W0 + 56, 4), vHNst))
    post_flag(p, 128)
    pst(p, 7)
    p('s_cmp_ge_u32 s%d, 22' % sC)
    p('s_cbranch_scc1 L_P2NOFFN')
    p('s_add_u32 s29, s%d, %d' % (sBase, P2_FL))
    poll_flags(p, 29, 128, sN, 32, 'F2')
    p('s_add_u32 s29, s%d, %d' % (sBase, P2_HN))
    p('s_lshl_b32 s%d, s3, 13' % sT)
    p('s_add_u32 s29, s29, s%d' % sT)
    p('s_add_u32 s%d, s%d, %d' % (sM, sT, HN_L))
    for k in range(8):
        p('s_mov_b32 m0, s%d' % sM)
        p('s_add_u32 s%d, s%d, 1024' % (sM, sM))
        p('buffer_load_dwordx4 v%d, s[4:7], s29 offen sc1 lds' % vL16)
        p('s_add_u32 s29, s29, 1024')
    p.wait(vm=0)
    p('s_barrier')
    pst(p, 8)
    GA = W0
    FR = W0 + 16
    p('v_add_u32 %s, %d, v%d' % (t2, HN_L, vL16))
    seq = [(ks, qt) for ks in range(16) for qt in range(2)]
    rd = lambda i: p('ds_read_b128 %s, %s offset:%d' % (v(FR + 4 * (i & 3), 4), t2, seq[i][1] * 16384 + seq[i][0] * 1024))
    for i in range(3): rd(i)
    for i, (ks, qt) in enumerate(seq):
        if i + 3 < 32: rd(i + 3)
        for mat in range(2):
            D = v(GA + (qt * 2 + mat) * 4, 4)
            p('v_mfma_f32_16x16x32_bf16 %s, %s, %s, %s' % (D, a(128 + (ks * 2 + mat) * 4, 4), v(FR + 4 * (i & 3), 4), '0' if ks == 0 else D))
    for qt in range(2):
        for hh in range(2):
            p('v_pk_mul_f32 %s, %s, %s' % (v(GA + qt * 8 + 2 * hh, 2), v(GA + qt * 8 + 2 * hh, 2), v(GA + qt * 8 + 4 + 2 * hh, 2)))
        for hh in range(2):
            p('v_cvt_pk_bf16_f32 %s, %s, %s' % (v(FR + 2 * qt + hh), v(GA + qt * 8 + 2 * hh), v(GA + qt * 8 + 2 * hh + 1)))
        p('ds_write_b64 v%d, %s offset:%d' % (vHMw, v(FR + 2 * qt, 2), qt * 2048))
    p.wait(lgkm=0)
    p('s_barrier')
    HF = W0
    p('v_lshlrev_b32 %s, 3, v0' % t2)
    for qt in range(2):
        for kp in range(2):
            for T in range(2):
                p('ds_read_b64 %s, %s offset:%d' % (v(HF + (qt * 2 + kp) * 4 + 2 * T, 2), t2, HM_L + qt * 2048 + (2 * kp + T) * 512))
    ACC = W0 + 32
    p('s_add_u32 s29, s%d, %d' % (sBase, P2_IN2))
    def mf_wd(qt, i):
        kp, G, T = i >> 3, (i >> 1) & 3, i & 1
        D = v(ACC + ((qt * 4 + G) * 2 + T) * 4, 4)
        p('v_mfma_f32_16x16x32_bf16 %s, %s, %s, %s' % (D, v(WD + ((G * 2 + T) * 2 + kp) * 4, 4), v(HF + (qt * 2 + kp) * 4, 4), '0' if kp == 0 else D))
    pst(p, 9)
    gemm_with_store(p, mf_wd, 16, ACC, 29, W0 + 96, W0 + 112)
    post_flag(p, 256)
    pst(p, 10)
    p.label('L_P2NOFFN')
    p.forget()
    p('s_add_u32 s29, s%d, %d' % (sBase, P2_FL))
    poll_flags(p, 29, 256, sN, 22, 'F3')
    pst(p, 11)
    p('s_add_u32 s29, s%d, %d' % (sBase, P2_IN2))
    for k in range(6):
        p('buffer_load_dwordx4 %s, v%d, s[4:7], s29 offen sc1' % (v(LD + 4 * k, 4), vIn if k < 5 else vIn2))
        if k < 5: p('s_add_u32 s29, s29, 4096')
    for k in range(6): p('v_mfma_f32_16x16x32_bf16 %s, %s, %s, %s' % (v(H, 4), v(LD + 4 * k, 4), v(SEL, 4), v(H, 4)))
    row_out(p, H, W0 + 56)
    p('buffer_store_dwordx4 %s, v%d, s[40:43], s28 offen' % (v(W0 + 56, 4), vOrow))
    pst(p, 12)
    p('s_add_u32 s%d, s%d, 7' % (sSeg, sSeg))
    p('s_add_u32 s%d, s%d, 1' % (sN, sN))
    p('s_cmp_lt_u32 s%d, 64' % sSeg)
    p('s_cbranch_scc1 L_P2SEG')
    rts(p, 6)
    rtd(p, 9, 1); rtd(p, 10, 7); rtd(p, 11, 6)
    if PST:
        p.raw('    s_waitcnt lgkmcnt(0)')
        p('s_lshl_b32 s20, s%d, 5' % sX)
        p('s_add_u32 s20, s20, s%d' % sC)
        p('s_lshl_b32 s20, s20, 6')
        p('s_add_u32 s20, s20, 0x%x' % (WS_FLAG + 32768))
        for k in range(13):
            p('v_mov_b32 v16, s%d' % PREG[k])
            p('buffer_store_dword v16, off, s[4:7], s20 offset:%d' % (4 * k))
    p.wait(vm=0)
    if WBL2:
        p('buffer_wbl2 sc1')
        p.wait(vm=0)
    p('s_endpgm')
    p.label('L_P2BAIL')
    p('s_load_dwordx2 s[30:31], s[0:1], %d' % KA_DBG)
    p('v_mov_b32 v16, 0x200')
    p('v_or_b32 v16, s%d, v16' % sSeg)
    p('v_mov_b32 v17, 212')
    p('s_waitcnt lgkmcnt(0)')
    p('global_store_dword v17, v16, s[30:31]')
    p.wait(vm=0)
    p('s_endpgm')

def p2_init(p):
    make_srd(p, 8, KA_X, 2048 * 1024)
    make_srd(p, 40, KA_OUT, 2048 * 1024)
```

```python
import sys
from common import *
import chain, ln1, qkv, p2
NAME = 'sequential_preLN__memory_aug_recurrent_mem_tr__glu_gated_bilinear__prompt_kernel'
HEADER = open('sequential_preLN__memory_aug_recurrent_mem_tr__glu_gated_bilinear__prompt.s.ref').read().split('; Override launch')[0]
DBG_REG, DBG_LNA, DBG_LNB, DBG_BAIL = 192, 196, 200, 208
sXCC, sTK = 92, 93
SPIN = 2000000

def wait_dbg(p, off, need, tag, cnt=94, vr=120):
    p('s_load_dwordx2 s[96:97], s[0:1], %d' % KA_DBG)
    p('v_mov_b32 v%d, %d' % (vr, off))
    p('s_mov_b32 s%d, 0' % cnt)
    p('s_waitcnt lgkmcnt(0)')
    p.label('L_WD' + tag)
    p('global_load_dword v%d, v%d, s[96:97] sc1' % (vr + 1, vr))
    p.wait(vm=0)
    p('v_readfirstlane_b32 s95, v%d' % (vr + 1))
    p('s_add_u32 s%d, s%d, 1' % (cnt, cnt))
    p('s_cmp_gt_u32 s%d, %d' % (cnt, SPIN))
    p('s_cbranch_scc1 L_GBAIL')
    p('s_cmp_ge_u32 s95, %d' % need)
    p('s_cbranch_scc1 L_WDOK' + tag)
    p('s_sleep 4')
    p('s_branch L_WD' + tag)
    p.label('L_WDOK' + tag)
    p.forget()

def add_dbg(p, off, tag, wait=True):
    if wait:
        p.wait(vm=0)
        p('s_barrier')
    p('s_load_dwordx2 s[96:97], s[0:1], %d' % KA_DBG)
    p('v_mov_b32 v120, %d' % off)
    p('v_mov_b32 v121, 1')
    p('v_or_b32 v122, s3, v0')
    p('s_waitcnt lgkmcnt(0)')
    p('v_cmp_eq_u32 vcc, 0, v122')
    p('s_and_saveexec_b64 s[98:99], vcc')
    p('s_cbranch_execz L_AD' + tag)
    p('global_atomic_add v120, v121, s[96:97]')
    p.label('L_AD' + tag)
    p('s_mov_b64 exec, s[98:99]')

def zero_p2_flags(p):
    p('s_lshl_b32 s20, s%d, 22' % p2.sX)
    p('s_add_u32 s20, s20, 0x%x' % (WS_P2 + P2_FL))
    p('s_lshl_b32 s21, s%d, 2' % p2.sC)
    p('s_add_u32 s20, s20, s21')
    p('v_lshlrev_b32 v120, 7, v0')
    p('v_mov_b32 v121, 0x%x' % OOB)
    p('v_cmp_gt_u32 vcc, 3, v0')
    p('v_cndmask_b32 v120, v121, v120, vcc')
    p('v_mov_b32 v121, 0')
    p('buffer_store_dword v121, v120, s[4:7], s20 offen')

RT = False
RTD = False
def rtd(p, word, cond_xcc, cond_tk=0):
    if not RTD: return
    lab = 'L_RTD%d' % word
    p.raw('    s_cmp_eq_u32 s%d, %d' % (sXCC, cond_xcc))
    p.raw('    s_cbranch_scc0 %s' % lab)
    p.raw('    s_cmp_eq_u32 s%d, %d' % (sTK, cond_tk))
    p.raw('    s_cbranch_scc0 %s' % lab)
    p.raw('    s_memrealtime s[84:85]')
    p.raw('    s_load_dwordx2 s[86:87], s[0:1], %d' % KA_DBG)
    p.raw('    s_waitcnt lgkmcnt(0)')
    p.raw('    v_mov_b32 v123, s84')
    p.raw('    v_mov_b32 v124, %d' % (4 * word))
    p.raw('    global_store_dword v124, v123, s[86:87]')
    p.raw('%s:' % lab)
def rts(p, k):
    if not RT: return
    p.raw('    s_memrealtime s[84:85]')
    p.raw('    s_waitcnt lgkmcnt(0)')
    p.raw('    s_lshl_b32 s83, s%d, 5' % sXCC)
    p.raw('    s_add_u32 s83, s83, s%d' % sTK)
    p.raw('    s_lshl_b32 s83, s83, 6')
    p.raw('    s_add_u32 s83, s83, 0x%x' % (WS_FLAG + 8192 + 4 * k))
    p.raw('    v_mov_b32 v123, s84')
    p.raw('    buffer_store_dword v123, off, s[4:7], s83')
def build(opt=(), stamps=False):
    global RT, RTD
    RT = 'rt' in opt
    RTD = 'rtdbg' in opt
    p2.rtd = rtd
    p2.rts = rts
    p2.WBL2 = 'wbl2' in opt
    p2.PST = 'pst' in opt
    p = Prog()
    p.raw(HEADER.rstrip('\n'))
    p.raw('; @launch grid=(256,1,1) block=(256,1,1) lds=163840')
    p.raw('.amdgcn_target "amdgcn-amd-amdhsa--gfx950"\n.text\n.globl %s\n.p2align 8\n.type %s,@function\n%s:' % (NAME, NAME, NAME))
    p('s_cmp_ge_u32 s2, 256')
    p('s_cbranch_scc1 L_EXIT')
    p('s_getreg_b32 s%d, hwreg(HW_REG_XCC_ID, 0, 4)' % sXCC)
    p('s_load_dwordx2 s[8:9], s[0:1], %d' % KA_DBG)
    p('s_and_b32 s%d, s%d, 7' % (sXCC, sXCC))
    p('s_add_u32 s10, s%d, 2' % sXCC)
    p('s_mul_i32 s11, s10, 43')
    p('s_lshr_b32 s11, s11, 7')
    p('s_mul_i32 s12, s11, 3')
    p('s_sub_u32 s10, s10, s12')
    p('s_lshl_b32 s10, s10, 2')
    p('s_lshl_b32 s11, s11, 6')
    p('s_add_u32 s10, s10, s11')
    p('s_cmp_eq_u32 s%d, 0' % sXCC)
    p('s_cselect_b32 s10, 0, s10')
    p('s_cmp_eq_u32 s%d, 7' % sXCC)
    p('s_cselect_b32 s10, 4, s10')
    p('v_mov_b32 v2, s10')
    p('v_mov_b32 v3, 1')
    p('s_waitcnt lgkmcnt(0)')
    p('v_cmp_eq_u32 vcc, 0, v0')
    p('s_and_saveexec_b64 s[10:11], vcc')
    p('s_cbranch_execz L_NOTICKET')
    p('global_atomic_add v4, v2, v3, s[8:9] sc0')
    p.wait(vm=0)
    p('v_mov_b32 v2, 0')
    p('ds_write_b32 v2, v4')
    p.wait(lgkm=0)
    p.label('L_NOTICKET')
    p('s_mov_b64 exec, s[10:11]')
    p('s_barrier')
    p('v_mov_b32 v2, 0')
    p('ds_read_b32 v4, v2')
    p.wait(lgkm=0)
    p('v_readfirstlane_b32 s%d, v4' % sTK)
    p('s_barrier')
    p('s_cmp_ge_u32 s%d, 32' % sTK)
    p('s_cbranch_scc1 L_EXIT')
    p('s_cmp_eq_u32 s%d, 0' % sXCC)
    p('s_cbranch_scc0 L_WORKER')
    p('s_mov_b32 s%d, s%d' % (chain.sH, sTK))
    chain.chain_setup(p)
    rts(p, 0)
    rtd(p, 2, 0)
    p('s_lshl_b32 s30, s%d, 7' % chain.sH)
    p('s_add_u32 s30, s30, 0x%x' % WS_FLAG)
    p('v_mov_b32 v120, 0')
    p('buffer_store_dword v120, off, s[4:7], s30 sc1')
    chain.chain_init_globals(p)
    add_dbg(p, DBG_REG, 'C')
    chain.chain_load_weights(p)
    rts(p, 1)
    rtd(p, 3, 0)
    chain.chain_init_mem0(p)
    wait_dbg(p, DBG_REG, 256, 'C')
    p('s_barrier')
    rts(p, 2)
    rtd(p, 4, 0)
    if RTD: p.raw('    s_memtime s[82:83]\n    s_waitcnt lgkmcnt(0)')
    chain.chain_loop(p, stamps=stamps, opt=tuple(opt) + ('kvflags',))
    p.label('L_DONE')
    p.forget()
    p.raw('    s_waitcnt lgkmcnt(0)')
    if 'pubW7' not in opt:
        p('s_add_u32 %s, %s, %d' % (s(chain.sKM), s(chain.sKM), 32 * 4096))
        p('s_add_u32 %s, %s, %d' % (s(chain.sVM), s(chain.sVM), 32 * 4096))
        p('buffer_store_dwordx4 %s, %s, s[4:7], %s offen sc1' % (v(chain.MF + 16, 4), v(chain.vL16), s(chain.sKM)))
        p('buffer_store_dwordx4 %s, %s, s[4:7], %s offen sc1' % (v(chain.MF + 20, 4), v(chain.vL16), s(chain.sVM)))
    p.wait(vm=0)
    p('s_barrier')
    p('v_mov_b32 %s, 64' % v(chain.vFlag))
    p('buffer_store_dword %s, %s, s[4:7], %s offen sc1' % (v(chain.vFlag), v(chain.vFlagOff), s(chain.sFlagOff)))
    rts(p, 3)
    rtd(p, 5, 0)
    if RTD:
        p.raw('    s_memtime s[84:85]\n    s_load_dwordx2 s[86:87], s[0:1], %d\n    s_waitcnt lgkmcnt(0)' % KA_DBG)
        p.raw('    s_sub_u32 s84, s84, s82')
        p.raw('    s_cmp_eq_u32 s%d, 0\n    s_cbranch_scc0 L_RTDX' % sTK)
        p.raw('    v_mov_b32 v123, s84\n    v_mov_b32 v124, 48\n    global_store_dword v124, v123, s[86:87]')
        p.raw('    v_mov_b32 v123, s%d\n    s_lshl_b32 s84, s3, 2\n    s_add_u32 s84, s84, 52\n    v_mov_b32 v124, s84' % chain.sNfail)
        p.raw('    s_cmp_lt_u32 s3, 3\n    s_cbranch_scc0 L_RTDX\n    global_store_dword v124, v123, s[86:87]')
        p.raw('L_RTDX:')
    p.wait(vm=0)
    p('s_endpgm')
    p.label('L_BAIL')
    p('s_load_dwordx2 s[96:97], s[0:1], %d' % KA_DBG)
    p('v_mov_b32 v120, 0x100')
    p('v_or_b32 v120, %s, v120' % s(chain.sStep))
    p('v_mov_b32 v121, %d' % DBG_BAIL)
    p('s_waitcnt lgkmcnt(0)')
    p('global_store_dword v121, v120, s[96:97]')
    p.wait(vm=0)
    p('s_endpgm')
    p.label('L_WORKER')
    p.forget()
    ws_srd(p)
    p('s_sub_u32 s%d, s%d, 1' % (80, sXCC))
    p('s_mov_b32 s81, s%d' % sTK)
    p('s_mov_b32 s%d, s80' % p2.sX)
    p('s_mov_b32 s%d, s81' % p2.sC)
    rts(p, 0)
    zero_p2_flags(p)
    p('s_cmp_eq_u32 s80, 6')
    p('s_cbranch_scc1 L_LN')
    p('s_lshl_b32 s%d, s80, 3' % qkv.sCG)
    p('s_lshr_b32 s20, s81, 2')
    p('s_add_u32 s%d, s%d, s20' % (qkv.sCG, qkv.sCG))
    p('s_and_b32 s%d, s81, 3' % qkv.sTG)
    p('s_lshl_b32 s20, s%d, 2' % qkv.sCG)
    p('s_add_u32 s20, s20, s%d' % qkv.sTG)
    p('s_lshl_b32 s20, s20, 7')
    p('s_add_u32 s20, s20, 0x%x' % WS_QFLAG)
    p('v_mov_b32 v120, 0')
    p('buffer_store_dword v120, off, s[4:7], s20 sc1')
    add_dbg(p, DBG_REG, 'Q')
    qkv.qkv_load_weights(p)
    rts(p, 1)
    wait_dbg(p, DBG_REG, 256, 'Q')
    wait_dbg(p, DBG_LNA, 32, 'QL')
    rts(p, 2)
    rtd(p, 6, 1)
    import main_hooks
    main_hooks.wait_dbg_fn[0] = lambda pp, tag: wait_dbg(pp, DBG_LNB, 32, 'QLB' + tag, vr=6)
    qkv.qkv_main(p, flags=True, wait_b=True)
    rts(p, 3)
    rtd(p, 7, 1)
    p('s_branch L_P2')
    p.label('L_LN')
    p.forget()
    add_dbg(p, DBG_REG, 'L')
    make_srd(p, 8, KA_X, 2048 * 1024)
    p('s_mov_b32 s12, s81')
    ln1.ln1_load(p, 12, 0)
    p('s_add_u32 s13, s81, 32')
    ln1.ln1_load(p, 13, 1)
    ln1.ln1_compute(p, 12, 0, nvm_after=8)
    ln1.ln1_compute(p, 13, 1, nvm_after=8)
    p.wait(vm=8)
    p('s_barrier')
    add_dbg(p, DBG_LNA, 'LN0', wait=False)
    add_dbg(p, DBG_LNB, 'LN1')
    rts(p, 3)
    wait_dbg(p, DBG_REG, 256, 'L')
    p.label('L_P2')
    p.forget()
    p('s_barrier')
    p('s_mov_b32 s%d, s80' % p2.sX)
    p('s_mov_b32 s%d, s81' % p2.sC)
    p2.p2_init(p)
    p2.p2_load_weights(p)
    p2.p2_setup(p)
    rts(p, 4)
    rtd(p, 8, 1)
    p2.p2_segment_loop(p, xflags=True, rt=('rt' in opt))
    p.label('L_GBAIL')
    p.label('L_EXIT')
    p('s_endpgm')
    p.raw('''.section .rodata,"a"
.p2align 6
.amdhsa_kernel %s
  .amdhsa_next_free_vgpr 512
  .amdhsa_next_free_sgpr 102
  .amdhsa_accum_offset 256
  .amdhsa_group_segment_fixed_size 0
  .amdhsa_kernarg_size 112
  .amdhsa_user_sgpr_count 2
  .amdhsa_user_sgpr_kernarg_segment_ptr 1
  .amdhsa_system_sgpr_workgroup_id_x 1
.end_amdhsa_kernel''' % NAME)
    return p
def rt_out(p, k): pass
if __name__ == '__main__':
    out = sys.argv[1]
    p = build(opt=tuple(sys.argv[2:]))
    open(out, 'w').write(p.text())
    print('insts', p.count, 'nop states', p.nops, 'bytes', len(p.text()))
```

```python
from asmlib import *
from layout import *

VX_L = 0
KX_L = 8192
M_IMG, M_RS = 16384, 1088
Q_IMG = 25088
K_IMG = 27136
W_L = 32768
CHAIN_LDS = W_L + 4 * 32768

vLane = 0
vL16, vIdxQ, vIdxO, vMrd, vWrd0, vWrd1, vQwr, vKwr, vQtr, vKtr, vVX, vPst, vMst, vMld, vMwr, vTouch, vPld, vNeg1, vDummy = range(1, 20)
vFlag = vDummy
vFlagOff = 21
vT0, vT1, vT2 = 22, 23, 20
MF = 24
LAND = 56
AQK = 104
AV = 120
WQK = 128

sW = 3
SRD_WS = 4
SRD_T = 8
sH, sStep, sTag = 12, 13, 15
sPst = 16
sPld = 20
sMrd, sMwr, sMpo = 21, 22, 23
sKX, sVX, sKXn = 24, 25, 26
sKM, sVM = 27, 28
sCnt = 29
sTmp, sTmp2, sTmp3 = 30, 31, 32
sScale = 33
sM0kx, sM0vx = 34, 35
sFlagOff = 36
sW10 = 37
sScale2 = 76
sNfail = 78
sExK = 92
sKVoff, sKVneed, sKVbase = 88, 89, 90
vKVf = 0
sTagN = 14
sMwrOld = 18
sMaskA = 8
sFlagVal = 79
sDBG = 38
sStamp = 40
sAcc = 44
SPIN_MAX = 200000

LDSCH = [0, 1, 6, 7]

def smf(p, acc, A, B, idx):
    p('v_smfmac_f32_16x16x64_bf16 %s, %s, %s, %s' % (v(acc, 4), v(A, 4), B, v(idx)))

def w_lds_addr(u, half):
    slot, T = u >> 2, u & 3
    off = slot * 32768 + T * 2048 + half * 1024
    return (vWrd0, off) if slot < 2 else (vWrd1, off - 65536)

def read_w(p, u, land, half):
    r, off = w_lds_addr(u, half)
    p('ds_read_b128 %s, %s offset:%d' % (v(LAND + land * 8 + half * 4, 4), v(r), off))

RAW = [60, 62, 64, 66, 68, 70, 72, 74, 80, 82, 84, 86, 94, 98, 100]
def lstamp(p, k, enable):
    if enable == 'light': p.raw('    s_memtime s[%d:%d]' % (RAW[k], RAW[k] + 1))
    if enable == 'real': p.raw('    s_memrealtime s[%d:%d]' % (RAW[k], RAW[k] + 1))
def lstamp_save(p, enable):
    if enable not in ('light', 'real'): return
    p.raw('    s_cmp_eq_u32 %s, 31' % s(sStep))
    for k in range(15): p.raw('    s_cselect_b32 %s, s%d, %s' % (s(sAcc + k), RAW[k], s(sAcc + k)))
def stamp(p, k, enable):
    if enable in ('light', 'real'): return
    if not enable or (enable == 'total' and k != 4): return
    if enable == 'abs':
        p.raw('    s_memtime %s' % s(sStamp + 2, 2))
        p.raw('    s_waitcnt lgkmcnt(0)')
        p.lgkm = []
        p.raw('    s_cmp_eq_u32 %s, 30' % s(sStep))
        p.raw('    s_cselect_b32 %s, %s, %s' % (s(sAcc + k), s(sStamp + 2), s(sAcc + k)))
        return
    if k > 4: return
    p.raw('    s_memtime %s' % s(sStamp + 2, 2))
    p.raw('    s_waitcnt lgkmcnt(0)')
    p.lgkm = []
    p.raw('    s_sub_u32 %s, %s, %s' % (s(sTmp3), s(sStamp + 2), s(sStamp)))
    p.raw('    s_add_u32 %s, %s, %s' % (s(sAcc + k), s(sAcc + k), s(sTmp3)))
    p.raw('    s_mov_b32 %s, %s' % (s(sStamp), s(sStamp + 2)))


def optint(opt, name, default):
    return int(opt[opt.index(name) + 1]) if name in opt else default
def delay(p, cycles):
    n = cycles // 4
    while n > 0:
        k = min(n, 16); p('s_nop %d' % (k - 1)); n -= k

def chain_setup(p):
    p('s_load_dwordx2 s[4:5], s[0:1], %d' % KA_WS)
    p('s_load_dwordx2 %s, s[0:1], %d' % (s(sDBG, 2), KA_DBG))
    p('v_lshrrev_b32 v1, 6, v0')
    p('v_readfirstlane_b32 %s, v1' % s(sW))
    p('v_and_b32 v0, 63, v0')
    p('s_waitcnt lgkmcnt(0)')
    p('s_mov_b32 s6, 0x%x' % WS_SIZE)
    p('s_mov_b32 s7, 0x20000')
    L = v(vLane)
    t0, t1, t2 = v(vT0), v(vT1), v(vT2)
    p('v_lshlrev_b32 %s, 4, %s' % (v(vL16), L))
    p('v_bfe_u32 %s, %s, 1, 1' % (t0, L))
    p('v_mov_b32 %s, 0x4444' % t1)
    p('v_mov_b32 %s, 0xeeee' % t2)
    p('v_cmp_eq_u32 vcc, 1, %s' % t0)
    p('v_cndmask_b32 %s, %s, %s, vcc' % (v(vIdxQ), t1, t2))
    p('v_bfe_u32 %s, %s, 3, 1' % (t0, L))
    p('v_cmp_eq_u32 vcc, 1, %s' % t0)
    p('v_cndmask_b32 %s, %s, %s, vcc' % (v(vIdxO), t1, t2))
    p('v_bfe_u32 %s, %s, 2, 2' % (t0, L))
    p('v_lshlrev_b32 %s, 1, %s' % (t0, t0))
    p('v_and_b32 %s, 1, %s' % (t1, L))
    p('v_add_u32 %s, %s, %s' % (t0, t0, t1))
    p('v_mul_u32_u24 %s, %d, %s' % (t0, M_RS, t0))
    p('v_lshrrev_b32 %s, 4, %s' % (t1, L))
    p('v_lshlrev_b32 %s, 5, %s' % (t1, t1))
    p('v_add_u32 %s, %s, %s' % (t0, t0, t1))
    p('v_bfe_u32 %s, %s, 1, 1' % (t1, L))
    p('v_lshlrev_b32 %s, 4, %s' % (t1, t1))
    p('v_add_u32 %s, %s, %s' % (t0, t0, t1))
    p('v_add_u32 %s, %d, %s' % (v(vMrd), M_IMG, t0))
    p('s_lshl_b32 %s, %s, 13' % (s(sTmp), s(sW)))
    p('s_add_u32 %s, %s, %d' % (s(sTmp), s(sTmp), W_L))
    p('v_add_u32 %s, %s, %s' % (v(vWrd0), s(sTmp), v(vL16)))
    p('v_add_u32 %s, 0x10000, %s' % (v(vWrd1), v(vWrd0)))
    p('v_and_b32 %s, 15, %s' % (t0, L))
    p('s_lshl_b32 %s, %s, 5' % (s(sTmp), s(sW)))
    p('v_add_u32 %s, %s, %s' % (t0, s(sTmp), t0))
    p('v_lshrrev_b32 %s, 4, %s' % (t1, L))
    p('v_lshlrev_b32 %s, 4, %s' % (t2, t0))
    p('v_lshl_add_u32 %s, %s, 2, %s' % (t2, t1, t2))
    p('v_add_u32 %s, %d, %s' % (v(vQwr), Q_IMG, t2))
    p('v_lshlrev_b32 %s, 5, %s' % (t2, t0))
    p('v_lshl_add_u32 %s, %s, 3, %s' % (t2, t1, t2))
    p('v_add_u32 %s, %d, %s' % (v(vKwr), K_IMG, t2))
    p('v_lshrrev_b32 %s, 2, %s' % (t0, L))
    p('v_and_b32 %s, 1, %s' % (t1, L))
    p('v_lshlrev_b32 %s, 4, %s' % (t2, t0))
    p('v_lshl_add_u32 %s, %s, 3, %s' % (t2, t1, t2))
    p('v_add_u32 %s, %d, %s' % (v(vQtr), Q_IMG, t2))
    p('v_and_b32 %s, 3, %s' % (t1, L))
    p('v_lshlrev_b32 %s, 5, %s' % (t2, t0))
    p('v_lshl_add_u32 %s, %s, 3, %s' % (t2, t1, t2))
    p('v_add_u32 %s, %d, %s' % (v(vKtr), K_IMG, t2))
    p('s_lshl_b32 %s, %s, 11' % (s(sTmp), s(sW)))
    p('s_add_u32 %s, %s, %d' % (s(sM0vx), s(sTmp), VX_L))
    p('s_add_u32 %s, %s, %d' % (s(sM0kx), s(sTmp), KX_L))
    p('v_add_u32 %s, %s, %s' % (v(vVX), s(sM0vx), v(vL16)))
    p('v_lshrrev_b32 %s, 5, %s' % (t0, L))
    p('v_lshlrev_b32 %s, 2, %s' % (t0, t0))
    p('v_bfe_u32 %s, %s, 2, 2' % (t1, L))
    p('v_add_u32 %s, %s, %s' % (t0, t0, t1))
    p('s_lshl_b32 %s, %s, 3' % (s(sTmp), s(sW)))
    p('v_add_u32 %s, %s, %s' % (t0, s(sTmp), t0))
    p('v_lshlrev_b32 %s, 13, %s' % (t0, t0))
    p('v_bfe_u32 %s, %s, 4, 1' % (t1, L))
    p('v_lshlrev_b32 %s, 2, %s' % (t1, t1))
    p('v_and_b32 %s, 3, %s' % (t2, L))
    p('v_add_u32 %s, %s, %s' % (t1, t1, t2))
    p('v_lshlrev_b32 %s, 4, %s' % (t1, t1))
    p('s_lshl_b32 %s, %s, 7' % (s(sTmp), s(sH)))
    p('v_add3_u32 %s, %s, %s, %s' % (v(vPst), t0, t1, s(sTmp)))
    p('v_bfe_u32 %s, %s, 2, 1' % (t0, L))
    p('s_and_b32 %s, %s, 2' % (s(sTmp), s(sW)))
    p('v_add_u32 %s, %s, %s' % (t0, s(sTmp), t0))
    p('v_lshlrev_b32 %s, 5, %s' % (t0, t0))
    p('v_add_u32 %s, %s, %s' % (t0, s(sH), t0))
    p('v_lshlrev_b32 %s, 6, %s' % (t0, t0))
    p('v_and_b32 %s, 3, %s' % (t1, L))
    p('v_lshlrev_b32 %s, 1, %s' % (t1, t1))
    p('s_and_b32 %s, %s, 1' % (s(sTmp), s(sW)))
    p('v_add_u32 %s, %s, %s' % (t1, s(sTmp), t1))
    p('v_lshl_add_u32 %s, %s, 3, %s' % (t0, t1, t0))
    p('v_bfe_u32 %s, %s, 4, 1' % (t1, L))
    p('v_lshl_add_u32 %s, %s, 2, %s' % (t0, t1, t0))
    p('v_and_b32 %s, 0x28, %s' % (t1, L))
    p('v_mov_b32 %s, 0x%x' % (t2, OOB))
    p('v_cmp_eq_u32 vcc, 0, %s' % t1)
    p('v_cndmask_b32 %s, %s, %s, vcc' % (v(vMst), t2, t0))
    p('v_lshrrev_b32 %s, 2, %s' % (t0, L))
    p('v_lshlrev_b32 %s, 7, %s' % (t0, t0))
    p('v_and_b32 %s, 3, %s' % (t1, L))
    p('v_lshl_add_u32 %s, %s, 4, %s' % (t0, t1, t0))
    p('s_and_b32 %s, %s, 1' % (s(sTmp), s(sW)))
    p('s_lshl_b32 %s, %s, 6' % (s(sTmp), s(sTmp)))
    p('v_add_u32 %s, %s, %s' % (v(vPld), s(sTmp), t0))
    p('s_lshl_b32 %s, %s, 11' % (s(sTmp), s(sW)))
    p('v_add_u32 %s, %s, %s' % (v(vMld), s(sTmp), v(vL16)))
    p('v_and_b32 %s, 3, %s' % (t0, L))
    p('v_mul_u32_u24 %s, %d, %s' % (t0, M_RS, t0))
    p('v_lshrrev_b32 %s, 2, %s' % (t1, L))
    p('v_lshl_add_u32 %s, %s, 3, %s' % (t0, t1, t0))
    p('s_lshl_b32 %s, %s, 8' % (s(sTmp), s(sW)))
    p('s_add_u32 %s, %s, %d' % (s(sTmp), s(sTmp), M_IMG))
    p('v_add_u32 %s, %s, %s' % (v(vMwr), s(sTmp), t0))
    p('v_and_b32 %s, 31, %s' % (t0, L))
    p('v_lshlrev_b32 %s, 6, %s' % (t0, t0))
    p('s_lshl_b32 %s, %s, 11' % (s(sTmp), s(sW)))
    p('v_add_u32 %s, %s, %s' % (t0, s(sTmp), t0))
    p('v_lshrrev_b32 %s, 5, %s' % (t1, L))
    p('v_mul_u32_u24 %s, 0x100, %s' % (t1, t1))
    p('v_lshlrev_b32 %s, 16, %s' % (t1, t1))
    p('v_add_u32 %s, %s, %s' % (v(vTouch), t0, t1))
    p('v_mov_b32 %s, -1' % v(vNeg1))
    p('s_mov_b32 %s, 0x3e0293ee' % s(sScale))
    p('s_mov_b32 %s, 0x3e0293ee' % s(sScale2))
    p('s_mov_b32 %s, 0x3e0293ee' % s(sScale2 + 1))
    p('s_mov_b32 %s, 0' % s(sNfail))

def chain_load_weights(p):
    vD = [24, 25, 26, 27]
    vE = [28, 29, 30, 31]
    vA0, vA1, vAo = 32, 33, 34
    L = v(vLane); t0, t1, t2 = v(vT0), v(vT1), v(vT2)
    p('s_load_dwordx4 s[48:51], s[0:1], %d' % KA_WQ)
    p('s_load_dwordx4 s[52:55], s[0:1], %d' % KA_WV)
    for q in range(4):
        p('v_bfe_u32 %s, %s, 4, 1' % (t0, L))
        p('v_lshlrev_b32 %s, 1, %s' % (t0, t0))
        p('v_and_b32 %s, 15, %s' % (t1, L))
        p('v_xor_b32 %s, %s, %s' % (t0, t0, t1))
        p('v_xor_b32 %s, %d, %s' % (t0, 4 * (q & 1) + 8 * (q >> 1), t0))
        p('v_lshlrev_b32 %s, 4, %s' % (t0, t0))
        p('v_lshrrev_b32 %s, 4, %s' % (t1, L))
        p('v_lshl_add_u32 %s, %s, 13, %s' % (v(vD[q]), t1, t0))
    p('s_lshr_b32 %s, %s, 1' % (s(sTmp), s(sW)))
    p('s_lshl_b32 %s, %s, 3' % (s(sTmp), s(sTmp)))
    for q in range(2):
        p('v_xor_b32 %s, %d, %s' % (t0, 4 * q, L))
        p('v_xor_b32 %s, %s, %s' % (t0, s(sTmp), t0))
        p('v_lshlrev_b32 %s, 4, %s' % (v(vE[q]), t0))
    for t, reg in ((0, vA0), (1, vA1)):
        p('v_bfe_u32 %s, %s, 5, 1' % (t0, L))
        p('v_lshlrev_b32 %s, 4, %s' % (t0, t0))
        p('v_bfe_u32 %s, %s, 4, 1' % (t1, L))
        p('v_lshl_add_u32 %s, %s, 2, %s' % (t0, t1, t0))
        p('v_bfe_u32 %s, %s, 3, 1' % (t1, L))
        p('v_lshl_add_u32 %s, %s, 3, %s' % (t0, t1, t0))
        p('v_bfe_u32 %s, %s, 2, 1' % (t1, L))
        p('v_add_u32 %s, %s, %s' % (t0, t0, t1))
        p('v_lshlrev_b32 %s, 8, %s' % (v(reg), t0))
        p('v_bfe_u32 %s, %s, 2, 1' % (t0, L))
        p('v_lshlrev_b32 %s, 1, %s' % (t0, t0))
        p('v_bfe_u32 %s, %s, 4, 1' % (t1, L))
        p('v_lshl_add_u32 %s, %s, 2, %s' % (t0, t1, t0))
        p('v_bfe_u32 %s, %s, 3, 1' % (t1, L))
        p('v_lshl_add_u32 %s, %s, 3, %s' % (t0, t1, t0))
        p('v_bfe_u32 %s, %s, 1, 1' % (t1, L))
        p('s_lshl_b32 %s, %s, 2' % (s(sTmp), s(sW)))
        p('s_add_u32 %s, %s, %d' % (s(sTmp), s(sTmp), 2 * t))
        p('v_add_u32 %s, %s, %s' % (t1, s(sTmp), t1))
        p('v_xor_b32 %s, %s, %s' % (t0, t0, t1))
        p('v_lshlrev_b32 %s, 4, %s' % (t0, t0))
        p('v_and_b32 %s, 1, %s' % (t1, L))
        p('v_lshl_add_u32 %s, %s, 3, %s' % (t0, t1, t0))
        p('v_add_u32 %s, %s, %s' % (v(reg), v(reg), t0))
    p('v_bfe_u32 %s, %s, 4, 1' % (t0, L))
    p('v_lshlrev_b32 %s, 4, %s' % (t0, t0))
    p('v_bfe_u32 %s, %s, 5, 1' % (t1, L))
    p('v_lshl_add_u32 %s, %s, 2, %s' % (t0, t1, t0))
    p('v_bfe_u32 %s, %s, 2, 1' % (t1, L))
    p('v_add_u32 %s, %s, %s' % (t0, t0, t1))
    p('v_lshlrev_b32 %s, 10, %s' % (v(vAo), t0))
    p('v_bfe_u32 %s, %s, 2, 1' % (t0, L))
    p('v_lshlrev_b32 %s, 2, %s' % (t0, t0))
    p('v_bfe_u32 %s, %s, 4, 1' % (t1, L))
    p('v_lshl_add_u32 %s, %s, 3, %s' % (t0, t1, t0))
    p('v_bfe_u32 %s, %s, 3, 1' % (t1, L))
    p('v_lshlrev_b32 %s, 1, %s' % (t1, t1))
    p('v_bfe_u32 %s, %s, 1, 1' % (t2, L))
    p('v_add_u32 %s, %s, %s' % (t1, t1, t2))
    p('s_lshl_b32 %s, %s, 2' % (s(sTmp), s(sW)))
    p('v_add_u32 %s, %s, %s' % (t1, s(sTmp), t1))
    p('v_xor_b32 %s, %s, %s' % (t0, t0, t1))
    p('v_lshlrev_b32 %s, 4, %s' % (t0, t0))
    p('v_and_b32 %s, 1, %s' % (t1, L))
    p('v_lshl_add_u32 %s, %s, 3, %s' % (t0, t1, t0))
    p('v_add_u32 %s, %s, %s' % (v(vAo), v(vAo), t0))
    p('s_waitcnt lgkmcnt(0)')
    for k, (lo, base) in enumerate(((48, 56), (50, 60), (52, 64), (54, 68))):
        p('s_mov_b32 s%d, s%d' % (base, lo))
        p('s_mov_b32 s%d, s%d' % (base + 1, lo + 1))
        p('s_mov_b32 s%d, 0x400000' % (base + 2))
        p('s_mov_b32 s%d, 0x20000' % (base + 3))
    p('s_cmp_lt_u32 %s, 2' % s(sW))
    p('s_cselect_b32 s72, s56, s60')
    p('s_cselect_b32 s73, s57, s61')
    p('s_mov_b32 s74, 0x400000')
    p('s_mov_b32 s75, 0x20000')
    slot_base = lambda n: [W_L + 3 * 32768, 0, W_L, W_L + 32768, W_L + 2 * 32768][n % 5]
    QKCH = [2, 3, 4, 5] + LDSCH
    def issue(n):
        base = slot_base(n)
        sOff, sM = sTmp, sTmp2
        if n < 4:
            p('s_lshl_b32 %s, %s, 5' % (s(sOff), s(sW)))
            p('s_add_u32 %s, %s, %d' % (s(sOff), s(sOff), 128 * n))
            p('s_lshl_b32 %s, %s, 13' % (s(sOff), s(sOff)))
            p('s_lshl_b32 %s, %s, 8' % (s(sTmp3), s(sH)))
            p('s_add_u32 %s, %s, %s' % (s(sOff), s(sOff), s(sTmp3)))
            p('s_lshl_b32 %s, %s, 13' % (s(sM), s(sW)))
            p('s_add_u32 %s, %s, %d' % (s(sM), s(sM), base))
            for k in range(8):
                p('s_mov_b32 m0, %s' % s(sM))
                p('s_add_u32 %s, %s, 1024' % (s(sM), s(sM)))
                p('buffer_load_dwordx4 %s, s[64:67], %s offen lds' % (v(vD[k & 3]), s(sOff)))
                p('s_add_u32 %s, %s, %d' % (s(sOff), s(sOff), 4 * 8192))
        elif n < 8:
            ec = n - 4
            p('s_lshl_b32 %s, %s, 7' % (s(sOff), s(sH)))
            p('s_lshl_b32 %s, %s, 3' % (s(sTmp3), s(sW)))
            p('s_add_u32 %s, %s, %s' % (s(sOff), s(sOff), s(sTmp3)))
            p('s_add_u32 %s, %s, %d' % (s(sOff), s(sOff), 32 * ec))
            p('s_lshl_b32 %s, %s, 10' % (s(sOff), s(sOff)))
            p('s_lshl_b32 %s, %s, 13' % (s(sM), s(sW)))
            p('s_add_u32 %s, %s, %d' % (s(sM), s(sM), base))
            for k in range(8):
                p('s_mov_b32 m0, %s' % s(sM))
                p('s_add_u32 %s, %s, 1024' % (s(sM), s(sM)))
                p('buffer_load_dwordx4 %s, s[68:71], %s offen lds' % (v(vE[k & 1]), s(sOff)))
                p('s_add_u32 %s, %s, 1024' % (s(sOff), s(sOff)))
        else:
            ch = QKCH[n - 8]
            p('s_and_b32 %s, %s, 1' % (s(sOff), s(sW)))
            p('s_lshl_b32 %s, %s, 5' % (s(sOff), s(sOff)))
            p('s_add_u32 %s, %s, %d' % (s(sOff), s(sOff), 64 * ch))
            p('s_lshl_b32 %s, %s, 13' % (s(sOff), s(sOff)))
            p('s_lshl_b32 %s, %s, 8' % (s(sTmp3), s(sH)))
            p('s_add_u32 %s, %s, %s' % (s(sOff), s(sOff), s(sTmp3)))
            p('s_lshl_b32 %s, %s, 13' % (s(sM), s(sW)))
            p('s_add_u32 %s, %s, %d' % (s(sM), s(sM), base))
            for k in range(8):
                p('s_mov_b32 m0, %s' % s(sM))
                p('s_add_u32 %s, %s, 1024' % (s(sM), s(sM)))
                p('buffer_load_dwordx4 %s, s[72:75], %s offen lds' % (v(vD[k & 3]), s(sOff)))
                p('s_add_u32 %s, %s, %d' % (s(sOff), s(sOff), 4 * 8192))
    def consume(n):
        base = slot_base(n)
        va0, va1, vao = 36, 37, 38
        if n < 4:
            p('v_add_u32 %s, %d, %s' % (v(va0), base, v(vA0)))
            p('v_add_u32 %s, %d, %s' % (v(va1), base, v(vA1)))
            for cc in range(2):
                c = 2 * n + cc
                for t in range(2):
                    for r in (0, 2, 4, 6):
                        off = (cc * 64 + 32 * (r >> 2) + 2 * ((r >> 1) & 1)) * 256
                        p('ds_read_b64_tr_b16 %s, %s offset:%d' % (a((c * 2 + t) * 8 + r, 2), v(va0 if t == 0 else va1), off))
        elif n < 8:
            ec = n - 4
            p('v_add_u32 %s, %d, %s' % (v(vao), base, v(vAo)))
            for wv in range(4):
                if wv < 3:
                    p('s_cmp_lg_u32 %s, %d' % (s(sW), wv))
                    p('s_cbranch_scc1 L_WO%d_%d' % (ec, wv + 1))
                for pp in range(4):
                    for r in (0, 2, 4, 6):
                        off = (8 * (r >> 2) + 2 * ((r >> 1) & 1)) * 1024 + pp * 256
                        p('ds_read_b64_tr_b16 %s, %s offset:%d' % (a(128 + (pp * 4 + (ec ^ wv)) * 8 + r, 2), v(vao), off))
                if wv < 3:
                    p('s_branch L_WO%d_E' % ec)
                    p.label('L_WO%d_%d' % (ec, wv + 1))
            p.label('L_WO%d_E' % ec)
        else:
            p('v_add_u32 %s, %d, %s' % (v(va0), base, v(vA0)))
            p('v_add_u32 %s, %d, %s' % (v(va1), base, v(vA1)))
            j = n - 8
            for T in range(4):
                mat, t = T >> 1, T & 1
                for r in (0, 2, 4, 6):
                    off = (mat * 64 + 32 * (r >> 2) + 2 * ((r >> 1) & 1)) * 256
                    dst = WQK + (j * 4 + T) * 8 + r if j < 4 else LAND + T * 8 + r
                    p('ds_read_b64_tr_b16 %s, %s offset:%d' % (v(dst, 2), v(va0 if t == 0 else va1), off))
    for n in range(5): issue(n)
    for n in range(16):
        inflight = min(16, n + 5) - n - 1
        p.wait(vm=8 * inflight)
        p('s_barrier')
        consume(n)
        p.wait(lgkm=0)
        p('s_barrier')
        if n >= 12:
            slot = n - 12
            r = vWrd0 if slot < 2 else vWrd1
            for T in range(4):
                for half in range(2):
                    off = slot * 32768 + T * 2048 + half * 1024 - (0 if slot < 2 else 65536)
                    p('ds_write_b128 %s, %s offset:%d' % (v(r), v(LAND + T * 8 + half * 4, 4), off))
        if n + 5 < 16: issue(n + 5)
    p.wait(lgkm=0)


def chain_init_globals(p):
    L = v(vLane); t0, t1, t2 = v(vT0), v(vT1), v(vT2)
    for r in range(4): p('v_mov_b32 %s, 0' % v(MF + r))
    p('s_lshl_b32 %s, %s, 13' % (s(sTmp), s(sH)))
    p('s_lshl_b32 %s, %s, 11' % (s(sTmp2), s(sW)))
    p('s_add_u32 %s, %s, %s' % (s(sTmp), s(sTmp), s(sTmp2)))
    p('s_add_u32 %s, %s, 0x%x' % (s(sTmp), s(sTmp), WS_PART))
    p('s_add_u32 %s, %s, 0x40000' % (s(sTmp2), s(sTmp)))
    for k in range(2):
        p('buffer_store_dwordx4 %s, %s, s[4:7], %s offen offset:%d' % (v(MF, 4), v(vL16), s(sTmp), k * 1024))
        p('buffer_store_dwordx4 %s, %s, s[4:7], %s offen offset:%d' % (v(MF, 4), v(vL16), s(sTmp2), k * 1024))
    for slot in range(3):
        p('s_mov_b32 %s, 0x%x' % (s(sTmp), WS_M + slot * 8192))
        p('buffer_store_dword %s, %s, s[4:7], %s offen' % (v(vNeg1), v(vMst), s(sTmp)))

def chain_init_mem0(p):
    L = v(vLane); t0, t1, t2 = v(vT0), v(vT1), v(vT2)
    p('s_load_dwordx2 s[48:49], s[0:1], %d' % KA_MEM0)
    p('v_lshrrev_b32 %s, 3, %s' % (t0, L))
    p('v_and_b32 %s, 7, %s' % (t1, L))
    p('v_lshlrev_b32 %s, 4, %s' % (t1, t1))
    p('s_lshl_b32 %s, %s, 8' % (s(sTmp), s(sW)))
    p('v_add_u32 %s, %s, %s' % (t1, s(sTmp), t1))
    p('v_lshl_add_u32 %s, %s, 10, %s' % (t2, t0, t1))
    p('v_mul_u32_u24 %s, %d, %s' % (t0, M_RS, t0))
    p('v_add_u32 %s, %s, %s' % (t0, t0, t1))
    p('v_add_u32 %s, %d, %s' % (t0, M_IMG, t0))
    p('s_waitcnt lgkmcnt(0)')
    p('s_mov_b32 s50, 8192')
    p('s_mov_b32 s51, 0x20000')
    p('buffer_load_dwordx4 %s, %s, s[48:51], 0 offen' % (v(MF + 4, 4), t2))
    p('buffer_load_dwordx4 %s, %s, s[48:51], 0 offen offset:128' % (v(MF + 8, 4), t2))
    p('ds_write_b128 %s, %s' % (t0, v(MF + 4, 4)))
    p('ds_write_b128 %s, %s offset:128' % (t0, v(MF + 8, 4)))
    p.wait(vm=0, lgkm=0)

def chain_init_comm(p):
    chain_init_globals(p)
    chain_init_mem0(p)

def chain_loop(p, nsteps=64, stamps=False, opt=()):
    L = v(vLane); t0, t1, t2 = v(vT0), v(vT1), v(vT2)
    SC = '' if 'nosc1' in opt else ' sc1'
    p('s_mov_b32 %s, 0' % s(sStep))
    p('s_mov_b32 %s, 0' % s(sFlagVal))
    p('s_mov_b32 %s, 1' % s(sTag))
    for P in range(2):
        p('s_mov_b32 %s, 0x%x' % (s(sPst + P), WS_PART + P * 4096))
    p('s_lshl_b32 %s, %s, 13' % (s(sPld), s(sH)))
    p('s_lshr_b32 %s, %s, 1' % (s(sTmp), s(sW)))
    p('s_lshl_b32 %s, %s, 12' % (s(sTmp), s(sTmp)))
    p('s_add_u32 %s, %s, %s' % (s(sPld), s(sPld), s(sTmp)))
    p('s_add_u32 %s, %s, 0x%x' % (s(sPld), s(sPld), WS_PART))
    p('s_mov_b32 %s, 0x%x' % (s(sMrd), WS_M))
    p('s_mov_b32 %s, 0x%x' % (s(sMwr), WS_M + 8192))
    p('s_mov_b32 %s, 0x%x' % (s(sMpo), WS_M + 16384))
    p('s_lshl_b32 %s, %s, 13' % (s(sTmp), s(sH)))
    p('s_lshl_b32 %s, %s, 11' % (s(sTmp2), s(sW)))
    p('s_add_u32 %s, %s, %s' % (s(sKX), s(sTmp), s(sTmp2)))
    p('s_add_u32 %s, %s, 0x%x' % (s(sVX), s(sKX), WS_VX))
    p('s_add_u32 %s, %s, 0x%x' % (s(sKXn), s(sTmp), 32 * 8192))
    p('s_lshl_b32 %s, %s, 12' % (s(sTmp), s(sH)))
    p('s_lshl_b32 %s, %s, 10' % (s(sTmp2), s(sW)))
    p('s_add_u32 %s, %s, %s' % (s(sTmp), s(sTmp), s(sTmp2)))
    LAG = 0 if 'pubW7' in opt else 32 * 4096
    p('s_add_u32 %s, %s, 0x%x' % (s(sKM), s(sTmp), WS_KM - LAG))
    p('s_add_u32 %s, %s, 0x%x' % (s(sVM), s(sTmp), WS_VM - LAG))
    p('s_lshl_b32 %s, %s, 7' % (s(sTmp), s(sH)))
    p('s_add_u32 %s, %s, 0x%x' % (s(sFlagOff), s(sTmp), WS_FLAG))
    p('s_lshl_b32 %s, %s, 10' % (s(sW10), s(sW)))
    p('v_or_b32 %s, %s, %s' % (t0, s(sW), L))
    p('v_mov_b32 %s, 0x%x' % (t1, OOB))
    p('v_cmp_eq_u32 vcc, 0, %s' % t0)
    p('v_cndmask_b32 %s, %s, 0, vcc' % (v(vFlagOff), t1))
    if 'kvflags' in opt:
        p('s_lshl_b32 %s, %s, 9' % (s(sTmp), s(sH)))
        p('s_add_u32 %s, %s, 0x%x' % (s(sKVbase), s(sTmp), WS_QFLAG))
        for tg in range(2):
            p('s_add_u32 %s, %s, %d' % (s(sKVoff), s(sKVbase), 128 * tg))
            p('s_mov_b32 %s, 0' % s(sCnt))
            p.label('L_KV0%d' % tg)
            p('buffer_load_dword %s, off, s[4:7], %s sc1' % (v(vKVf), s(sKVoff)))
            p.wait(vm=0)
            p('v_readfirstlane_b32 %s, %s' % (s(sTmp), v(vKVf)))
            p('s_add_u32 %s, %s, 1' % (s(sCnt), s(sCnt)))
            p('s_cmp_gt_u32 %s, %d' % (s(sCnt), SPIN_MAX * 4))
            p('s_cbranch_scc1 L_BAIL')
            p('s_cmp_lt_u32 %s, 1' % s(sTmp))
            p('s_cbranch_scc1 L_KV0%d' % tg)
            p.forget()
        p('s_add_u32 %s, %s, 256' % (s(sKVoff), s(sKVbase)))
        p('s_mov_b32 %s, 1' % s(sKVneed))
        p('s_mov_b32 %s, 0' % s(sCnt))
    p('s_mov_b32 m0, %s' % s(sM0kx))
    p('s_nop 0')
    p('buffer_load_dwordx4 %s, s[4:7], %s offen lds' % (v(vL16), s(sKX)))
    p('buffer_load_dwordx4 %s, s[4:7], %s offen offset:1024 lds' % (v(vL16), s(sKX)))
    PRE = [(0, 0), (0, 1), (0, 2), (0, 3), (1, 0), (1, 1)]
    if 'qfirst' in opt: PRE = [(0, 0), (0, 1), (1, 0), (1, 1), (2, 0), (2, 1)]
    REF = [(2, 0), (2, 1), (3, 0), (3, 1), (1, 2), (1, 3), (2, 2), (2, 3), (3, 2), (3, 3)]
    def rd_w(st, land, half): read_w(p, st[0] * 4 + st[1], land, half)
    for u in range(6):
        rd_w(PRE[u], u, 0); rd_w(PRE[u], u, 1)
    for r in range(0, 24, 2): p('v_mov_b64 %s, 0' % v(AQK + r, 2))
    p.wait(vm=0, lgkm=0)
    if stamps:
        for k in range(15): p('s_mov_b32 %s, 0' % s(sAcc + k))
        p.raw('    s_memtime %s' % s(sStamp, 2)); p.raw('    s_waitcnt lgkmcnt(0)')
    p('s_barrier')
    p('s_branch L_T0')
    p.label('L_STEP', align=6)
    p.forget()
    PUB = MF + 16
    VA = MF + 20
    G = MF; GB = MF + 24
    def gpoll(R):
        p('buffer_load_dwordx4 %s, %s, s[4:7], %s offen sc1' % (v(R, 4), v(vMld), s(sMrd)))
        p('buffer_load_dwordx4 %s, %s, s[4:7], %s offen offset:1024 sc1' % (v(R + 4, 4), v(vMld), s(sMrd)))
    def gcheck(R, fail):
        for k in range(2):
            for hh in range(2):
                p('ds_write_b64 %s, %s offset:%d' % (v(vMwr), v(R + 4 * k + 2 * hh, 2), hh * 4 * M_RS + k * 128))
        p('v_max3_u32 %s, %s, %s, %s' % (t0, v(R), v(R + 1), v(R + 2)))
        p('v_max3_u32 %s, %s, %s, %s' % (t1, v(R + 3), v(R + 4), v(R + 5)))
        p('v_max3_u32 %s, %s, %s, %s' % (t0, t0, v(R + 6), v(R + 7)))
        p('v_max_u32 %s, %s, %s' % (t0, t0, t1))
        p('v_cmp_eq_u32 vcc, -1, %s' % t0)
        p('s_cbranch_vccnz %s' % fail)
    DG = optint(opt, 'dg', 0)
    gpoll(G)
    for r in range(0, 24, 2): p('v_mov_b64 %s, 0' % v(AQK + r, 2))
    if DG:
        delay(p, DG - 48)
        gpoll(GB)
        p.wait(vm=2)
        gcheck(G, 'L_GFAILA')
    else:
        p.label('L_GCHECK')
        p.wait(vm=0)
        gcheck(G, 'L_GFAIL')
    p.label('L_GOK')
    lstamp(p, 14, stamps)
    def pub():
        p('buffer_store_dwordx4 %s, %s, s[4:7], %s offen%s' % (v(PUB, 4), v(vL16), s(sKM), SC))
        p('buffer_store_dwordx4 %s, %s, s[4:7], %s offen%s' % (v(VA, 4), v(vL16), s(sVM), SC))
    if 'nopub' not in opt and 'pubT0' not in opt and 'pubW7' not in opt: pub()
    p.wait(lgkm=0)
    stamp(p, 0, stamps)
    p('s_barrier')
    p.label('L_T0')
    p.forget()
    lstamp_save(p, stamps)
    lstamp(p, 0, stamps)
    if 'qfirst' not in opt:
        def rd_m(c): p('ds_read_b128 %s, %s offset:%d' % (v(MF + 4 * c, 4), v(vMrd), c * 128))
        DGx = optint(opt, 'dg', 0)
        for c in ((0, 1, 2, 3) if DGx else (0, 1, 2, 6)): rd_m(c)
        p('s_mov_b32 m0, %s' % s(sM0vx))
        p('v_mov_b32 %s, %s' % (v(vFlag), s(sFlagVal)))
        p('buffer_load_dwordx4 %s, s[4:7], %s offen lds' % (v(vL16), s(sVX)))
        p('buffer_load_dwordx4 %s, s[4:7], %s offen offset:1024 lds' % (v(vL16), s(sVX)))
        if 'pubT0' in opt: pub()
        lstamp(p, 1, stamps)
        def U(i): return (LDSCH[PRE[i][0]], PRE[i][1], v(LAND + i * 8, 8))
        def F(i): return (LDSCH[REF[i][0]], REF[i][1], v(LAND + (i % 6) * 8, 8))
        def R(c, T): return (c, T, v(WQK + ((c - 2) * 4 + T) * 8, 8))
        order = [U(0), U(1), U(2), U(3), U(4), U(5), R(2, 0), R(2, 1), F(0), R(3, 0), F(1), R(3, 1), F(2), R(4, 0), R(4, 1), F(3),
                 R(5, 0), R(5, 1), F(4), R(2, 2), F(5), R(2, 3), F(6), R(3, 2), F(7), R(3, 3), F(8), R(4, 2), F(9), R(5, 2), R(4, 3), R(5, 3)]
        def refill(j, half):
            def rf(): rd_w(REF[j], j % 6, half)
            return rf
        def rd_m_late():
            if DGx:
                p.wait(vm=len(p.vm))
                rd_m(6)
            else: rd_m(3)
        fill = [refill(0, 0), refill(0, 1), rd_m_late, refill(1, 0), refill(1, 1), lambda: rd_m(7),
                refill(2, 0), refill(2, 1), lambda: rd_m(4), refill(3, 0), refill(3, 1), lambda: rd_m(5)]
        for j in range(4, 10): fill += [refill(j, 0), refill(j, 1)]
        def fold_add(T): p('v_pk_add_f32 %s, %s, %s' % (v(AQK + 4 * T, 2), v(AQK + 4 * T, 2), v(AQK + 4 * T + 2, 2)))
        def fold_cvt(T): p('v_cvt_pk_bf16_f32 %s, %s, %s' % (v(AQK + 4 * T), v(AQK + 4 * T), v(AQK + 4 * T + 1)))
        def fold_wr(T):
            if T < 2: p('ds_write_b32 %s, %s offset:%d' % (v(vQwr), v(AQK + 4 * T), T * 256))
            else: p('ds_write2_b32 %s, %s, %s offset0:%d offset1:%d' % (v(vKwr), v(AQK + 4 * T), v(AQK + 4 * T), (T - 2) * 128, (T - 2) * 128 + 1))
        XFr = [LAND + 32, LAND + 40, LAND + 0, LAND + 8]
        QR = LAND + 16
        KR = LAND + 24
        def rd_x(ks, jt): p('ds_read_b128 %s, %s offset:%d' % (v(XFr[ks] + 4 * jt, 4), v(vL16), KX_L + jt * 4096 + ks * 1024))
        fill += [lambda: rd_x(0, 0), lambda: rd_x(0, 1), lambda: rd_x(1, 0), lambda: rd_x(1, 1),
                 lambda: fold_add(0), lambda: fold_add(1), lambda: fold_cvt(0), lambda: fold_cvt(1)]
        for n, (c, T, B) in enumerate(order):
            smf(p, AQK + 4 * T, MF + 4 * c, B, vIdxQ)
            if n < len(fill): fill[n]()
        stamp(p, 6, stamps)
        lstamp(p, 2, stamps)
        vq = [(c, t) for c in range(8) for t in range(2)]
        def vs(k=1):
            for _ in range(k):
                if vq and 'nov' in opt: vq.pop(0)
                elif vq:
                    c, t = vq.pop(0)
                    smf(p, AV + 4 * t, MF + 4 * c, a((c * 2 + t) * 8, 8), vIdxQ)
        fold_wr(0); fold_wr(1)
        p('buffer_store_dword %s, %s, s[4:7], %s offen%s' % (v(vFlag), v(vFlagOff), s(sFlagOff), SC))
        fold_add(2); fold_cvt(2); fold_wr(2)
        fold_add(3); fold_cvt(3); fold_wr(3)
        def small_vmem():
            if 'poisA' not in opt and 'poisB' not in opt: p('buffer_store_dword %s, %s, s[4:7], %s offen' % (v(vNeg1), v(vMst), s(sMpo)))
            if 'samekv' in opt: pass
            elif 'notouch' not in opt: p('buffer_load_dword %s, %s, s[4:7], %s offen' % (v(vDummy), v(vTouch), s(sKXn)))
            if 'kvflags' in opt: p('buffer_load_dword %s, off, s[4:7], %s sc1' % (v(vKVf), s(sKVoff)))
        if 'smallS' not in opt: small_vmem()
        vs(optint(opt, 'v3', 3))
        lstamp(p, 3, stamps)
        p.wait(lgkm=0)
        stamp(p, 1, stamps)
        p('s_barrier')
        lstamp(p, 4, stamps)
        SA = AQK
        def rd_q(ks):
            for hh in range(2): p('ds_read_b64_tr_b16 %s, %s offset:%d' % (v(QR + 4 * (ks & 1) + 2 * hh, 2), v(vQtr), ks * 512 + hh * 256))
        def rd_k(ks):
            for hh in range(2): p('ds_read_b64_tr_b16 %s, %s offset:%d' % (v(KR + 4 * (ks & 1) + 2 * hh, 2), v(vKtr), ks * 1024 + hh * 512))
        Q3 = [QR, QR + 4, AQK + 12, QR]
        K3 = [KR, KR + 4, KR, KR + 4]
        def rq(ks, hh): p('ds_read_b64_tr_b16 %s, %s offset:%d' % (v(Q3[ks] + 2 * hh, 2), v(vQtr), ks * 512 + hh * 256))
        def rk(ks, hh): p('ds_read_b64_tr_b16 %s, %s offset:%d' % (v(K3[ks] + 2 * hh, 2), v(vKtr), ks * 1024 + hh * 512))
        rq(0, 0); rq(0, 1); rk(0, 0); rk(0, 1); rq(1, 0); rq(1, 1); rk(1, 0); rk(1, 1); rq(2, 0); rq(2, 1)
        vs(optint(opt, 'v4', 2))
        VXF = LAND + 32
        def mx_(ks, jt): p('v_mfma_f32_16x16x32_bf16 %s, %s, %s, %s' % (v(SA + 4 * jt, 4), v(XFr[ks] + 4 * jt, 4), v(Q3[ks], 4), '0' if ks == 0 else v(SA + 4 * jt, 4)))
        def mm_(ks): p('v_mfma_f32_16x16x32_bf16 %s, %s, %s, %s' % (v(SA + 8, 4), v(K3[ks], 4), v(Q3[ks], 4), '0' if ks == 0 else v(SA + 8, 4)))
        rd_x(2, 0)
        mx_(0, 0); rd_x(2, 1)
        mx_(0, 1); rd_x(3, 0)
        mm_(0); rd_x(3, 1)
        mx_(1, 0); rk(2, 0); rk(2, 1)
        mx_(1, 1)
        rq(3, 0); rq(3, 1)
        mm_(1); rk(3, 0); rk(3, 1)
        mx_(2, 0)
        if 'smallS' in opt: small_vmem()
        mx_(2, 1)
        p.wait(vm=len(p.vm) - 2 - (0 if 'smallS' not in opt else 0))
        mm_(2)
        for t in range(2): p('ds_read_b128 %s, %s offset:%d' % (v(VXF + 4 * t, 4), v(vVX), t * 1024))
        mx_(3, 0); mx_(3, 1); mm_(3)
        stamp(p, 7, stamps)
        lstamp(p, 5, stamps)
        if 'pubW7' in opt:
            PUB = LAND + 24
            p('v_add_u32 %s, %s, %s' % (t2, s(sW10), v(vKtr)))
            for hh in range(2): p('ds_read_b64_tr_b16 %s, %s offset:%d' % (v(PUB + 2 * hh, 2), t2, hh * 512))
        vs(2)
    else:
        def rd_m(c): p('ds_read_b128 %s, %s offset:%d' % (v(MF + 4 * c, 4), v(vMrd), c * 128))
        for c in (0, 1, 6, 2): rd_m(c)
        p('s_mov_b32 m0, %s' % s(sM0vx))
        p('v_mov_b32 %s, %s' % (v(vFlag), s(sFlagVal)))
        p('buffer_load_dwordx4 %s, s[4:7], %s offen lds' % (v(vL16), s(sVX)))
        p('buffer_load_dwordx4 %s, s[4:7], %s offen offset:1024 lds' % (v(vL16), s(sVX)))
        vxn = p.vmissued
        if 'pubT0' in opt: pub()
        lstamp(p, 1, stamps)
        Ls = [LAND + 8 * k for k in range(6)]
        slot_of = {0: 0, 1: 1, 6: 2, 7: 3}
        def Lop(c, T, land): return (c, T, v(Ls[land], 8))
        def R(c, T): return (c, T, v(WQK + ((c - 2) * 4 + T) * 8, 8))
        def rw(c, T, land, half): return lambda: read_w(p, slot_of[c] * 4 + T, land, half)
        order = [Lop(0, 0, 0), Lop(0, 1, 1), Lop(1, 0, 2), Lop(1, 1, 3), Lop(6, 0, 4), Lop(6, 1, 5),
                 R(2, 0), R(2, 1), R(3, 0), R(3, 1), R(4, 0), R(4, 1), R(5, 0), R(5, 1), Lop(7, 0, 0), Lop(7, 1, 1),
                 Lop(0, 2, 2), Lop(0, 3, 3), Lop(1, 2, 4), Lop(1, 3, 5)] + [R(c, T) for c in range(2, 6) for T in (2, 3)] + \
                [Lop(6, 2, 0), Lop(6, 3, 1), Lop(7, 2, 2), Lop(7, 3, 3)]
        def fold_add(T): p('v_pk_add_f32 %s, %s, %s' % (v(AQK + 4 * T, 2), v(AQK + 4 * T, 2), v(AQK + 4 * T + 2, 2)))
        def fold_cvt(T): p('v_cvt_pk_bf16_f32 %s, %s, %s' % (v(AQK + 4 * T), v(AQK + 4 * T), v(AQK + 4 * T + 1)))
        def fold_wr(T):
            if T < 2: p('ds_write_b32 %s, %s offset:%d' % (v(vQwr), v(AQK + 4 * T), T * 256))
            else: p('ds_write2_b32 %s, %s, %s offset0:%d offset1:%d' % (v(vKwr), v(AQK + 4 * T), v(AQK + 4 * T), (T - 2) * 128, (T - 2) * 128 + 1))
        QF = Ls[4]
        XFr = [AQK, Ls[0], Ls[1], AQK]
        SA = Ls[2]
        K3 = [AQK + 8, AQK + 12, Ls[3] + 4, AQK + 8]
        def rd_x(ks, jt): p('ds_read_b128 %s, %s offset:%d' % (v(XFr[ks] + 4 * jt, 4), v(vL16), KX_L + jt * 4096 + ks * 1024))
        def rq(ks, hh): p('ds_read_b64_tr_b16 %s, %s offset:%d' % (v(QF + 4 * ks + 2 * hh, 2), v(vQtr), ks * 512 + hh * 256))
        def rk(ks, hh): p('ds_read_b64_tr_b16 %s, %s offset:%d' % (v(K3[ks] + 2 * hh, 2), v(vKtr), ks * 1024 + hh * 512))
        mark = {}
        def wr_q(T):
            fold_wr(T); mark['q'] = len(p.lgkm) - 1; mark['n'] = 0
        def b2a():
            n_after = mark['cnt']()
            p.wait(lgkm=n_after)
            p('s_barrier')
        lg_issued = [0]
        fill = {0: [lambda: rd_m(3)], 1: [lambda: rd_m(4)], 2: [rw(7, 0, 0, 0)], 3: [rw(7, 0, 0, 1)], 4: [lambda: rd_m(5)],
                5: [rw(7, 1, 1, 0)], 6: [rw(7, 1, 1, 1)], 7: [lambda: rd_m(7)],
                8: [rw(0, 2, 2, 0)], 9: [rw(0, 2, 2, 1)], 10: [rw(0, 3, 3, 0)], 11: [rw(0, 3, 3, 1)],
                12: [rw(1, 2, 4, 0)], 13: [rw(1, 2, 4, 1)], 14: [rw(1, 3, 5, 0)], 15: [rw(1, 3, 5, 1)],
                16: [rw(6, 2, 0, 0)], 17: [rw(6, 2, 0, 1)], 18: [rw(6, 3, 1, 0)], 19: [rw(6, 3, 1, 1), lambda: fold_add(0)],
                20: [rw(7, 2, 2, 0), lambda: fold_add(1)], 21: [rw(7, 2, 2, 1), lambda: fold_cvt(0)], 22: [rw(7, 3, 3, 0), lambda: fold_cvt(1)],
                23: [rw(7, 3, 3, 1)], 24: [lambda: fold_wr(0), lambda: fold_wr(1)],
                25: [lambda: rd_x(0, 0)], 26: [lambda: rd_x(0, 1)],
                28: ['B2A'], 29: [lambda: rq(0, 0), lambda: rq(0, 1)], 30: [lambda: rq(1, 0), lambda: rq(1, 1)], 31: [lambda: rd_x(1, 0), lambda: rd_x(1, 1)]}
        for n, (c, T, B) in enumerate(order):
            smf(p, AQK + 4 * T, MF + 4 * c, B, vIdxQ)
            for f in fill.get(n, []):
                if f == 'B2A':
                    p.wait(lgkm=2)
                    p('s_barrier')
                else: f()
        stamp(p, 6, stamps)
        lstamp(p, 2, stamps)
        vq = [(c, t) for c in range(8) for t in range(2)]
        def vs(k=1):
            for _ in range(k):
                if vq:
                    c, t = vq.pop(0)
                    smf(p, AV + 4 * t, MF + 4 * c, a((c * 2 + t) * 8, 8), vIdxQ)
        def mx_(ks, jt): p('v_mfma_f32_16x16x32_bf16 %s, %s, %s, %s' % (v(SA + 4 * jt, 4), v(XFr[ks] + 4 * jt, 4), v(QF + 4 * ks, 4), '0' if ks == 0 else v(SA + 4 * jt, 4)))
        def mm_(ks): p('v_mfma_f32_16x16x32_bf16 %s, %s, %s, %s' % (v(SA + 8, 4), v(K3[ks], 4), v(QF + 4 * ks, 4), '0' if ks == 0 else v(SA + 8, 4)))
        rq(2, 0); rq(2, 1); rq(3, 0); rq(3, 1); rd_x(2, 0); rd_x(2, 1)
        p('buffer_store_dword %s, %s, s[4:7], %s offen%s' % (v(vFlag), v(vFlagOff), s(sFlagOff), SC))
        mx_(0, 0); fold_add(2); fold_add(3)
        mx_(0, 1); fold_cvt(2); fold_cvt(3)
        fold_wr(2); fold_wr(3)
        rd_x(3, 0); rd_x(3, 1)
        mx_(1, 0); mx_(1, 1)
        p('buffer_store_dword %s, %s, s[4:7], %s offen' % (v(vNeg1), v(vMst), s(sMpo)))
        mx_(2, 0)
        if 'samekv' in opt: pass
        elif 'notouch' not in opt: p('buffer_load_dword %s, %s, s[4:7], %s offen' % (v(vDummy), v(vTouch), s(sKXn)))
        mx_(2, 1)
        if 'kvflags' in opt: p('buffer_load_dword %s, off, s[4:7], %s sc1' % (v(vKVf), s(sKVoff)))
        lstamp(p, 3, stamps)
        p.wait(lgkm=2)
        stamp(p, 1, stamps)
        p('s_barrier')
        lstamp(p, 4, stamps)
        rk(0, 0); rk(0, 1); rk(1, 0); rk(1, 1); rk(2, 0); rk(2, 1)
        mx_(3, 0); mx_(3, 1)
        VXF = Ls[0]
        p.wait(vm=p.vmissued - vxn)
        for t in range(2): p('ds_read_b128 %s, %s offset:%d' % (v(VXF + 4 * t, 4), v(vVX), t * 1024))
        vs(optint(opt, 'v4', 2))
        mm_(0); rk(3, 0); rk(3, 1)
        mm_(1); mm_(2); mm_(3)
        stamp(p, 7, stamps)
        lstamp(p, 5, stamps)
        vs(2)
    X = SA
    mx = vT0
    WA = MF
    p('v_max3_f32 %s, %s, %s, %s' % (v(mx), v(X), v(X + 1), v(X + 2)))
    p('v_max3_f32 %s, %s, %s, %s' % (v(vT1), v(X + 3), v(X + 4), v(X + 5)))
    p('v_max3_f32 %s, %s, %s, %s' % (v(mx), v(mx), v(X + 6), v(X + 7)))
    p('v_max3_f32 %s, %s, %s, %s' % (v(vT1), v(vT1), v(X + 8), v(X + 9)))
    p('v_max_f32 %s, %s, %s' % (v(mx), v(mx), v(vT1)))
    p('v_mov_b32 %s, %s' % (v(vT1), v(mx)))
    vs(1)
    p('v_permlane16_swap_b32 %s, %s' % (v(vT1), v(mx)))
    p('v_max_f32 %s, %s, %s' % (v(mx), v(mx), v(vT1)))
    p('v_mov_b32 %s, %s' % (v(vT1), v(mx)))
    vs(1)
    p('v_permlane32_swap_b32 %s, %s' % (v(vT1), v(mx)))
    p('v_max_f32 %s, %s, %s' % (v(mx), v(mx), v(vT1)))
    p('v_mul_f32 %s, %s, %s' % (v(mx), s(sScale), v(mx)))
    for r in range(0, 10, 2):
        p('v_pk_fma_f32 %s, %s, %s, %s op_sel_hi:[1,0,0] neg_lo:[0,0,1] neg_hi:[0,0,1]' % (v(X + r, 2), v(X + r, 2), s(sScale2, 2), v(mx, 2)))
    vs(len(vq))
    lstamp(p, 6, stamps)
    QFI = 'qfirst' in opt
    PX = LAND + (32 if QFI else 16)
    PM = PX + 4
    for r in range(0, 8): p('v_exp_f32 %s, %s' % (v(X + r), v(X + r)))
    for r in range(4): p('v_cvt_pk_bf16_f32 %s, %s, %s' % (v(PX + r), v(X + 2 * r), v(X + 2 * r + 1)))
    OA = LAND + (8 if QFI else 0)
    p('v_mfma_f32_16x16x32_bf16 %s, %s, %s, 0' % (v(OA, 4), v(VXF, 4), v(PX, 4)))
    p('v_exp_f32 %s, %s' % (v(X + 8), v(X + 8)))
    p('v_mfma_f32_16x16x32_bf16 %s, %s, %s, 0' % (v(OA + 4, 4), v(VXF + 4, 4), v(PX, 4)))
    p('v_exp_f32 %s, %s' % (v(X + 9), v(X + 9)))
    for t in range(2):
        p('v_cvt_pk_bf16_f32 %s, %s, %s' % (v(VA + 2 * t), v(AV + 4 * t), v(AV + 4 * t + 1)))
        p('v_cvt_pk_bf16_f32 %s, %s, %s' % (v(VA + 2 * t + 1), v(AV + 4 * t + 2), v(AV + 4 * t + 3)))
    p('v_cvt_pk_bf16_f32 %s, %s, %s' % (v(PM), v(X + 8), v(X + 9)))
    p('v_cvt_pk_bf16_f32 %s, %s, %s' % (v(PM + 1), v(X + 8), v(X + 9)))
    stamp(p, 8, stamps)
    lstamp(p, 7, stamps)
    p('v_pk_add_f32 %s, %s, %s' % (v(X, 2), v(X, 2), v(X + 2, 2)))
    p('v_pk_add_f32 %s, %s, %s' % (v(X + 4, 2), v(X + 4, 2), v(X + 6, 2)))
    p('v_mfma_f32_16x16x16_bf16 %s, %s, %s, %s' % (v(OA, 4), v(VA, 2), v(PM, 2), v(OA, 4)))
    p('v_pk_add_f32 %s, %s, %s' % (v(X, 2), v(X, 2), v(X + 8, 2)))
    p('v_pk_add_f32 %s, %s, %s' % (v(X, 2), v(X, 2), v(X + 4, 2)))
    p('v_mfma_f32_16x16x16_bf16 %s, %s, %s, %s' % (v(OA + 4, 4), v(VA + 2, 2), v(PM, 2), v(OA + 4, 4)))
    p('v_add_f32 %s, %s, %s' % (v(X), v(X), v(X + 1)))
    p('v_mov_b32 %s, %s' % (v(X + 1), v(X)))
    p('v_mov_b64 %s, 0' % v(WA + 0, 2)); p('v_mov_b64 %s, 0' % v(WA + 2, 2))
    p('v_permlane16_swap_b32 %s, %s' % (v(X + 1), v(X)))
    p('v_add_f32 %s, %s, %s' % (v(X), v(X), v(X + 1)))
    p('v_mov_b32 %s, %s' % (v(X + 1), v(X)))
    p('v_mov_b64 %s, 0' % v(WA + 4, 2)); p('v_mov_b64 %s, 0' % v(WA + 6, 2))
    p('v_permlane32_swap_b32 %s, %s' % (v(X + 1), v(X)))
    p('v_add_f32 %s, %s, %s' % (v(X), v(X), v(X + 1)))
    p('v_rcp_f32 %s, %s' % (v(vT0), v(X)))
    p('v_mov_b64 %s, 0' % v(WA + 8, 2))
    OF = LAND + 32
    for t in range(2):
        for hh in range(2):
            p('v_pk_mul_f32 %s, %s, %s op_sel_hi:[1,0]' % (v(OA + 4 * t + 2 * hh, 2), v(OA + 4 * t + 2 * hh, 2), v(vT0, 2)))
    for t in range(2):
        for hh in range(2):
            p('v_cvt_pk_bf16_f32 %s, %s, %s' % (v(OF + 2 * t + hh), v(OA + 4 * t + 2 * hh), v(OA + 4 * t + 2 * hh + 1)))
    p('ds_write_b128 %s, %s' % (v(vVX), v(OF, 4)))
    lstamp(p, 8, stamps)
    XA = LAND + (0 if QFI else 8)
    p('v_mov_b64 %s, 0' % v(WA + 10, 2)); p('v_mov_b64 %s, 0' % v(WA + 12, 2)); p('v_mov_b64 %s, 0' % v(WA + 14, 2))
    smf(p, WA + 0, OF, a(128 + 0 * 32, 8), vIdxO)
    p('v_xor_b32 %s, 0x800, %s' % (v(XA), v(vVX)))
    smf(p, WA + 4, OF, a(128 + 1 * 32, 8), vIdxO)
    p('v_xor_b32 %s, 0x1000, %s' % (v(XA + 1), v(vVX)))
    smf(p, WA + 8, OF, a(128 + 2 * 32, 8), vIdxO)
    p('v_xor_b32 %s, 0x1800, %s' % (v(XA + 2), v(vVX)))
    if 'pubW7' in opt:
        p('buffer_store_dwordx4 %s, %s, s[4:7], %s offen%s' % (v(PUB, 4), v(vL16), s(sKM), SC))
        p('buffer_store_dwordx4 %s, %s, s[4:7], %s offen%s' % (v(VA, 4), v(vL16), s(sVM), SC))
    else: p('v_add_u32 %s, %s, %s' % (v(XA + 3), s(sW10), v(vKtr)))
    p('s_cmp_eq_u32 %s, %d' % (s(sStep), nsteps - 1))
    p.wait(lgkm=0)
    stamp(p, 2, stamps)
    p('s_barrier')
    lstamp(p, 9, stamps)
    for j in range(1, 4): p('ds_read_b128 %s, %s' % (v(OF + 4 * j, 4), v(XA + j - 1)))
    if 'pubW7' not in opt:
        for hh in range(2): p('ds_read_b64_tr_b16 %s, %s offset:%d' % (v(PUB + 2 * hh, 2), v(XA + 3), hh * 512))
    p('s_cbranch_scc1 L_DONE')
    smf(p, WA + 12, OF, a(128 + 3 * 32, 8), vIdxO)
    def kxdma():
        if 'samekv' not in opt: p('s_add_u32 %s, %s, %d' % (s(sKX), s(sKX), 32 * 8192))
        p('s_mov_b32 m0, %s' % s(sM0kx))
        if 'samekv' not in opt: p('s_add_u32 %s, %s, %d' % (s(sVX), s(sVX), 32 * 8192))
        if 'nokxdma' not in opt:
            p('buffer_load_dwordx4 %s, s[4:7], %s offen lds' % (v(vL16), s(sKX)))
            p('buffer_load_dwordx4 %s, s[4:7], %s offen offset:1024 lds' % (v(vL16), s(sKX)))
    if 'kxlate' not in opt: kxdma()
    E = LAND + (8 if QFI else 16)
    def pack(P, k):
        q = 2 * P + (k >> 1); hh = k & 1
        p('v_cvt_pk_bf16_f32 %s, %s, %s' % (v(E + 4 * P + k), v(WA + 4 * q + 2 * hh), v(WA + 4 * q + 2 * hh + 1)))
    for j in range(1, 4):
        for q in (0, 1): smf(p, WA + 4 * q, OF + 4 * j, a(128 + (q * 4 + j) * 8, 8), vIdxO)
    pend = [lambda k=k: pack(0, k) for k in range(4)]
    pend += [lambda: p('v_bfi_b32 %s, 1, %s, %s' % (v(E), s(sTag), v(E))),
             lambda: p('buffer_store_dwordx4 %s, %s, s[4:7], %s offen' % (v(E, 4), v(vPst), s(sPst)))]
    seq = [(q, j) for j in range(1, 4) for q in (2, 3)]
    for n, (q, j) in enumerate(seq):
        smf(p, WA + 4 * q, OF + 4 * j, a(128 + (q * 4 + j) * 8, 8), vIdxO)
        if n >= 3: pend.pop(0)()
    while pend: pend.pop(0)()
    for k in range(4): pack(1, k)
    p('v_bfi_b32 %s, 1, %s, %s' % (v(E + 4), s(sTag), v(E + 4)))
    p('buffer_store_dwordx4 %s, %s, s[4:7], %s offen' % (v(E + 4, 4), v(vPst), s(sPst + 1)))
    stamp(p, 3, stamps)
    lstamp(p, 10, stamps)
    PR = MF
    SEL = MF + 8
    RA = MF + 12
    def gen_sel():
        p('v_bfe_u32 %s, %s, 4, 4' % (t0, v(vL16)))
        p('v_and_b32 %s, 16, %s' % (t1, v(vL16)))
        p('v_mov_b32 %s, 0x3f80' % t2)
        p('v_lshlrev_b32 %s, %s, %s' % (t2, t1, t2))
        p('v_lshrrev_b32 %s, 1, %s' % (t0, t0))
        for q in range(4):
            p('v_cmp_eq_u32 %s, %d, %s' % (s(sMaskA + 2 * (q & 1), 2), q, t0))
            p('v_mov_b32 %s, 0' % v(SEL + q))
            if q & 1:
                p('v_cndmask_b32 %s, %s, %s, %s' % (v(SEL + q - 1), v(SEL + q - 1), t2, s(sMaskA, 2)))
                p('v_cndmask_b32 %s, %s, %s, %s' % (v(SEL + q), v(SEL + q), t2, s(sMaskA + 2, 2)))
    if 'kxlate' in opt: kxdma()
    gen_sel()
    if 'landlate' not in opt:
        for u in range(6):
            rd_w(PRE[u], u, 0); rd_w(PRE[u], u, 1)
    delay(p, optint(opt, 'd1', 0))
    if optint(opt, 'd1s', 0):
        p('s_cmp_lt_u32 %s, 2' % s(sW))
        p('s_cbranch_scc1 L_D1S')
        delay(p, optint(opt, 'd1s', 0))
        p.label('L_D1S')
    lstamp(p, 11, stamps)
    PB = MF + 24
    DP = optint(opt, 'dp', 0)
    def ppoll(R):
        for k in range(2):
            p('buffer_load_dwordx4 %s, %s, s[4:7], %s offen offset:%d sc1' % (v(R + 4 * k, 4), v(vPld), s(sPld), k * 2048))
    def pcheck(R, fail):
        p('v_mfma_f32_16x16x32_bf16 %s, %s, %s, 0' % (v(RA, 4), v(R, 4), v(SEL, 4)))
        p('v_bitop3_b32 %s, -1, %s, %s bitop3:0x90' % (t0, v(R), s(sTag)))
        p('v_bitop3_b32 %s, %s, %s, %s bitop3:0x90' % (t0, t0, v(R + 4), s(sTag)))
        p('v_mfma_f32_16x16x32_bf16 %s, %s, %s, %s' % (v(RA, 4), v(R + 4, 4), v(SEL, 4), v(RA, 4)))
        p('v_and_b32 %s, 1, %s' % (t0, t0))
        p('v_cmp_eq_u32 vcc, 0, %s' % t0)
        p('s_cbranch_vccnz %s' % fail)
    ppoll(PR)
    if 'landlate' in opt:
        for u in range(6):
            rd_w(PRE[u], u, 0); rd_w(PRE[u], u, 1)
    if 'kvflags' in opt:
        p('v_readfirstlane_b32 %s, %s' % (s(sTmp), v(vKVf)))
        p('s_cmp_ge_u32 %s, %s' % (s(sTmp), s(sKVneed)))
        p('s_cbranch_scc0 L_KVWAIT')
        p.label('L_KVOK')
        p('s_add_u32 %s, %s, 3' % (s(sTmp), s(sStep)))
        p('s_lshr_b32 %s, %s, 2' % (s(sKVneed), s(sTmp)))
        p('s_add_u32 %s, %s, 1' % (s(sKVneed), s(sKVneed)))
        p('s_cmp_lt_u32 %s, 64' % s(sTmp))
        p('s_cselect_b32 %s, %s, 0' % (s(sKVneed), s(sKVneed)))
        p('s_and_b32 %s, %s, 3' % (s(sTmp), s(sTmp)))
        p('s_lshl_b32 %s, %s, 7' % (s(sTmp), s(sTmp)))
        p('s_add_u32 %s, %s, %s' % (s(sKVoff), s(sKVbase), s(sTmp)))
    if 'pubW7' not in opt: p('s_mov_b32 %s, %s' % (s(sFlagVal), s(sStep)))
    p('s_add_u32 %s, %s, 1' % (s(sStep), s(sStep)))
    if 'pubW7' in opt: p('s_mov_b32 %s, %s' % (s(sFlagVal), s(sStep)))
    p('s_lshr_b32 %s, %s, 1' % (s(sTmp), s(sStep)))
    p('s_and_b32 %s, %s, 1' % (s(sTmp), s(sTmp)))
    p('s_xor_b32 %s, %s, 1' % (s(sTagN), s(sTmp)))
    for P in range(2): p('s_xor_b32 %s, %s, 0x40000' % (s(sPst + P), s(sPst + P)))
    p('s_mov_b32 %s, %s' % (s(sTmp), s(sMrd)))
    p('s_mov_b32 %s, %s' % (s(sMrd), s(sMwr)))
    p('s_mov_b32 %s, %s' % (s(sMwrOld), s(sMwr)))
    p('s_mov_b32 %s, %s' % (s(sMwr), s(sMpo)))
    p('s_mov_b32 %s, %s' % (s(sMpo), s(sTmp)))
    p('s_add_u32 %s, %s, %d' % (s(sKXn), s(sKXn), 32 * 8192))
    p('s_add_u32 %s, %s, %d' % (s(sKM), s(sKM), 32 * 4096))
    p('s_add_u32 %s, %s, %d' % (s(sVM), s(sVM), 32 * 4096))
    p('s_mov_b32 %s, 0' % s(sCnt))
    if 'steprt' in opt:
        p.raw('    s_ff1_i32_b32 s80, %s' % s(sStep))
        p.raw('    s_lshl_b32 s81, 1, s80')
        p.raw('    s_cmp_eq_u32 s81, %s' % s(sStep))
        p.raw('    s_cbranch_scc0 L_STEPRT')
        p.raw('    s_or_b32 s81, %s, %s' % (s(sH), s(sW)))
        p.raw('    s_cmp_eq_u32 s81, 0')
        p.raw('    s_cbranch_scc0 L_STEPRT')
        p.raw('    s_memrealtime s[82:83]')
        p.raw('    s_load_dwordx2 s[84:85], s[0:1], %d' % KA_DBG)
        p.raw('    s_waitcnt lgkmcnt(0)')
        p.raw('    s_lshl_b32 s80, s80, 2')
        p.raw('    s_add_u32 s80, s80, 36')
        p.raw('    v_mov_b32 %s, s82' % t0)
        p.raw('    v_mov_b32 %s, s80' % t1)
        p.raw('    global_store_dword %s, %s, s[84:85]' % (t1, t0))
        p.raw('L_STEPRT:')
    if DP:
        delay(p, max(DP - 130, 0))
        ppoll(PB)
        p.wait(vm=2)
        pcheck(PR, 'L_PFAILA')
    else:
        p.label('L_PCHECK')
        p.wait(vm=0)
        pcheck(PR, 'L_PFAIL')
    p.label('L_POK')
    stamp(p, 11, stamps)
    lstamp(p, 12, stamps)
    if 'poisA' in opt: p('buffer_store_dword %s, %s, s[4:7], %s offen' % (v(vNeg1), v(vMst), s(sMwr)))
    p('s_mov_b32 %s, %s' % (s(sTag), s(sTagN)))
    p('s_xor_b32 %s, %s, 0x40000' % (s(sPld), s(sPld)))
    p('v_permlane32_swap_b32 %s, %s' % (v(RA), v(RA + 1)))
    p('v_permlane32_swap_b32 %s, %s' % (v(RA + 2), v(RA + 3)))
    p('v_add_f32 %s, %s, %s' % (v(RA), v(RA), v(RA + 1)))
    p('v_add_f32 %s, %s, %s' % (v(RA + 2), v(RA + 2), v(RA + 3)))
    p('v_permlane16_swap_b32 %s, %s' % (v(RA), v(RA + 2)))
    p('v_add_f32 %s, %s, %s' % (v(RA), v(RA), v(RA + 2)))
    p('v_mov_b32 %s, %s' % (v(RA + 1), v(RA)))
    p('v_permlane32_swap_b32 %s, %s' % (v(RA), v(RA + 1)))
    p('v_cvt_pk_bf16_f32 %s, %s, %s' % (v(RA), v(RA), v(RA + 1)))
    p('v_min_u32 %s, 0xfffffffe, %s' % (v(RA), v(RA)))
    p('buffer_store_dword %s, %s, s[4:7], %s offen' % (v(RA), v(vMst), s(sMwrOld)))
    if 'poisB' in opt: p('buffer_store_dword %s, %s, s[4:7], %s offen' % (v(vNeg1), v(vMst), s(sMwr)))
    stamp(p, 4, stamps)
    lstamp(p, 13, stamps)
    delay(p, optint(opt, 'd2', 0))
    if optint(opt, 'd2s', 0):
        p('s_cmp_lt_u32 %s, 2' % s(sW))
        p('s_cbranch_scc1 L_STEP')
        delay(p, optint(opt, 'd2s', 0))
    p('s_branch L_STEP')
    if 'kvflags' in opt:
        p.label('L_KVWAIT')
        p('s_add_u32 %s, %s, 1' % (s(sCnt), s(sCnt)))
        p('s_cmp_gt_u32 %s, %d' % (s(sCnt), SPIN_MAX * 4))
        p('s_cbranch_scc1 L_BAIL')
        p.raw('    buffer_load_dword %s, off, s[4:7], %s sc1' % (v(vKVf), s(sKVoff)))
        p.raw('    s_waitcnt vmcnt(0)')
        p.raw('    s_nop 0')
        p.raw('    v_readfirstlane_b32 %s, %s' % (s(sTmp), v(vKVf)))
        p.raw('    s_nop 1')
        p('s_cmp_ge_u32 %s, %s' % (s(sTmp), s(sKVneed)))
        p('s_cbranch_scc0 L_KVWAIT')
        p('s_mov_b32 %s, 0' % s(sCnt))
        p('s_branch L_KVOK')
    def countfail(inc):
        p('s_add_u32 %s, %s, 1' % (s(sCnt), s(sCnt)))
        p('s_add_u32 %s, %s, 0x%x' % (s(sNfail), s(sNfail), inc))
        p('s_cmp_lt_u32 %s, %d' % (s(sCnt), SPIN_MAX))
        p('s_cbranch_scc0 L_BAIL')
    if DG:
        p.label('L_GFAILA')
        p.forget()
        p('s_add_u32 %s, %s, 1' % (s(sNfail), s(sNfail)))
        p.label('L_GCHECKB')
        p.wait(vm=0)
        gcheck(GB, 'L_GFAILB')
        p('s_branch L_GOK')
        p.label('L_GFAILB')
        countfail(1)
        p('s_mov_b64 exec, vcc')
        gpoll(GB)
        p('s_mov_b64 exec, -1')
        p('s_branch L_GCHECKB')
    else:
        p.label('L_GFAIL')
        p.forget()
        countfail(1)
        p('s_mov_b64 exec, vcc')
        gpoll(G)
        p('s_mov_b64 exec, -1')
        p('s_branch L_GCHECK')
    if DP:
        p.label('L_PFAILA')
        p.forget()
        p('s_add_u32 %s, %s, 0x10000' % (s(sNfail), s(sNfail)))
        p.label('L_PCHECKB')
        p.wait(vm=0)
        p('s_nop 7')
        pcheck(PB, 'L_PFAILB')
        p('s_nop 3')
        p('s_branch L_POK')
        p.label('L_PFAILB')
        countfail(0x10000)
        p('s_mov_b64 exec, vcc')
        ppoll(PB)
        p('s_mov_b64 exec, -1')
        p('s_branch L_PCHECKB')
    else:
        p.label('L_PFAIL')
        p.forget()
        countfail(0x10000)
        p('s_mov_b64 exec, vcc')
        ppoll(PR)
        p('s_mov_b64 exec, -1')
        p('s_branch L_PCHECK')
```

```python
import sys
from common import *
import chain, ln1, qkv, p2
NAME = 'sequential_preLN__memory_aug_recurrent_mem_tr__glu_gated_bilinear__prompt_kernel'
HEADER = open('sequential_preLN__memory_aug_recurrent_mem_tr__glu_gated_bilinear__prompt.s.ref').read().split('; Override launch')[0]
DBG_REG, DBG_LNA, DBG_LNB, DBG_BAIL = 192, 196, 200, 208
sXCC, sTK = 92, 93
SPIN = 2000000

def wait_dbg(p, off, need, tag, cnt=94, vr=120):
    p('s_load_dwordx2 s[96:97], s[0:1], %d' % KA_DBG)
    p('v_mov_b32 v%d, %d' % (vr, off))
    p('s_mov_b32 s%d, 0' % cnt)
    p('s_waitcnt lgkmcnt(0)')
    p.label('L_WD' + tag)
    p('global_load_dword v%d, v%d, s[96:97] sc1' % (vr + 1, vr))
    p.wait(vm=0)
    p('v_readfirstlane_b32 s95, v%d' % (vr + 1))
    p('s_add_u32 s%d, s%d, 1' % (cnt, cnt))
    p('s_cmp_gt_u32 s%d, %d' % (cnt, SPIN))
    p('s_cbranch_scc1 L_GBAIL')
    p('s_cmp_ge_u32 s95, %d' % need)
    p('s_cbranch_scc1 L_WDOK' + tag)
    p('s_sleep 4')
    p('s_branch L_WD' + tag)
    p.label('L_WDOK' + tag)
    p.forget()

def add_dbg(p, off, tag, wait=True):
    if wait:
        p.wait(vm=0)
        p('s_barrier')
    p('s_load_dwordx2 s[96:97], s[0:1], %d' % KA_DBG)
    p('v_mov_b32 v120, %d' % off)
    p('v_mov_b32 v121, 1')
    p('v_or_b32 v122, s3, v0')
    p('s_waitcnt lgkmcnt(0)')
    p('v_cmp_eq_u32 vcc, 0, v122')
    p('s_and_saveexec_b64 s[98:99], vcc')
    p('s_cbranch_execz L_AD' + tag)
    p('global_atomic_add v120, v121, s[96:97]')
    p.label('L_AD' + tag)
    p('s_mov_b64 exec, s[98:99]')

def zero_p2_flags(p):
    p('s_lshl_b32 s20, s%d, 22' % p2.sX)
    p('s_add_u32 s20, s20, 0x%x' % (WS_P2 + P2_FL))
    p('s_lshl_b32 s21, s%d, 2' % p2.sC)
    p('s_add_u32 s20, s20, s21')
    p('v_lshlrev_b32 v120, 7, v0')
    p('v_mov_b32 v121, 0x%x' % OOB)
    p('v_cmp_gt_u32 vcc, 3, v0')
    p('v_cndmask_b32 v120, v121, v120, vcc')
    p('v_mov_b32 v121, 0')
    p('buffer_store_dword v121, v120, s[4:7], s20 offen')

RT = False
RTD = False
def rtd(p, word, cond_xcc, cond_tk=0):
    if not RTD: return
    lab = 'L_RTD%d' % word
    p.raw('    s_cmp_eq_u32 s%d, %d' % (sXCC, cond_xcc))
    p.raw('    s_cbranch_scc0 %s' % lab)
    p.raw('    s_cmp_eq_u32 s%d, %d' % (sTK, cond_tk))
    p.raw('    s_cbranch_scc0 %s' % lab)
    p.raw('    s_memrealtime s[84:85]')
    p.raw('    s_load_dwordx2 s[86:87], s[0:1], %d' % KA_DBG)
    p.raw('    s_waitcnt lgkmcnt(0)')
    p.raw('    v_mov_b32 v123, s84')
    p.raw('    v_mov_b32 v124, %d' % (4 * word))
    p.raw('    global_store_dword v124, v123, s[86:87]')
    p.raw('%s:' % lab)
def rts(p, k):
    if not RT: return
    p.raw('    s_memrealtime s[84:85]')
    p.raw('    s_waitcnt lgkmcnt(0)')
    p.raw('    s_lshl_b32 s83, s%d, 5' % sXCC)
    p.raw('    s_add_u32 s83, s83, s%d' % sTK)
    p.raw('    s_lshl_b32 s83, s83, 6')
    p.raw('    s_add_u32 s83, s83, 0x%x' % (WS_FLAG + 8192 + 4 * k))
    p.raw('    v_mov_b32 v123, s84')
    p.raw('    buffer_store_dword v123, off, s[4:7], s83')
def build(opt=(), stamps=False):
    global RT, RTD
    RT = 'rt' in opt
    RTD = 'rtdbg' in opt
    p2.rtd = rtd if 'steprt' not in opt else (lambda pp, w, x, t=0: rtd(pp, 15, x, t) if w == 10 else None)
    p2.rts = rts
    p2.WBL2 = 'wbl2' in opt
    p2.PST = 'pst' in opt
    p = Prog()
    p.raw(HEADER.rstrip('\n'))
    p.raw('; @launch grid=(256,1,1) block=(256,1,1) lds=163840')
    p.raw('.amdgcn_target "amdgcn-amd-amdhsa--gfx950"\n.text\n.globl %s\n.p2align 8\n.type %s,@function\n%s:' % (NAME, NAME, NAME))
    p('s_cmp_ge_u32 s2, 256')
    p('s_cbranch_scc1 L_EXIT')
    p('s_getreg_b32 s%d, hwreg(HW_REG_XCC_ID, 0, 4)' % sXCC)
    p('s_load_dwordx2 s[8:9], s[0:1], %d' % KA_DBG)
    p('s_and_b32 s%d, s%d, 7' % (sXCC, sXCC))
    p('s_add_u32 s10, s%d, 2' % sXCC)
    p('s_mul_i32 s11, s10, 43')
    p('s_lshr_b32 s11, s11, 7')
    p('s_mul_i32 s12, s11, 3')
    p('s_sub_u32 s10, s10, s12')
    p('s_lshl_b32 s10, s10, 2')
    p('s_lshl_b32 s11, s11, 6')
    p('s_add_u32 s10, s10, s11')
    p('s_cmp_eq_u32 s%d, 0' % sXCC)
    p('s_cselect_b32 s10, 0, s10')
    p('s_cmp_eq_u32 s%d, 7' % sXCC)
    p('s_cselect_b32 s10, 4, s10')
    p('v_mov_b32 v2, s10')
    p('v_mov_b32 v3, 1')
    p('s_waitcnt lgkmcnt(0)')
    p('v_cmp_eq_u32 vcc, 0, v0')
    p('s_and_saveexec_b64 s[10:11], vcc')
    p('s_cbranch_execz L_NOTICKET')
    p('global_atomic_add v4, v2, v3, s[8:9] sc0')
    p.wait(vm=0)
    p('v_mov_b32 v2, 0')
    p('ds_write_b32 v2, v4')
    p.wait(lgkm=0)
    p.label('L_NOTICKET')
    p('s_mov_b64 exec, s[10:11]')
    p('s_barrier')
    p('v_mov_b32 v2, 0')
    p('ds_read_b32 v4, v2')
    p.wait(lgkm=0)
    p('v_readfirstlane_b32 s%d, v4' % sTK)
    p('s_barrier')
    p('s_cmp_ge_u32 s%d, 32' % sTK)
    p('s_cbranch_scc1 L_EXIT')
    p('s_cmp_eq_u32 s%d, 0' % sXCC)
    p('s_cbranch_scc0 L_WORKER')
    p('s_mov_b32 s%d, s%d' % (chain.sH, sTK))
    chain.chain_setup(p)
    rts(p, 0)
    rtd(p, 2, 0)
    p('s_lshl_b32 s30, s%d, 7' % chain.sH)
    p('s_add_u32 s30, s30, 0x%x' % WS_FLAG)
    p('v_mov_b32 v120, 0')
    p('buffer_store_dword v120, off, s[4:7], s30 sc1')
    chain.chain_init_globals(p)
    add_dbg(p, DBG_REG, 'C')
    chain.chain_load_weights(p)
    rts(p, 1)
    rtd(p, 3, 0)
    chain.chain_init_mem0(p)
    wait_dbg(p, DBG_REG, 256, 'C')
    p('s_barrier')
    rts(p, 2)
    rtd(p, 4, 0)
    if RTD: p.raw('    s_memtime s[82:83]\n    s_waitcnt lgkmcnt(0)')
    chain.chain_loop(p, stamps=('light' if 'light' in opt else stamps), opt=tuple(opt) + ('kvflags',))
    p.label('L_DONE')
    p.forget()
    p.raw('    s_waitcnt lgkmcnt(0)')
    if 'pubW7' not in opt:
        p('s_add_u32 %s, %s, %d' % (s(chain.sKM), s(chain.sKM), 32 * 4096))
        p('s_add_u32 %s, %s, %d' % (s(chain.sVM), s(chain.sVM), 32 * 4096))
        p('buffer_store_dwordx4 %s, %s, s[4:7], %s offen sc1' % (v(chain.MF + 16, 4), v(chain.vL16), s(chain.sKM)))
        p('buffer_store_dwordx4 %s, %s, s[4:7], %s offen sc1' % (v(chain.MF + 20, 4), v(chain.vL16), s(chain.sVM)))
    p.wait(vm=0)
    p('s_barrier')
    p('v_mov_b32 %s, 64' % v(chain.vFlag))
    p('buffer_store_dword %s, %s, s[4:7], %s offen sc1' % (v(chain.vFlag), v(chain.vFlagOff), s(chain.sFlagOff)))
    if 'light' in opt:
        p('s_lshl_b32 s30, %s, 2' % s(chain.sH))
        p('s_add_u32 s30, s30, s3')
        p('s_lshl_b32 s30, s30, 6')
        p('s_add_u32 s30, s30, 0x%x' % (WS_FLAG + 4096))
        for k in range(15):
            p('v_mov_b32 v123, %s' % s(chain.sAcc + k))
            p('buffer_store_dword v123, off, s[4:7], s30 offset:%d' % (4 * k))
    rts(p, 3)
    rtd(p, 5, 0)
    if RTD and 'steprt' not in opt:
        p.raw('    s_memtime s[84:85]\n    s_load_dwordx2 s[86:87], s[0:1], %d\n    s_waitcnt lgkmcnt(0)' % KA_DBG)
        p.raw('    s_sub_u32 s84, s84, s82')
        p.raw('    s_cmp_eq_u32 s%d, 0\n    s_cbranch_scc0 L_RTDX' % sTK)
        p.raw('    v_mov_b32 v123, s84\n    v_mov_b32 v124, 48\n    global_store_dword v124, v123, s[86:87]')
        p.raw('    v_mov_b32 v123, s%d\n    s_lshl_b32 s84, s3, 2\n    s_add_u32 s84, s84, 52\n    v_mov_b32 v124, s84' % chain.sNfail)
        p.raw('    s_cmp_lt_u32 s3, 3\n    s_cbranch_scc0 L_RTDX\n    global_store_dword v124, v123, s[86:87]')
        p.raw('L_RTDX:')
    p.wait(vm=0)
    p('s_endpgm')
    p.label('L_BAIL')
    p('s_load_dwordx2 s[96:97], s[0:1], %d' % KA_DBG)
    p('v_mov_b32 v120, 0x100')
    p('v_or_b32 v120, %s, v120' % s(chain.sStep))
    p('v_mov_b32 v121, %d' % DBG_BAIL)
    p('s_waitcnt lgkmcnt(0)')
    p('global_store_dword v121, v120, s[96:97]')
    p.wait(vm=0)
    p('s_endpgm')
    p.label('L_WORKER')
    p.forget()
    ws_srd(p)
    p('s_sub_u32 s%d, s%d, 1' % (80, sXCC))
    p('s_mov_b32 s81, s%d' % sTK)
    p('s_mov_b32 s%d, s80' % p2.sX)
    p('s_mov_b32 s%d, s81' % p2.sC)
    rts(p, 0)
    zero_p2_flags(p)
    p('s_cmp_eq_u32 s80, 6')
    p('s_cbranch_scc1 L_LN')
    p('s_lshl_b32 s%d, s80, 3' % qkv.sCG)
    p('s_lshr_b32 s20, s81, 2')
    p('s_add_u32 s%d, s%d, s20' % (qkv.sCG, qkv.sCG))
    p('s_and_b32 s%d, s81, 3' % qkv.sTG)
    p('s_lshl_b32 s20, s%d, 2' % qkv.sCG)
    p('s_add_u32 s20, s20, s%d' % qkv.sTG)
    p('s_lshl_b32 s20, s20, 7')
    p('s_add_u32 s20, s20, 0x%x' % WS_QFLAG)
    p('v_mov_b32 v120, 0')
    p('buffer_store_dword v120, off, s[4:7], s20 sc1')
    add_dbg(p, DBG_REG, 'Q')
    qkv.qkv_load_weights(p)
    rts(p, 1)
    wait_dbg(p, DBG_REG, 256, 'Q')
    wait_dbg(p, DBG_LNA, 32, 'QL')
    rts(p, 2)
    rtd(p, 6, 1)
    import main_hooks
    main_hooks.wait_dbg_fn[0] = lambda pp, tag: wait_dbg(pp, DBG_LNB, 32, 'QLB' + tag, vr=6)
    qkv.qkv_main(p, flags=True, wait_b=True)
    rts(p, 3)
    rtd(p, 7, 1)
    p('s_branch L_P2')
    p.label('L_LN')
    p.forget()
    add_dbg(p, DBG_REG, 'L')
    make_srd(p, 8, KA_X, 2048 * 1024)
    p('s_mov_b32 s12, s81')
    ln1.ln1_load(p, 12, 0)
    p('s_add_u32 s13, s81, 32')
    ln1.ln1_load(p, 13, 1)
    ln1.ln1_compute(p, 12, 0, nvm_after=8)
    ln1.ln1_compute(p, 13, 1, nvm_after=8)
    p.wait(vm=8)
    p('s_barrier')
    add_dbg(p, DBG_LNA, 'LN0', wait=False)
    add_dbg(p, DBG_LNB, 'LN1')
    rts(p, 3)
    wait_dbg(p, DBG_REG, 256, 'L')
    p.label('L_P2')
    p.forget()
    p('s_barrier')
    p('s_mov_b32 s%d, s80' % p2.sX)
    p('s_mov_b32 s%d, s81' % p2.sC)
    p2.p2_init(p)
    p2.p2_load_weights(p)
    p2.p2_setup(p)
    rts(p, 4)
    rtd(p, 8, 1)
    p2.p2_segment_loop(p, xflags=True, rt=('rt' in opt))
    p.label('L_GBAIL')
    p.label('L_EXIT')
    p('s_endpgm')
    p.raw('''.section .rodata,"a"
.p2align 6
.amdhsa_kernel %s
  .amdhsa_next_free_vgpr 512
  .amdhsa_next_free_sgpr 102
  .amdhsa_accum_offset 256
  .amdhsa_group_segment_fixed_size 0
  .amdhsa_kernarg_size 112
  .amdhsa_user_sgpr_count 2
  .amdhsa_user_sgpr_kernarg_segment_ptr 1
  .amdhsa_system_sgpr_workgroup_id_x 1
.end_amdhsa_kernel''' % NAME)
    return p
def rt_out(p, k): pass
if __name__ == '__main__':
    out = sys.argv[1]
    p = build(opt=tuple(sys.argv[2:]))
    open(out, 'w').write(p.text())
    print('insts', p.count, 'nop states', p.nops, 'bytes', len(p.text()))
```

```python
from asmlib import *
from layout import *

VX_L = 0
KX_L = 8192
M_IMG, M_RS = 16384, 1088
Q_IMG = 25088
K_IMG = 27136
W_L = 32768
CHAIN_LDS = W_L + 4 * 32768

vLane = 0
vL16, vIdxQ, vIdxO, vMrd, vWrd0, vWrd1, vQwr, vKwr, vQtr, vKtr, vVX, vPst, vMst, vMld, vMwr, vTouch, vPld, vNeg1, vDummy = range(1, 20)
vFlag = vDummy
vDummy2 = 20
vFlagOff = 21
vT0, vT1, vT2 = 22, 23, 20
MF = 24
LAND = 56
AQK = 104
AV = 120
WQK = 128

sW = 3
SRD_WS = 4
SRD_T = 8
sH, sStep, sTag = 12, 13, 15
sPst = 16
sPld = 20
sMrd, sMwr, sMpo = 21, 22, 23
sKX, sVX, sKXn = 24, 25, 26
sKM, sVM = 27, 28
sCnt = 29
sTmp, sTmp2, sTmp3 = 30, 31, 32
sScale = 33
sM0kx, sM0vx = 34, 35
sFlagOff = 36
sW10 = 37
sScale2 = 76
sNfail = 78
sExK = 92
sKVoff, sKVneed, sKVbase = 88, 89, 90
vKVf = 0
sTagN = 14
sMwrOld = 18
sMaskA = 8
sFlagVal = 79
sDBG = 38
sStamp = 40
sAcc = 44
SPIN_MAX = 200000

LDSCH = [0, 1, 6, 7]

def smf(p, acc, A, B, idx):
    p('v_smfmac_f32_16x16x64_bf16 %s, %s, %s, %s' % (v(acc, 4), v(A, 4), B, v(idx)))

def w_lds_addr(u, half):
    slot, T = u >> 2, u & 3
    off = slot * 32768 + T * 2048 + half * 1024
    return (vWrd0, off) if slot < 2 else (vWrd1, off - 65536)

def read_w(p, u, land, half):
    r, off = w_lds_addr(u, half)
    p('ds_read_b128 %s, %s offset:%d' % (v(LAND + land * 8 + half * 4, 4), v(r), off))

RAW = [60, 62, 64, 66, 68, 70, 72, 74, 80, 82, 84, 86, 94, 98, 100]
def lstamp(p, k, enable):
    if enable == 'light': p.raw('    s_memtime s[%d:%d]' % (RAW[k], RAW[k] + 1))
    if enable == 'real': p.raw('    s_memrealtime s[%d:%d]' % (RAW[k], RAW[k] + 1))
def lstamp_save(p, enable):
    if enable not in ('light', 'real'): return
    p.raw('    s_cmp_eq_u32 %s, 31' % s(sStep))
    for k in range(15): p.raw('    s_cselect_b32 %s, s%d, %s' % (s(sAcc + k), RAW[k], s(sAcc + k)))
def stamp(p, k, enable):
    if enable in ('light', 'real'): return
    if not enable or (enable == 'total' and k != 4): return
    if enable == 'abs':
        p.raw('    s_memtime %s' % s(sStamp + 2, 2))
        p.raw('    s_waitcnt lgkmcnt(0)')
        p.lgkm = []
        p.raw('    s_cmp_eq_u32 %s, 30' % s(sStep))
        p.raw('    s_cselect_b32 %s, %s, %s' % (s(sAcc + k), s(sStamp + 2), s(sAcc + k)))
        return
    if k > 4: return
    p.raw('    s_memtime %s' % s(sStamp + 2, 2))
    p.raw('    s_waitcnt lgkmcnt(0)')
    p.lgkm = []
    p.raw('    s_sub_u32 %s, %s, %s' % (s(sTmp3), s(sStamp + 2), s(sStamp)))
    p.raw('    s_add_u32 %s, %s, %s' % (s(sAcc + k), s(sAcc + k), s(sTmp3)))
    p.raw('    s_mov_b32 %s, %s' % (s(sStamp), s(sStamp + 2)))


def optint(opt, name, default):
    return int(opt[opt.index(name) + 1]) if name in opt else default
def delay(p, cycles):
    n = cycles // 4
    while n > 0:
        k = min(n, 16); p('s_nop %d' % (k - 1)); n -= k

def chain_setup(p):
    p('s_load_dwordx2 s[4:5], s[0:1], %d' % KA_WS)
    p('s_load_dwordx2 %s, s[0:1], %d' % (s(sDBG, 2), KA_DBG))
    p('v_lshrrev_b32 v1, 6, v0')
    p('v_readfirstlane_b32 %s, v1' % s(sW))
    p('v_and_b32 v0, 63, v0')
    p('s_waitcnt lgkmcnt(0)')
    p('s_mov_b32 s6, 0x%x' % WS_SIZE)
    p('s_mov_b32 s7, 0x20000')
    L = v(vLane)
    t0, t1, t2 = v(vT0), v(vT1), v(vT2)
    p('v_lshlrev_b32 %s, 4, %s' % (v(vL16), L))
    p('v_bfe_u32 %s, %s, 1, 1' % (t0, L))
    p('v_mov_b32 %s, 0x4444' % t1)
    p('v_mov_b32 %s, 0xeeee' % t2)
    p('v_cmp_eq_u32 vcc, 1, %s' % t0)
    p('v_cndmask_b32 %s, %s, %s, vcc' % (v(vIdxQ), t1, t2))
    p('v_bfe_u32 %s, %s, 3, 1' % (t0, L))
    p('v_cmp_eq_u32 vcc, 1, %s' % t0)
    p('v_cndmask_b32 %s, %s, %s, vcc' % (v(vIdxO), t1, t2))
    p('v_bfe_u32 %s, %s, 2, 2' % (t0, L))
    p('v_lshlrev_b32 %s, 1, %s' % (t0, t0))
    p('v_and_b32 %s, 1, %s' % (t1, L))
    p('v_add_u32 %s, %s, %s' % (t0, t0, t1))
    p('v_mul_u32_u24 %s, %d, %s' % (t0, M_RS, t0))
    p('v_lshrrev_b32 %s, 4, %s' % (t1, L))
    p('v_lshlrev_b32 %s, 5, %s' % (t1, t1))
    p('v_add_u32 %s, %s, %s' % (t0, t0, t1))
    p('v_bfe_u32 %s, %s, 1, 1' % (t1, L))
    p('v_lshlrev_b32 %s, 4, %s' % (t1, t1))
    p('v_add_u32 %s, %s, %s' % (t0, t0, t1))
    p('v_add_u32 %s, %d, %s' % (v(vMrd), M_IMG, t0))
    p('s_lshl_b32 %s, %s, 13' % (s(sTmp), s(sW)))
    p('s_add_u32 %s, %s, %d' % (s(sTmp), s(sTmp), W_L))
    p('v_add_u32 %s, %s, %s' % (v(vWrd0), s(sTmp), v(vL16)))
    p('v_add_u32 %s, 0x10000, %s' % (v(vWrd1), v(vWrd0)))
    p('v_and_b32 %s, 15, %s' % (t0, L))
    p('s_lshl_b32 %s, %s, 5' % (s(sTmp), s(sW)))
    p('v_add_u32 %s, %s, %s' % (t0, s(sTmp), t0))
    p('v_lshrrev_b32 %s, 4, %s' % (t1, L))
    p('v_lshlrev_b32 %s, 4, %s' % (t2, t0))
    p('v_lshl_add_u32 %s, %s, 2, %s' % (t2, t1, t2))
    p('v_add_u32 %s, %d, %s' % (v(vQwr), Q_IMG, t2))
    p('v_lshlrev_b32 %s, 5, %s' % (t2, t0))
    p('v_lshl_add_u32 %s, %s, 3, %s' % (t2, t1, t2))
    p('v_add_u32 %s, %d, %s' % (v(vKwr), K_IMG, t2))
    p('v_lshrrev_b32 %s, 2, %s' % (t0, L))
    p('v_and_b32 %s, 1, %s' % (t1, L))
    p('v_lshlrev_b32 %s, 4, %s' % (t2, t0))
    p('v_lshl_add_u32 %s, %s, 3, %s' % (t2, t1, t2))
    p('v_add_u32 %s, %d, %s' % (v(vQtr), Q_IMG, t2))
    p('v_and_b32 %s, 3, %s' % (t1, L))
    p('v_lshlrev_b32 %s, 5, %s' % (t2, t0))
    p('v_lshl_add_u32 %s, %s, 3, %s' % (t2, t1, t2))
    p('v_add_u32 %s, %d, %s' % (v(vKtr), K_IMG, t2))
    p('s_lshl_b32 %s, %s, 11' % (s(sTmp), s(sW)))
    p('s_add_u32 %s, %s, %d' % (s(sM0vx), s(sTmp), VX_L))
    p('s_add_u32 %s, %s, %d' % (s(sM0kx), s(sTmp), KX_L))
    p('v_add_u32 %s, %s, %s' % (v(vVX), s(sM0vx), v(vL16)))
    p('v_lshrrev_b32 %s, 5, %s' % (t0, L))
    p('v_lshlrev_b32 %s, 2, %s' % (t0, t0))
    p('v_bfe_u32 %s, %s, 2, 2' % (t1, L))
    p('v_add_u32 %s, %s, %s' % (t0, t0, t1))
    p('s_lshl_b32 %s, %s, 3' % (s(sTmp), s(sW)))
    p('v_add_u32 %s, %s, %s' % (t0, s(sTmp), t0))
    p('v_lshlrev_b32 %s, 13, %s' % (t0, t0))
    p('v_bfe_u32 %s, %s, 4, 1' % (t1, L))
    p('v_lshlrev_b32 %s, 2, %s' % (t1, t1))
    p('v_and_b32 %s, 3, %s' % (t2, L))
    p('v_add_u32 %s, %s, %s' % (t1, t1, t2))
    p('v_lshlrev_b32 %s, 4, %s' % (t1, t1))
    p('s_lshl_b32 %s, %s, 7' % (s(sTmp), s(sH)))
    p('v_add3_u32 %s, %s, %s, %s' % (v(vPst), t0, t1, s(sTmp)))
    p('v_bfe_u32 %s, %s, 2, 1' % (t0, L))
    p('s_and_b32 %s, %s, 2' % (s(sTmp), s(sW)))
    p('v_add_u32 %s, %s, %s' % (t0, s(sTmp), t0))
    p('v_lshlrev_b32 %s, 5, %s' % (t0, t0))
    p('v_add_u32 %s, %s, %s' % (t0, s(sH), t0))
    p('v_lshlrev_b32 %s, 6, %s' % (t0, t0))
    p('v_and_b32 %s, 3, %s' % (t1, L))
    p('v_lshlrev_b32 %s, 1, %s' % (t1, t1))
    p('s_and_b32 %s, %s, 1' % (s(sTmp), s(sW)))
    p('v_add_u32 %s, %s, %s' % (t1, s(sTmp), t1))
    p('v_lshl_add_u32 %s, %s, 3, %s' % (t0, t1, t0))
    p('v_bfe_u32 %s, %s, 4, 1' % (t1, L))
    p('v_lshl_add_u32 %s, %s, 2, %s' % (t0, t1, t0))
    p('v_and_b32 %s, 0x28, %s' % (t1, L))
    p('v_mov_b32 %s, 0x%x' % (t2, OOB))
    p('v_cmp_eq_u32 vcc, 0, %s' % t1)
    p('v_cndmask_b32 %s, %s, %s, vcc' % (v(vMst), t2, t0))
    p('v_lshrrev_b32 %s, 2, %s' % (t0, L))
    p('v_lshlrev_b32 %s, 7, %s' % (t0, t0))
    p('v_and_b32 %s, 3, %s' % (t1, L))
    p('v_lshl_add_u32 %s, %s, 4, %s' % (t0, t1, t0))
    p('s_and_b32 %s, %s, 1' % (s(sTmp), s(sW)))
    p('s_lshl_b32 %s, %s, 6' % (s(sTmp), s(sTmp)))
    p('v_add_u32 %s, %s, %s' % (v(vPld), s(sTmp), t0))
    p('s_lshl_b32 %s, %s, 11' % (s(sTmp), s(sW)))
    p('v_add_u32 %s, %s, %s' % (v(vMld), s(sTmp), v(vL16)))
    p('v_and_b32 %s, 3, %s' % (t0, L))
    p('v_mul_u32_u24 %s, %d, %s' % (t0, M_RS, t0))
    p('v_lshrrev_b32 %s, 2, %s' % (t1, L))
    p('v_lshl_add_u32 %s, %s, 3, %s' % (t0, t1, t0))
    p('s_lshl_b32 %s, %s, 8' % (s(sTmp), s(sW)))
    p('s_add_u32 %s, %s, %d' % (s(sTmp), s(sTmp), M_IMG))
    p('v_add_u32 %s, %s, %s' % (v(vMwr), s(sTmp), t0))
    p('v_and_b32 %s, 31, %s' % (t0, L))
    p('v_lshlrev_b32 %s, 6, %s' % (t0, t0))
    p('s_lshl_b32 %s, %s, 11' % (s(sTmp), s(sW)))
    p('v_add_u32 %s, %s, %s' % (t0, s(sTmp), t0))
    p('v_lshrrev_b32 %s, 5, %s' % (t1, L))
    p('v_mul_u32_u24 %s, 0x100, %s' % (t1, t1))
    p('v_lshlrev_b32 %s, 16, %s' % (t1, t1))
    p('v_add_u32 %s, %s, %s' % (v(vTouch), t0, t1))
    p('v_mov_b32 %s, -1' % v(vNeg1))
    p('s_mov_b32 %s, 0x3e0293ee' % s(sScale))
    p('s_mov_b32 %s, 0x3e0293ee' % s(sScale2))
    p('s_mov_b32 %s, 0x3e0293ee' % s(sScale2 + 1))
    p('s_mov_b32 %s, 0' % s(sNfail))

def chain_load_weights(p):
    vD = [24, 25, 26, 27]
    vE = [28, 29, 30, 31]
    vA0, vA1, vAo = 32, 33, 34
    L = v(vLane); t0, t1, t2 = v(vT0), v(vT1), v(vT2)
    p('s_load_dwordx4 s[48:51], s[0:1], %d' % KA_WQ)
    p('s_load_dwordx4 s[52:55], s[0:1], %d' % KA_WV)
    for q in range(4):
        p('v_bfe_u32 %s, %s, 4, 1' % (t0, L))
        p('v_lshlrev_b32 %s, 1, %s' % (t0, t0))
        p('v_and_b32 %s, 15, %s' % (t1, L))
        p('v_xor_b32 %s, %s, %s' % (t0, t0, t1))
        p('v_xor_b32 %s, %d, %s' % (t0, 4 * (q & 1) + 8 * (q >> 1), t0))
        p('v_lshlrev_b32 %s, 4, %s' % (t0, t0))
        p('v_lshrrev_b32 %s, 4, %s' % (t1, L))
        p('v_lshl_add_u32 %s, %s, 13, %s' % (v(vD[q]), t1, t0))
    p('s_lshr_b32 %s, %s, 1' % (s(sTmp), s(sW)))
    p('s_lshl_b32 %s, %s, 3' % (s(sTmp), s(sTmp)))
    for q in range(2):
        p('v_xor_b32 %s, %d, %s' % (t0, 4 * q, L))
        p('v_xor_b32 %s, %s, %s' % (t0, s(sTmp), t0))
        p('v_lshlrev_b32 %s, 4, %s' % (v(vE[q]), t0))
    for t, reg in ((0, vA0), (1, vA1)):
        p('v_bfe_u32 %s, %s, 5, 1' % (t0, L))
        p('v_lshlrev_b32 %s, 4, %s' % (t0, t0))
        p('v_bfe_u32 %s, %s, 4, 1' % (t1, L))
        p('v_lshl_add_u32 %s, %s, 2, %s' % (t0, t1, t0))
        p('v_bfe_u32 %s, %s, 3, 1' % (t1, L))
        p('v_lshl_add_u32 %s, %s, 3, %s' % (t0, t1, t0))
        p('v_bfe_u32 %s, %s, 2, 1' % (t1, L))
        p('v_add_u32 %s, %s, %s' % (t0, t0, t1))
        p('v_lshlrev_b32 %s, 8, %s' % (v(reg), t0))
        p('v_bfe_u32 %s, %s, 2, 1' % (t0, L))
        p('v_lshlrev_b32 %s, 1, %s' % (t0, t0))
        p('v_bfe_u32 %s, %s, 4, 1' % (t1, L))
        p('v_lshl_add_u32 %s, %s, 2, %s' % (t0, t1, t0))
        p('v_bfe_u32 %s, %s, 3, 1' % (t1, L))
        p('v_lshl_add_u32 %s, %s, 3, %s' % (t0, t1, t0))
        p('v_bfe_u32 %s, %s, 1, 1' % (t1, L))
        p('s_lshl_b32 %s, %s, 2' % (s(sTmp), s(sW)))
        p('s_add_u32 %s, %s, %d' % (s(sTmp), s(sTmp), 2 * t))
        p('v_add_u32 %s, %s, %s' % (t1, s(sTmp), t1))
        p('v_xor_b32 %s, %s, %s' % (t0, t0, t1))
        p('v_lshlrev_b32 %s, 4, %s' % (t0, t0))
        p('v_and_b32 %s, 1, %s' % (t1, L))
        p('v_lshl_add_u32 %s, %s, 3, %s' % (t0, t1, t0))
        p('v_add_u32 %s, %s, %s' % (v(reg), v(reg), t0))
    p('v_bfe_u32 %s, %s, 4, 1' % (t0, L))
    p('v_lshlrev_b32 %s, 4, %s' % (t0, t0))
    p('v_bfe_u32 %s, %s, 5, 1' % (t1, L))
    p('v_lshl_add_u32 %s, %s, 2, %s' % (t0, t1, t0))
    p('v_bfe_u32 %s, %s, 2, 1' % (t1, L))
    p('v_add_u32 %s, %s, %s' % (t0, t0, t1))
    p('v_lshlrev_b32 %s, 10, %s' % (v(vAo), t0))
    p('v_bfe_u32 %s, %s, 2, 1' % (t0, L))
    p('v_lshlrev_b32 %s, 2, %s' % (t0, t0))
    p('v_bfe_u32 %s, %s, 4, 1' % (t1, L))
    p('v_lshl_add_u32 %s, %s, 3, %s' % (t0, t1, t0))
    p('v_bfe_u32 %s, %s, 3, 1' % (t1, L))
    p('v_lshlrev_b32 %s, 1, %s' % (t1, t1))
    p('v_bfe_u32 %s, %s, 1, 1' % (t2, L))
    p('v_add_u32 %s, %s, %s' % (t1, t1, t2))
    p('s_lshl_b32 %s, %s, 2' % (s(sTmp), s(sW)))
    p('v_add_u32 %s, %s, %s' % (t1, s(sTmp), t1))
    p('v_xor_b32 %s, %s, %s' % (t0, t0, t1))
    p('v_lshlrev_b32 %s, 4, %s' % (t0, t0))
    p('v_and_b32 %s, 1, %s' % (t1, L))
    p('v_lshl_add_u32 %s, %s, 3, %s' % (t0, t1, t0))
    p('v_add_u32 %s, %s, %s' % (v(vAo), v(vAo), t0))
    p('s_waitcnt lgkmcnt(0)')
    for k, (lo, base) in enumerate(((48, 56), (50, 60), (52, 64), (54, 68))):
        p('s_mov_b32 s%d, s%d' % (base, lo))
        p('s_mov_b32 s%d, s%d' % (base + 1, lo + 1))
        p('s_mov_b32 s%d, 0x400000' % (base + 2))
        p('s_mov_b32 s%d, 0x20000' % (base + 3))
    p('s_cmp_lt_u32 %s, 2' % s(sW))
    p('s_cselect_b32 s72, s56, s60')
    p('s_cselect_b32 s73, s57, s61')
    p('s_mov_b32 s74, 0x400000')
    p('s_mov_b32 s75, 0x20000')
    slot_base = lambda n: [W_L + 3 * 32768, 0, W_L, W_L + 32768, W_L + 2 * 32768][n % 5]
    QKCH = [2, 3, 4, 5] + LDSCH
    def issue(n):
        base = slot_base(n)
        sOff, sM = sTmp, sTmp2
        if n < 4:
            p('s_lshl_b32 %s, %s, 5' % (s(sOff), s(sW)))
            p('s_add_u32 %s, %s, %d' % (s(sOff), s(sOff), 128 * n))
            p('s_lshl_b32 %s, %s, 13' % (s(sOff), s(sOff)))
            p('s_lshl_b32 %s, %s, 8' % (s(sTmp3), s(sH)))
            p('s_add_u32 %s, %s, %s' % (s(sOff), s(sOff), s(sTmp3)))
            p('s_lshl_b32 %s, %s, 13' % (s(sM), s(sW)))
            p('s_add_u32 %s, %s, %d' % (s(sM), s(sM), base))
            for k in range(8):
                p('s_mov_b32 m0, %s' % s(sM))
                p('s_add_u32 %s, %s, 1024' % (s(sM), s(sM)))
                p('buffer_load_dwordx4 %s, s[64:67], %s offen lds' % (v(vD[k & 3]), s(sOff)))
                p('s_add_u32 %s, %s, %d' % (s(sOff), s(sOff), 4 * 8192))
        elif n < 8:
            ec = n - 4
            p('s_lshl_b32 %s, %s, 7' % (s(sOff), s(sH)))
            p('s_lshl_b32 %s, %s, 3' % (s(sTmp3), s(sW)))
            p('s_add_u32 %s, %s, %s' % (s(sOff), s(sOff), s(sTmp3)))
            p('s_add_u32 %s, %s, %d' % (s(sOff), s(sOff), 32 * ec))
            p('s_lshl_b32 %s, %s, 10' % (s(sOff), s(sOff)))
            p('s_lshl_b32 %s, %s, 13' % (s(sM), s(sW)))
            p('s_add_u32 %s, %s, %d' % (s(sM), s(sM), base))
            for k in range(8):
                p('s_mov_b32 m0, %s' % s(sM))
                p('s_add_u32 %s, %s, 1024' % (s(sM), s(sM)))
                p('buffer_load_dwordx4 %s, s[68:71], %s offen lds' % (v(vE[k & 1]), s(sOff)))
                p('s_add_u32 %s, %s, 1024' % (s(sOff), s(sOff)))
        else:
            ch = QKCH[n - 8]
            p('s_and_b32 %s, %s, 1' % (s(sOff), s(sW)))
            p('s_lshl_b32 %s, %s, 5' % (s(sOff), s(sOff)))
            p('s_add_u32 %s, %s, %d' % (s(sOff), s(sOff), 64 * ch))
            p('s_lshl_b32 %s, %s, 13' % (s(sOff), s(sOff)))
            p('s_lshl_b32 %s, %s, 8' % (s(sTmp3), s(sH)))
            p('s_add_u32 %s, %s, %s' % (s(sOff), s(sOff), s(sTmp3)))
            p('s_lshl_b32 %s, %s, 13' % (s(sM), s(sW)))
            p('s_add_u32 %s, %s, %d' % (s(sM), s(sM), base))
            for k in range(8):
                p('s_mov_b32 m0, %s' % s(sM))
                p('s_add_u32 %s, %s, 1024' % (s(sM), s(sM)))
                p('buffer_load_dwordx4 %s, s[72:75], %s offen lds' % (v(vD[k & 3]), s(sOff)))
                p('s_add_u32 %s, %s, %d' % (s(sOff), s(sOff), 4 * 8192))
    def consume(n):
        base = slot_base(n)
        va0, va1, vao = 36, 37, 38
        if n < 4:
            p('v_add_u32 %s, %d, %s' % (v(va0), base, v(vA0)))
            p('v_add_u32 %s, %d, %s' % (v(va1), base, v(vA1)))
            for cc in range(2):
                c = 2 * n + cc
                for t in range(2):
                    for r in (0, 2, 4, 6):
                        off = (cc * 64 + 32 * (r >> 2) + 2 * ((r >> 1) & 1)) * 256
                        p('ds_read_b64_tr_b16 %s, %s offset:%d' % (a((c * 2 + t) * 8 + r, 2), v(va0 if t == 0 else va1), off))
        elif n < 8:
            ec = n - 4
            p('v_add_u32 %s, %d, %s' % (v(vao), base, v(vAo)))
            for wv in range(4):
                if wv < 3:
                    p('s_cmp_lg_u32 %s, %d' % (s(sW), wv))
                    p('s_cbranch_scc1 L_WO%d_%d' % (ec, wv + 1))
                for pp in range(4):
                    for r in (0, 2, 4, 6):
                        off = (8 * (r >> 2) + 2 * ((r >> 1) & 1)) * 1024 + pp * 256
                        p('ds_read_b64_tr_b16 %s, %s offset:%d' % (a(128 + (pp * 4 + (ec ^ wv)) * 8 + r, 2), v(vao), off))
                if wv < 3:
                    p('s_branch L_WO%d_E' % ec)
                    p.label('L_WO%d_%d' % (ec, wv + 1))
            p.label('L_WO%d_E' % ec)
        else:
            p('v_add_u32 %s, %d, %s' % (v(va0), base, v(vA0)))
            p('v_add_u32 %s, %d, %s' % (v(va1), base, v(vA1)))
            j = n - 8
            for T in range(4):
                mat, t = T >> 1, T & 1
                for r in (0, 2, 4, 6):
                    off = (mat * 64 + 32 * (r >> 2) + 2 * ((r >> 1) & 1)) * 256
                    dst = WQK + (j * 4 + T) * 8 + r if j < 4 else LAND + T * 8 + r
                    p('ds_read_b64_tr_b16 %s, %s offset:%d' % (v(dst, 2), v(va0 if t == 0 else va1), off))
    for n in range(5): issue(n)
    for n in range(16):
        inflight = min(16, n + 5) - n - 1
        p.wait(vm=8 * inflight)
        p('s_barrier')
        consume(n)
        p.wait(lgkm=0)
        p('s_barrier')
        if n >= 12:
            slot = n - 12
            r = vWrd0 if slot < 2 else vWrd1
            for T in range(4):
                for half in range(2):
                    off = slot * 32768 + T * 2048 + half * 1024 - (0 if slot < 2 else 65536)
                    p('ds_write_b128 %s, %s offset:%d' % (v(r), v(LAND + T * 8 + half * 4, 4), off))
        if n + 5 < 16: issue(n + 5)
    p.wait(lgkm=0)


def chain_init_globals(p):
    L = v(vLane); t0, t1, t2 = v(vT0), v(vT1), v(vT2)
    for r in range(4): p('v_mov_b32 %s, 0' % v(MF + r))
    p('s_lshl_b32 %s, %s, 13' % (s(sTmp), s(sH)))
    p('s_lshl_b32 %s, %s, 11' % (s(sTmp2), s(sW)))
    p('s_add_u32 %s, %s, %s' % (s(sTmp), s(sTmp), s(sTmp2)))
    p('s_add_u32 %s, %s, 0x%x' % (s(sTmp), s(sTmp), WS_PART))
    p('s_add_u32 %s, %s, 0x40000' % (s(sTmp2), s(sTmp)))
    for k in range(2):
        p('buffer_store_dwordx4 %s, %s, s[4:7], %s offen offset:%d' % (v(MF, 4), v(vL16), s(sTmp), k * 1024))
        p('buffer_store_dwordx4 %s, %s, s[4:7], %s offen offset:%d' % (v(MF, 4), v(vL16), s(sTmp2), k * 1024))
    for slot in range(3):
        p('s_mov_b32 %s, 0x%x' % (s(sTmp), WS_M + slot * 8192))
        p('buffer_store_dword %s, %s, s[4:7], %s offen' % (v(vNeg1), v(vMst), s(sTmp)))

def chain_init_mem0(p):
    L = v(vLane); t0, t1, t2 = v(vT0), v(vT1), v(vT2)
    p('s_load_dwordx2 s[48:49], s[0:1], %d' % KA_MEM0)
    p('v_lshrrev_b32 %s, 3, %s' % (t0, L))
    p('v_and_b32 %s, 7, %s' % (t1, L))
    p('v_lshlrev_b32 %s, 4, %s' % (t1, t1))
    p('s_lshl_b32 %s, %s, 8' % (s(sTmp), s(sW)))
    p('v_add_u32 %s, %s, %s' % (t1, s(sTmp), t1))
    p('v_lshl_add_u32 %s, %s, 10, %s' % (t2, t0, t1))
    p('v_mul_u32_u24 %s, %d, %s' % (t0, M_RS, t0))
    p('v_add_u32 %s, %s, %s' % (t0, t0, t1))
    p('v_add_u32 %s, %d, %s' % (t0, M_IMG, t0))
    p('s_waitcnt lgkmcnt(0)')
    p('s_mov_b32 s50, 8192')
    p('s_mov_b32 s51, 0x20000')
    p('buffer_load_dwordx4 %s, %s, s[48:51], 0 offen' % (v(MF + 4, 4), t2))
    p('buffer_load_dwordx4 %s, %s, s[48:51], 0 offen offset:128' % (v(MF + 8, 4), t2))
    p('ds_write_b128 %s, %s' % (t0, v(MF + 4, 4)))
    p('ds_write_b128 %s, %s offset:128' % (t0, v(MF + 8, 4)))
    p.wait(vm=0, lgkm=0)

def chain_init_comm(p):
    chain_init_globals(p)
    chain_init_mem0(p)

def chain_loop(p, nsteps=64, stamps=False, opt=()):
    L = v(vLane); t0, t1, t2 = v(vT0), v(vT1), v(vT2)
    SC = '' if 'nosc1' in opt else ' sc1'
    p('s_mov_b32 %s, 0' % s(sStep))
    p('s_mov_b32 %s, 0' % s(sFlagVal))
    p('s_mov_b32 %s, 1' % s(sTag))
    for P in range(2):
        p('s_mov_b32 %s, 0x%x' % (s(sPst + P), WS_PART + P * 4096))
    p('s_lshl_b32 %s, %s, 13' % (s(sPld), s(sH)))
    p('s_lshr_b32 %s, %s, 1' % (s(sTmp), s(sW)))
    p('s_lshl_b32 %s, %s, 12' % (s(sTmp), s(sTmp)))
    p('s_add_u32 %s, %s, %s' % (s(sPld), s(sPld), s(sTmp)))
    p('s_add_u32 %s, %s, 0x%x' % (s(sPld), s(sPld), WS_PART))
    p('s_mov_b32 %s, 0x%x' % (s(sMrd), WS_M))
    p('s_mov_b32 %s, 0x%x' % (s(sMwr), WS_M + 8192))
    p('s_mov_b32 %s, 0x%x' % (s(sMpo), WS_M + 16384))
    p('s_lshl_b32 %s, %s, 13' % (s(sTmp), s(sH)))
    p('s_lshl_b32 %s, %s, 11' % (s(sTmp2), s(sW)))
    p('s_add_u32 %s, %s, %s' % (s(sKX), s(sTmp), s(sTmp2)))
    p('s_add_u32 %s, %s, 0x%x' % (s(sVX), s(sKX), WS_VX))
    p('s_add_u32 %s, %s, 0x%x' % (s(sKXn), s(sTmp), 32 * 8192))
    p('s_lshl_b32 %s, %s, 12' % (s(sTmp), s(sH)))
    p('s_lshl_b32 %s, %s, 10' % (s(sTmp2), s(sW)))
    p('s_add_u32 %s, %s, %s' % (s(sTmp), s(sTmp), s(sTmp2)))
    LAG = 0 if 'pubW7' in opt else 32 * 4096
    p('s_add_u32 %s, %s, 0x%x' % (s(sKM), s(sTmp), WS_KM - LAG))
    p('s_add_u32 %s, %s, 0x%x' % (s(sVM), s(sTmp), WS_VM - LAG))
    p('s_lshl_b32 %s, %s, 7' % (s(sTmp), s(sH)))
    p('s_add_u32 %s, %s, 0x%x' % (s(sFlagOff), s(sTmp), WS_FLAG))
    p('s_lshl_b32 %s, %s, 10' % (s(sW10), s(sW)))
    p('v_or_b32 %s, %s, %s' % (t0, s(sW), L))
    p('v_mov_b32 %s, 0x%x' % (t1, OOB))
    p('v_cmp_eq_u32 vcc, 0, %s' % t0)
    p('v_cndmask_b32 %s, %s, 0, vcc' % (v(vFlagOff), t1))
    if 'kvflags' in opt:
        p('s_lshl_b32 %s, %s, 9' % (s(sTmp), s(sH)))
        p('s_add_u32 %s, %s, 0x%x' % (s(sKVbase), s(sTmp), WS_QFLAG))
        for tg in range(2):
            p('s_add_u32 %s, %s, %d' % (s(sKVoff), s(sKVbase), 128 * tg))
            p('s_mov_b32 %s, 0' % s(sCnt))
            p.label('L_KV0%d' % tg)
            p('buffer_load_dword %s, off, s[4:7], %s sc1' % (v(vKVf), s(sKVoff)))
            p.wait(vm=0)
            p('v_readfirstlane_b32 %s, %s' % (s(sTmp), v(vKVf)))
            p('s_add_u32 %s, %s, 1' % (s(sCnt), s(sCnt)))
            p('s_cmp_gt_u32 %s, %d' % (s(sCnt), SPIN_MAX * 4))
            p('s_cbranch_scc1 L_BAIL')
            p('s_cmp_lt_u32 %s, 1' % s(sTmp))
            p('s_cbranch_scc1 L_KV0%d' % tg)
            p.forget()
        p('s_add_u32 %s, %s, 256' % (s(sKVoff), s(sKVbase)))
        p('s_mov_b32 %s, 1' % s(sKVneed))
        p('s_mov_b32 %s, 0' % s(sCnt))
    p('s_mov_b32 m0, %s' % s(sM0kx))
    p('s_nop 0')
    p('buffer_load_dwordx4 %s, s[4:7], %s offen lds' % (v(vL16), s(sKX)))
    p('buffer_load_dwordx4 %s, s[4:7], %s offen offset:1024 lds' % (v(vL16), s(sKX)))
    PRE = [(0, 0), (0, 1), (0, 2), (0, 3), (1, 0), (1, 1)]
    if 'qfirst' in opt: PRE = [(0, 0), (0, 1), (1, 0), (1, 1), (2, 0), (2, 1)]
    REF = [(2, 0), (2, 1), (3, 0), (3, 1), (1, 2), (1, 3), (2, 2), (2, 3), (3, 2), (3, 3)]
    def rd_w(st, land, half): read_w(p, st[0] * 4 + st[1], land, half)
    for u in range(6):
        rd_w(PRE[u], u, 0); rd_w(PRE[u], u, 1)
    for r in range(0, 24, 2): p('v_mov_b64 %s, 0' % v(AQK + r, 2))
    p.wait(vm=0, lgkm=0)
    if stamps:
        for k in range(15): p('s_mov_b32 %s, 0' % s(sAcc + k))
        p.raw('    s_memtime %s' % s(sStamp, 2)); p.raw('    s_waitcnt lgkmcnt(0)')
    p('s_barrier')
    p('s_branch L_T0')
    p.label('L_STEP', align=6)
    p.forget()
    PUB = MF + 16
    VA = MF + 20
    G = MF; GB = MF + 24
    def gpoll(R):
        p('buffer_load_dwordx4 %s, %s, s[4:7], %s offen sc1' % (v(R, 4), v(vMld), s(sMrd)))
        p('buffer_load_dwordx4 %s, %s, s[4:7], %s offen offset:1024 sc1' % (v(R + 4, 4), v(vMld), s(sMrd)))
    def gcheck(R, fail):
        for k in range(2):
            for hh in range(2):
                p('ds_write_b64 %s, %s offset:%d' % (v(vMwr), v(R + 4 * k + 2 * hh, 2), hh * 4 * M_RS + k * 128))
        p('v_max3_u32 %s, %s, %s, %s' % (t0, v(R), v(R + 1), v(R + 2)))
        p('v_max3_u32 %s, %s, %s, %s' % (t1, v(R + 3), v(R + 4), v(R + 5)))
        p('v_max3_u32 %s, %s, %s, %s' % (t0, t0, v(R + 6), v(R + 7)))
        p('v_max_u32 %s, %s, %s' % (t0, t0, t1))
        p('v_cmp_eq_u32 vcc, -1, %s' % t0)
        p('s_cbranch_vccnz %s' % fail)
    DG = optint(opt, 'dg', 0)
    gpoll(G)
    for r in range(0, 24, 2): p('v_mov_b64 %s, 0' % v(AQK + r, 2))
    if DG:
        delay(p, DG - 48)
        gpoll(GB)
        p.wait(vm=2)
        gcheck(G, 'L_GFAILA')
    else:
        p.label('L_GCHECK')
        p.wait(vm=0)
        gcheck(G, 'L_GFAIL')
    p.label('L_GOK')
    lstamp(p, 14, stamps)
    def pub():
        p('buffer_store_dwordx4 %s, %s, s[4:7], %s offen%s' % (v(PUB, 4), v(vL16), s(sKM), SC))
        p('buffer_store_dwordx4 %s, %s, s[4:7], %s offen%s' % (v(VA, 4), v(vL16), s(sVM), SC))
    if 'nopub' not in opt and 'pubT0' not in opt and 'pubW7' not in opt: pub()
    p.wait(lgkm=0)
    stamp(p, 0, stamps)
    p('s_barrier')
    p.label('L_T0')
    p.forget()
    lstamp_save(p, stamps)
    lstamp(p, 0, stamps)
    if 'qfirst' not in opt:
        def rd_m(c): p('ds_read_b128 %s, %s offset:%d' % (v(MF + 4 * c, 4), v(vMrd), c * 128))
        DGx = optint(opt, 'dg', 0)
        for c in ((0, 1, 2, 3) if DGx else (0, 1, 2, 6)): rd_m(c)
        p('s_mov_b32 m0, %s' % s(sM0vx))
        p('v_mov_b32 %s, %s' % (v(vFlag), s(sFlagVal)))
        p('buffer_load_dwordx4 %s, s[4:7], %s offen lds' % (v(vL16), s(sVX)))
        p('buffer_load_dwordx4 %s, s[4:7], %s offen offset:1024 lds' % (v(vL16), s(sVX)))
        def far_loads():
            if 'samekv' in opt: pass
            elif 'notouch' not in opt: p('buffer_load_dword %s, %s, s[4:7], %s offen' % (v(vDummy2), v(vTouch), s(sKXn)))
            if 'kvflags' in opt: p('buffer_load_dword %s, off, s[4:7], %s sc1' % (v(vKVf), s(sKVoff)))
        if 'touchT0' in opt: far_loads()
        if 'pubT0' in opt: pub()
        lstamp(p, 1, stamps)
        def U(i): return (LDSCH[PRE[i][0]], PRE[i][1], v(LAND + i * 8, 8))
        def F(i): return (LDSCH[REF[i][0]], REF[i][1], v(LAND + (i % 6) * 8, 8))
        def R(c, T): return (c, T, v(WQK + ((c - 2) * 4 + T) * 8, 8))
        order = [U(0), U(1), U(2), U(3), U(4), U(5), R(2, 0), R(2, 1), F(0), R(3, 0), F(1), R(3, 1), F(2), R(4, 0), R(4, 1), F(3),
                 R(5, 0), R(5, 1), F(4), R(2, 2), F(5), R(2, 3), F(6), R(3, 2), F(7), R(3, 3), F(8), R(4, 2), F(9), R(5, 2), R(4, 3), R(5, 3)]
        def refill(j, half):
            def rf(): rd_w(REF[j], j % 6, half)
            return rf
        def rd_m_late():
            if DGx:
                p.wait(vm=len(p.vm))
                rd_m(6)
            else: rd_m(3)
        fill = [refill(0, 0), refill(0, 1), rd_m_late, refill(1, 0), refill(1, 1), lambda: rd_m(7),
                refill(2, 0), refill(2, 1), lambda: rd_m(4), refill(3, 0), refill(3, 1), lambda: rd_m(5)]
        for j in range(4, 10): fill += [refill(j, 0), refill(j, 1)]
        def fold_add(T): p('v_pk_add_f32 %s, %s, %s' % (v(AQK + 4 * T, 2), v(AQK + 4 * T, 2), v(AQK + 4 * T + 2, 2)))
        def fold_cvt(T): p('v_cvt_pk_bf16_f32 %s, %s, %s' % (v(AQK + 4 * T), v(AQK + 4 * T), v(AQK + 4 * T + 1)))
        def fold_wr(T):
            if T < 2: p('ds_write_b32 %s, %s offset:%d' % (v(vQwr), v(AQK + 4 * T), T * 256))
            else: p('ds_write2_b32 %s, %s, %s offset0:%d offset1:%d' % (v(vKwr), v(AQK + 4 * T), v(AQK + 4 * T), (T - 2) * 128, (T - 2) * 128 + 1))
        XFr = [LAND + 32, LAND + 40, LAND + 0, LAND + 8]
        QR = LAND + 16
        KR = LAND + 24
        def rd_x(ks, jt): p('ds_read_b128 %s, %s offset:%d' % (v(XFr[ks] + 4 * jt, 4), v(vL16), KX_L + jt * 4096 + ks * 1024))
        fill += [lambda: rd_x(0, 0), lambda: rd_x(0, 1), lambda: rd_x(1, 0), lambda: rd_x(1, 1),
                 lambda: fold_add(0), lambda: fold_add(1), lambda: fold_cvt(0), lambda: fold_cvt(1)]
        for n, (c, T, B) in enumerate(order):
            smf(p, AQK + 4 * T, MF + 4 * c, B, vIdxQ)
            if n < len(fill): fill[n]()
        stamp(p, 6, stamps)
        lstamp(p, 2, stamps)
        vq = [(c, t) for c in range(8) for t in range(2)]
        def vs(k=1):
            for _ in range(k):
                if vq and 'nov' in opt: vq.pop(0)
                elif vq:
                    c, t = vq.pop(0)
                    smf(p, AV + 4 * t, MF + 4 * c, a((c * 2 + t) * 8, 8), vIdxQ)
        fold_wr(0); fold_wr(1)
        p('buffer_store_dword %s, %s, s[4:7], %s offen%s' % (v(vFlag), v(vFlagOff), s(sFlagOff), SC))
        fold_add(2); fold_cvt(2); fold_wr(2)
        fold_add(3); fold_cvt(3); fold_wr(3)
        def small_vmem():
            if 'poisA' not in opt and 'poisB' not in opt: p('buffer_store_dword %s, %s, s[4:7], %s offen' % (v(vNeg1), v(vMst), s(sMpo)))
            if 'touchT0' not in opt: far_loads()
        if 'smallS' not in opt: small_vmem()
        vs(optint(opt, 'v3', 3))
        lstamp(p, 3, stamps)
        p.wait(lgkm=0)
        stamp(p, 1, stamps)
        p('s_barrier')
        lstamp(p, 4, stamps)
        SA = AQK
        def rd_q(ks):
            for hh in range(2): p('ds_read_b64_tr_b16 %s, %s offset:%d' % (v(QR + 4 * (ks & 1) + 2 * hh, 2), v(vQtr), ks * 512 + hh * 256))
        def rd_k(ks):
            for hh in range(2): p('ds_read_b64_tr_b16 %s, %s offset:%d' % (v(KR + 4 * (ks & 1) + 2 * hh, 2), v(vKtr), ks * 1024 + hh * 512))
        Q3 = [QR, QR + 4, AQK + 12, QR]
        K3 = [KR, KR + 4, KR, KR + 4]
        def rq(ks, hh): p('ds_read_b64_tr_b16 %s, %s offset:%d' % (v(Q3[ks] + 2 * hh, 2), v(vQtr), ks * 512 + hh * 256))
        def rk(ks, hh): p('ds_read_b64_tr_b16 %s, %s offset:%d' % (v(K3[ks] + 2 * hh, 2), v(vKtr), ks * 1024 + hh * 512))
        rq(0, 0); rq(0, 1); rk(0, 0); rk(0, 1); rq(1, 0); rq(1, 1); rk(1, 0); rk(1, 1); rq(2, 0); rq(2, 1)
        vs(optint(opt, 'v4', 2))
        VXF = LAND + 32
        def mx_(ks, jt): p('v_mfma_f32_16x16x32_bf16 %s, %s, %s, %s' % (v(SA + 4 * jt, 4), v(XFr[ks] + 4 * jt, 4), v(Q3[ks], 4), '0' if ks == 0 else v(SA + 4 * jt, 4)))
        def mm_(ks): p('v_mfma_f32_16x16x32_bf16 %s, %s, %s, %s' % (v(SA + 8, 4), v(K3[ks], 4), v(Q3[ks], 4), '0' if ks == 0 else v(SA + 8, 4)))
        rd_x(2, 0)
        mx_(0, 0); rd_x(2, 1)
        mx_(0, 1); rd_x(3, 0)
        mm_(0); rd_x(3, 1)
        mx_(1, 0); rk(2, 0); rk(2, 1)
        mx_(1, 1)
        rq(3, 0); rq(3, 1)
        mm_(1); rk(3, 0); rk(3, 1)
        mx_(2, 0)
        if 'smallS' in opt: small_vmem()
        mx_(2, 1)
        p.wait(vm=len(p.vm) - 2 - (0 if 'smallS' not in opt else 0))
        mm_(2)
        for t in range(2): p('ds_read_b128 %s, %s offset:%d' % (v(VXF + 4 * t, 4), v(vVX), t * 1024))
        mx_(3, 0); mx_(3, 1); mm_(3)
        stamp(p, 7, stamps)
        lstamp(p, 5, stamps)
        if 'pubW7' in opt:
            PUB = LAND + 24
            p('v_add_u32 %s, %s, %s' % (t2, s(sW10), v(vKtr)))
            for hh in range(2): p('ds_read_b64_tr_b16 %s, %s offset:%d' % (v(PUB + 2 * hh, 2), t2, hh * 512))
        vs(2)
    else:
        def rd_m(c): p('ds_read_b128 %s, %s offset:%d' % (v(MF + 4 * c, 4), v(vMrd), c * 128))
        for c in (0, 1, 6, 2): rd_m(c)
        p('s_mov_b32 m0, %s' % s(sM0vx))
        p('v_mov_b32 %s, %s' % (v(vFlag), s(sFlagVal)))
        p('buffer_load_dwordx4 %s, s[4:7], %s offen lds' % (v(vL16), s(sVX)))
        p('buffer_load_dwordx4 %s, s[4:7], %s offen offset:1024 lds' % (v(vL16), s(sVX)))
        vxn = p.vmissued
        if 'pubT0' in opt: pub()
        lstamp(p, 1, stamps)
        Ls = [LAND + 8 * k for k in range(6)]
        slot_of = {0: 0, 1: 1, 6: 2, 7: 3}
        def Lop(c, T, land): return (c, T, v(Ls[land], 8))
        def R(c, T): return (c, T, v(WQK + ((c - 2) * 4 + T) * 8, 8))
        def rw(c, T, land, half): return lambda: read_w(p, slot_of[c] * 4 + T, land, half)
        order = [Lop(0, 0, 0), Lop(0, 1, 1), Lop(1, 0, 2), Lop(1, 1, 3), Lop(6, 0, 4), Lop(6, 1, 5),
                 R(2, 0), R(2, 1), R(3, 0), R(3, 1), R(4, 0), R(4, 1), R(5, 0), R(5, 1), Lop(7, 0, 0), Lop(7, 1, 1),
                 Lop(0, 2, 2), Lop(0, 3, 3), Lop(1, 2, 4), Lop(1, 3, 5)] + [R(c, T) for c in range(2, 6) for T in (2, 3)] + \
                [Lop(6, 2, 0), Lop(6, 3, 1), Lop(7, 2, 2), Lop(7, 3, 3)]
        def fold_add(T): p('v_pk_add_f32 %s, %s, %s' % (v(AQK + 4 * T, 2), v(AQK + 4 * T, 2), v(AQK + 4 * T + 2, 2)))
        def fold_cvt(T): p('v_cvt_pk_bf16_f32 %s, %s, %s' % (v(AQK + 4 * T), v(AQK + 4 * T), v(AQK + 4 * T + 1)))
        def fold_wr(T):
            if T < 2: p('ds_write_b32 %s, %s offset:%d' % (v(vQwr), v(AQK + 4 * T), T * 256))
            else: p('ds_write2_b32 %s, %s, %s offset0:%d offset1:%d' % (v(vKwr), v(AQK + 4 * T), v(AQK + 4 * T), (T - 2) * 128, (T - 2) * 128 + 1))
        QF = Ls[4]
        XFr = [AQK, Ls[0], Ls[1], AQK]
        SA = Ls[2]
        K3 = [AQK + 8, AQK + 12, Ls[3] + 4, AQK + 8]
        def rd_x(ks, jt): p('ds_read_b128 %s, %s offset:%d' % (v(XFr[ks] + 4 * jt, 4), v(vL16), KX_L + jt * 4096 + ks * 1024))
        def rq(ks, hh): p('ds_read_b64_tr_b16 %s, %s offset:%d' % (v(QF + 4 * ks + 2 * hh, 2), v(vQtr), ks * 512 + hh * 256))
        def rk(ks, hh): p('ds_read_b64_tr_b16 %s, %s offset:%d' % (v(K3[ks] + 2 * hh, 2), v(vKtr), ks * 1024 + hh * 512))
        mark = {}
        def wr_q(T):
            fold_wr(T); mark['q'] = len(p.lgkm) - 1; mark['n'] = 0
        def b2a():
            n_after = mark['cnt']()
            p.wait(lgkm=n_after)
            p('s_barrier')
        lg_issued = [0]
        fill = {0: [lambda: rd_m(3)], 1: [lambda: rd_m(4)], 2: [rw(7, 0, 0, 0)], 3: [rw(7, 0, 0, 1)], 4: [lambda: rd_m(5)],
                5: [rw(7, 1, 1, 0)], 6: [rw(7, 1, 1, 1)], 7: [lambda: rd_m(7)],
                8: [rw(0, 2, 2, 0)], 9: [rw(0, 2, 2, 1)], 10: [rw(0, 3, 3, 0)], 11: [rw(0, 3, 3, 1)],
                12: [rw(1, 2, 4, 0)], 13: [rw(1, 2, 4, 1)], 14: [rw(1, 3, 5, 0)], 15: [rw(1, 3, 5, 1)],
                16: [rw(6, 2, 0, 0)], 17: [rw(6, 2, 0, 1)], 18: [rw(6, 3, 1, 0)], 19: [rw(6, 3, 1, 1), lambda: fold_add(0)],
                20: [rw(7, 2, 2, 0), lambda: fold_add(1)], 21: [rw(7, 2, 2, 1), lambda: fold_cvt(0)], 22: [rw(7, 3, 3, 0), lambda: fold_cvt(1)],
                23: [rw(7, 3, 3, 1)], 24: [lambda: fold_wr(0), lambda: fold_wr(1)],
                25: [lambda: rd_x(0, 0)], 26: [lambda: rd_x(0, 1)],
                28: ['B2A'], 29: [lambda: rq(0, 0), lambda: rq(0, 1)], 30: [lambda: rq(1, 0), lambda: rq(1, 1)], 31: [lambda: rd_x(1, 0), lambda: rd_x(1, 1)]}
        for n, (c, T, B) in enumerate(order):
            smf(p, AQK + 4 * T, MF + 4 * c, B, vIdxQ)
            for f in fill.get(n, []):
                if f == 'B2A':
                    p.wait(lgkm=2)
                    p('s_barrier')
                else: f()
        stamp(p, 6, stamps)
        lstamp(p, 2, stamps)
        vq = [(c, t) for c in range(8) for t in range(2)]
        def vs(k=1):
            for _ in range(k):
                if vq:
                    c, t = vq.pop(0)
                    smf(p, AV + 4 * t, MF + 4 * c, a((c * 2 + t) * 8, 8), vIdxQ)
        def mx_(ks, jt): p('v_mfma_f32_16x16x32_bf16 %s, %s, %s, %s' % (v(SA + 4 * jt, 4), v(XFr[ks] + 4 * jt, 4), v(QF + 4 * ks, 4), '0' if ks == 0 else v(SA + 4 * jt, 4)))
        def mm_(ks): p('v_mfma_f32_16x16x32_bf16 %s, %s, %s, %s' % (v(SA + 8, 4), v(K3[ks], 4), v(QF + 4 * ks, 4), '0' if ks == 0 else v(SA + 8, 4)))
        rq(2, 0); rq(2, 1); rq(3, 0); rq(3, 1); rd_x(2, 0); rd_x(2, 1)
        p('buffer_store_dword %s, %s, s[4:7], %s offen%s' % (v(vFlag), v(vFlagOff), s(sFlagOff), SC))
        mx_(0, 0); fold_add(2); fold_add(3)
        mx_(0, 1); fold_cvt(2); fold_cvt(3)
        fold_wr(2); fold_wr(3)
        rd_x(3, 0); rd_x(3, 1)
        mx_(1, 0); mx_(1, 1)
        p('buffer_store_dword %s, %s, s[4:7], %s offen' % (v(vNeg1), v(vMst), s(sMpo)))
        mx_(2, 0)
        if 'samekv' in opt: pass
        elif 'notouch' not in opt: p('buffer_load_dword %s, %s, s[4:7], %s offen' % (v(vDummy), v(vTouch), s(sKXn)))
        mx_(2, 1)
        if 'kvflags' in opt: p('buffer_load_dword %s, off, s[4:7], %s sc1' % (v(vKVf), s(sKVoff)))
        lstamp(p, 3, stamps)
        p.wait(lgkm=2)
        stamp(p, 1, stamps)
        p('s_barrier')
        lstamp(p, 4, stamps)
        rk(0, 0); rk(0, 1); rk(1, 0); rk(1, 1); rk(2, 0); rk(2, 1)
        mx_(3, 0); mx_(3, 1)
        VXF = Ls[0]
        p.wait(vm=p.vmissued - vxn)
        for t in range(2): p('ds_read_b128 %s, %s offset:%d' % (v(VXF + 4 * t, 4), v(vVX), t * 1024))
        vs(optint(opt, 'v4', 2))
        mm_(0); rk(3, 0); rk(3, 1)
        mm_(1); mm_(2); mm_(3)
        stamp(p, 7, stamps)
        lstamp(p, 5, stamps)
        vs(2)
    X = SA
    mx = vT0
    WA = MF
    p('v_max3_f32 %s, %s, %s, %s' % (v(mx), v(X), v(X + 1), v(X + 2)))
    p('v_max3_f32 %s, %s, %s, %s' % (v(vT1), v(X + 3), v(X + 4), v(X + 5)))
    p('v_max3_f32 %s, %s, %s, %s' % (v(mx), v(mx), v(X + 6), v(X + 7)))
    p('v_max3_f32 %s, %s, %s, %s' % (v(vT1), v(vT1), v(X + 8), v(X + 9)))
    p('v_max_f32 %s, %s, %s' % (v(mx), v(mx), v(vT1)))
    p('v_mov_b32 %s, %s' % (v(vT1), v(mx)))
    vs(1)
    p('v_permlane16_swap_b32 %s, %s' % (v(vT1), v(mx)))
    p('v_max_f32 %s, %s, %s' % (v(mx), v(mx), v(vT1)))
    p('v_mov_b32 %s, %s' % (v(vT1), v(mx)))
    vs(1)
    p('v_permlane32_swap_b32 %s, %s' % (v(vT1), v(mx)))
    p('v_max_f32 %s, %s, %s' % (v(mx), v(mx), v(vT1)))
    p('v_mul_f32 %s, %s, %s' % (v(mx), s(sScale), v(mx)))
    for r in range(0, 10, 2):
        p('v_pk_fma_f32 %s, %s, %s, %s op_sel_hi:[1,0,0] neg_lo:[0,0,1] neg_hi:[0,0,1]' % (v(X + r, 2), v(X + r, 2), s(sScale2, 2), v(mx, 2)))
    vs(len(vq))
    lstamp(p, 6, stamps)
    QFI = 'qfirst' in opt
    PX = LAND + (32 if QFI else 16)
    PM = PX + 4
    for r in range(0, 8): p('v_exp_f32 %s, %s' % (v(X + r), v(X + r)))
    for r in range(4): p('v_cvt_pk_bf16_f32 %s, %s, %s' % (v(PX + r), v(X + 2 * r), v(X + 2 * r + 1)))
    OA = LAND + (8 if QFI else 0)
    p('v_mfma_f32_16x16x32_bf16 %s, %s, %s, 0' % (v(OA, 4), v(VXF, 4), v(PX, 4)))
    p('v_exp_f32 %s, %s' % (v(X + 8), v(X + 8)))
    p('v_mfma_f32_16x16x32_bf16 %s, %s, %s, 0' % (v(OA + 4, 4), v(VXF + 4, 4), v(PX, 4)))
    p('v_exp_f32 %s, %s' % (v(X + 9), v(X + 9)))
    for t in range(2):
        p('v_cvt_pk_bf16_f32 %s, %s, %s' % (v(VA + 2 * t), v(AV + 4 * t), v(AV + 4 * t + 1)))
        p('v_cvt_pk_bf16_f32 %s, %s, %s' % (v(VA + 2 * t + 1), v(AV + 4 * t + 2), v(AV + 4 * t + 3)))
    p('v_cvt_pk_bf16_f32 %s, %s, %s' % (v(PM), v(X + 8), v(X + 9)))
    p('v_cvt_pk_bf16_f32 %s, %s, %s' % (v(PM + 1), v(X + 8), v(X + 9)))
    stamp(p, 8, stamps)
    lstamp(p, 7, stamps)
    p('v_pk_add_f32 %s, %s, %s' % (v(X, 2), v(X, 2), v(X + 2, 2)))
    p('v_pk_add_f32 %s, %s, %s' % (v(X + 4, 2), v(X + 4, 2), v(X + 6, 2)))
    p('v_mfma_f32_16x16x16_bf16 %s, %s, %s, %s' % (v(OA, 4), v(VA, 2), v(PM, 2), v(OA, 4)))
    p('v_pk_add_f32 %s, %s, %s' % (v(X, 2), v(X, 2), v(X + 8, 2)))
    p('v_pk_add_f32 %s, %s, %s' % (v(X, 2), v(X, 2), v(X + 4, 2)))
    p('v_mfma_f32_16x16x16_bf16 %s, %s, %s, %s' % (v(OA + 4, 4), v(VA + 2, 2), v(PM, 2), v(OA + 4, 4)))
    p('v_add_f32 %s, %s, %s' % (v(X), v(X), v(X + 1)))
    p('v_mov_b32 %s, %s' % (v(X + 1), v(X)))
    p('v_mov_b64 %s, 0' % v(WA + 0, 2)); p('v_mov_b64 %s, 0' % v(WA + 2, 2))
    p('v_permlane16_swap_b32 %s, %s' % (v(X + 1), v(X)))
    p('v_add_f32 %s, %s, %s' % (v(X), v(X), v(X + 1)))
    p('v_mov_b32 %s, %s' % (v(X + 1), v(X)))
    p('v_mov_b64 %s, 0' % v(WA + 4, 2)); p('v_mov_b64 %s, 0' % v(WA + 6, 2))
    p('v_permlane32_swap_b32 %s, %s' % (v(X + 1), v(X)))
    p('v_add_f32 %s, %s, %s' % (v(X), v(X), v(X + 1)))
    p('v_rcp_f32 %s, %s' % (v(vT0), v(X)))
    p('v_mov_b64 %s, 0' % v(WA + 8, 2))
    OF = LAND + 32
    for t in range(2):
        for hh in range(2):
            p('v_pk_mul_f32 %s, %s, %s op_sel_hi:[1,0]' % (v(OA + 4 * t + 2 * hh, 2), v(OA + 4 * t + 2 * hh, 2), v(vT0, 2)))
    for t in range(2):
        for hh in range(2):
            p('v_cvt_pk_bf16_f32 %s, %s, %s' % (v(OF + 2 * t + hh), v(OA + 4 * t + 2 * hh), v(OA + 4 * t + 2 * hh + 1)))
    p('ds_write_b128 %s, %s' % (v(vVX), v(OF, 4)))
    lstamp(p, 8, stamps)
    XA = LAND + (0 if QFI else 8)
    p('v_mov_b64 %s, 0' % v(WA + 10, 2)); p('v_mov_b64 %s, 0' % v(WA + 12, 2)); p('v_mov_b64 %s, 0' % v(WA + 14, 2))
    smf(p, WA + 0, OF, a(128 + 0 * 32, 8), vIdxO)
    p('v_xor_b32 %s, 0x800, %s' % (v(XA), v(vVX)))
    smf(p, WA + 4, OF, a(128 + 1 * 32, 8), vIdxO)
    p('v_xor_b32 %s, 0x1000, %s' % (v(XA + 1), v(vVX)))
    smf(p, WA + 8, OF, a(128 + 2 * 32, 8), vIdxO)
    p('v_xor_b32 %s, 0x1800, %s' % (v(XA + 2), v(vVX)))
    if 'pubW7' in opt:
        p('buffer_store_dwordx4 %s, %s, s[4:7], %s offen%s' % (v(PUB, 4), v(vL16), s(sKM), SC))
        p('buffer_store_dwordx4 %s, %s, s[4:7], %s offen%s' % (v(VA, 4), v(vL16), s(sVM), SC))
    else: p('v_add_u32 %s, %s, %s' % (v(XA + 3), s(sW10), v(vKtr)))
    p('s_cmp_eq_u32 %s, %d' % (s(sStep), nsteps - 1))
    p.wait(lgkm=0)
    stamp(p, 2, stamps)
    p('s_barrier')
    lstamp(p, 9, stamps)
    for j in range(1, 4): p('ds_read_b128 %s, %s' % (v(OF + 4 * j, 4), v(XA + j - 1)))
    if 'pubW7' not in opt:
        for hh in range(2): p('ds_read_b64_tr_b16 %s, %s offset:%d' % (v(PUB + 2 * hh, 2), v(XA + 3), hh * 512))
    p('s_cbranch_scc1 L_DONE')
    smf(p, WA + 12, OF, a(128 + 3 * 32, 8), vIdxO)
    def kxdma():
        if 'samekv' not in opt: p('s_add_u32 %s, %s, %d' % (s(sKX), s(sKX), 32 * 8192))
        p('s_mov_b32 m0, %s' % s(sM0kx))
        if 'samekv' not in opt: p('s_add_u32 %s, %s, %d' % (s(sVX), s(sVX), 32 * 8192))
        if 'nokxdma' not in opt:
            p('buffer_load_dwordx4 %s, s[4:7], %s offen lds' % (v(vL16), s(sKX)))
            p('buffer_load_dwordx4 %s, s[4:7], %s offen offset:1024 lds' % (v(vL16), s(sKX)))
    if 'kxlate' not in opt: kxdma()
    E = LAND + (8 if QFI else 16)
    def pack(P, k):
        q = 2 * P + (k >> 1); hh = k & 1
        p('v_cvt_pk_bf16_f32 %s, %s, %s' % (v(E + 4 * P + k), v(WA + 4 * q + 2 * hh), v(WA + 4 * q + 2 * hh + 1)))
    for j in range(1, 4):
        for q in (0, 1): smf(p, WA + 4 * q, OF + 4 * j, a(128 + (q * 4 + j) * 8, 8), vIdxO)
    pend = [lambda k=k: pack(0, k) for k in range(4)]
    pend += [lambda: p('v_bfi_b32 %s, 1, %s, %s' % (v(E), s(sTag), v(E))),
             lambda: p('buffer_store_dwordx4 %s, %s, s[4:7], %s offen' % (v(E, 4), v(vPst), s(sPst)))]
    seq = [(q, j) for j in range(1, 4) for q in (2, 3)]
    for n, (q, j) in enumerate(seq):
        smf(p, WA + 4 * q, OF + 4 * j, a(128 + (q * 4 + j) * 8, 8), vIdxO)
        if n >= 3: pend.pop(0)()
    while pend: pend.pop(0)()
    for k in range(4): pack(1, k)
    p('v_bfi_b32 %s, 1, %s, %s' % (v(E + 4), s(sTag), v(E + 4)))
    p('buffer_store_dwordx4 %s, %s, s[4:7], %s offen' % (v(E + 4, 4), v(vPst), s(sPst + 1)))
    stamp(p, 3, stamps)
    lstamp(p, 10, stamps)
    PR = MF
    SEL = MF + 8
    RA = MF + 12
    def gen_sel():
        p('v_bfe_u32 %s, %s, 4, 4' % (t0, v(vL16)))
        p('v_and_b32 %s, 16, %s' % (t1, v(vL16)))
        p('v_mov_b32 %s, 0x3f80' % t2)
        p('v_lshlrev_b32 %s, %s, %s' % (t2, t1, t2))
        p('v_lshrrev_b32 %s, 1, %s' % (t0, t0))
        for q in range(4):
            p('v_cmp_eq_u32 %s, %d, %s' % (s(sMaskA + 2 * (q & 1), 2), q, t0))
            p('v_mov_b32 %s, 0' % v(SEL + q))
            if q & 1:
                p('v_cndmask_b32 %s, %s, %s, %s' % (v(SEL + q - 1), v(SEL + q - 1), t2, s(sMaskA, 2)))
                p('v_cndmask_b32 %s, %s, %s, %s' % (v(SEL + q), v(SEL + q), t2, s(sMaskA + 2, 2)))
    if 'kxlate' in opt: kxdma()
    gen_sel()
    if 'landlate' not in opt:
        for u in range(6):
            rd_w(PRE[u], u, 0); rd_w(PRE[u], u, 1)
    delay(p, optint(opt, 'd1', 0))
    if optint(opt, 'd1s', 0):
        p('s_cmp_lt_u32 %s, 2' % s(sW))
        p('s_cbranch_scc1 L_D1S')
        delay(p, optint(opt, 'd1s', 0))
        p.label('L_D1S')
    lstamp(p, 11, stamps)
    PB = MF + 24
    DP = optint(opt, 'dp', 0)
    def ppoll(R):
        for k in range(2):
            p('buffer_load_dwordx4 %s, %s, s[4:7], %s offen offset:%d sc1' % (v(R + 4 * k, 4), v(vPld), s(sPld), k * 2048))
    def pcheck(R, fail):
        p('v_mfma_f32_16x16x32_bf16 %s, %s, %s, 0' % (v(RA, 4), v(R, 4), v(SEL, 4)))
        p('v_bitop3_b32 %s, -1, %s, %s bitop3:0x90' % (t0, v(R), s(sTag)))
        p('v_bitop3_b32 %s, %s, %s, %s bitop3:0x90' % (t0, t0, v(R + 4), s(sTag)))
        p('v_mfma_f32_16x16x32_bf16 %s, %s, %s, %s' % (v(RA, 4), v(R + 4, 4), v(SEL, 4), v(RA, 4)))
        p('v_and_b32 %s, 1, %s' % (t0, t0))
        p('v_cmp_eq_u32 vcc, 0, %s' % t0)
        p('s_cbranch_vccnz %s' % fail)
    ppoll(PR)
    if 'landlate' in opt:
        for u in range(6):
            rd_w(PRE[u], u, 0); rd_w(PRE[u], u, 1)
    if 'kvflags' in opt:
        p('v_readfirstlane_b32 %s, %s' % (s(sTmp), v(vKVf)))
        p('s_cmp_ge_u32 %s, %s' % (s(sTmp), s(sKVneed)))
        p('s_cbranch_scc0 L_KVWAIT')
        p.label('L_KVOK')
        p('s_add_u32 %s, %s, 3' % (s(sTmp), s(sStep)))
        p('s_lshr_b32 %s, %s, 2' % (s(sKVneed), s(sTmp)))
        p('s_add_u32 %s, %s, 1' % (s(sKVneed), s(sKVneed)))
        p('s_cmp_lt_u32 %s, 64' % s(sTmp))
        p('s_cselect_b32 %s, %s, 0' % (s(sKVneed), s(sKVneed)))
        p('s_and_b32 %s, %s, 3' % (s(sTmp), s(sTmp)))
        p('s_lshl_b32 %s, %s, 7' % (s(sTmp), s(sTmp)))
        p('s_add_u32 %s, %s, %s' % (s(sKVoff), s(sKVbase), s(sTmp)))
    if 'pubW7' not in opt: p('s_mov_b32 %s, %s' % (s(sFlagVal), s(sStep)))
    p('s_add_u32 %s, %s, 1' % (s(sStep), s(sStep)))
    if 'pubW7' in opt: p('s_mov_b32 %s, %s' % (s(sFlagVal), s(sStep)))
    p('s_lshr_b32 %s, %s, 1' % (s(sTmp), s(sStep)))
    p('s_and_b32 %s, %s, 1' % (s(sTmp), s(sTmp)))
    p('s_xor_b32 %s, %s, 1' % (s(sTagN), s(sTmp)))
    for P in range(2): p('s_xor_b32 %s, %s, 0x40000' % (s(sPst + P), s(sPst + P)))
    p('s_mov_b32 %s, %s' % (s(sTmp), s(sMrd)))
    p('s_mov_b32 %s, %s' % (s(sMrd), s(sMwr)))
    p('s_mov_b32 %s, %s' % (s(sMwrOld), s(sMwr)))
    p('s_mov_b32 %s, %s' % (s(sMwr), s(sMpo)))
    p('s_mov_b32 %s, %s' % (s(sMpo), s(sTmp)))
    p('s_add_u32 %s, %s, %d' % (s(sKXn), s(sKXn), 32 * 8192))
    p('s_add_u32 %s, %s, %d' % (s(sKM), s(sKM), 32 * 4096))
    p('s_add_u32 %s, %s, %d' % (s(sVM), s(sVM), 32 * 4096))
    p('s_mov_b32 %s, 0' % s(sCnt))
    if 'steprt' in opt:
        p.raw('    s_ff1_i32_b32 s80, %s' % s(sStep))
        p.raw('    s_lshl_b32 s81, 1, s80')
        p.raw('    s_cmp_eq_u32 s81, %s' % s(sStep))
        p.raw('    s_cbranch_scc0 L_STEPRT')
        p.raw('    s_or_b32 s81, %s, %s' % (s(sH), s(sW)))
        p.raw('    s_cmp_eq_u32 s81, 0')
        p.raw('    s_cbranch_scc0 L_STEPRT')
        p.raw('    s_memrealtime s[82:83]')
        p.raw('    s_load_dwordx2 s[84:85], s[0:1], %d' % KA_DBG)
        p.raw('    s_waitcnt lgkmcnt(0)')
        p.raw('    s_lshl_b32 s80, s80, 2')
        p.raw('    s_add_u32 s80, s80, 36')
        p.raw('    v_mov_b32 %s, s82' % t0)
        p.raw('    v_mov_b32 %s, s80' % t1)
        p.raw('    global_store_dword %s, %s, s[84:85]' % (t1, t0))
        p.raw('L_STEPRT:')
    if DP:
        delay(p, max(DP - 130, 0))
        ppoll(PB)
        p.wait(vm=2)
        pcheck(PR, 'L_PFAILA')
    else:
        p.label('L_PCHECK')
        p.wait(vm=0)
        pcheck(PR, 'L_PFAIL')
    p.label('L_POK')
    stamp(p, 11, stamps)
    lstamp(p, 12, stamps)
    if 'poisA' in opt: p('buffer_store_dword %s, %s, s[4:7], %s offen' % (v(vNeg1), v(vMst), s(sMwr)))
    p('s_mov_b32 %s, %s' % (s(sTag), s(sTagN)))
    p('s_xor_b32 %s, %s, 0x40000' % (s(sPld), s(sPld)))
    p('v_permlane32_swap_b32 %s, %s' % (v(RA), v(RA + 1)))
    p('v_permlane32_swap_b32 %s, %s' % (v(RA + 2), v(RA + 3)))
    p('v_add_f32 %s, %s, %s' % (v(RA), v(RA), v(RA + 1)))
    p('v_add_f32 %s, %s, %s' % (v(RA + 2), v(RA + 2), v(RA + 3)))
    p('v_permlane16_swap_b32 %s, %s' % (v(RA), v(RA + 2)))
    p('v_add_f32 %s, %s, %s' % (v(RA), v(RA), v(RA + 2)))
    p('v_mov_b32 %s, %s' % (v(RA + 1), v(RA)))
    p('v_permlane32_swap_b32 %s, %s' % (v(RA), v(RA + 1)))
    p('v_cvt_pk_bf16_f32 %s, %s, %s' % (v(RA), v(RA), v(RA + 1)))
    p('v_min_u32 %s, 0xfffffffe, %s' % (v(RA), v(RA)))
    p('buffer_store_dword %s, %s, s[4:7], %s offen' % (v(RA), v(vMst), s(sMwrOld)))
    if 'poisB' in opt: p('buffer_store_dword %s, %s, s[4:7], %s offen' % (v(vNeg1), v(vMst), s(sMwr)))
    stamp(p, 4, stamps)
    lstamp(p, 13, stamps)
    delay(p, optint(opt, 'd2', 0))
    if optint(opt, 'd2s', 0):
        p('s_cmp_lt_u32 %s, 2' % s(sW))
        p('s_cbranch_scc1 L_STEP')
        delay(p, optint(opt, 'd2s', 0))
    p('s_branch L_STEP')
    if 'kvflags' in opt:
        p.label('L_KVWAIT')
        p('s_add_u32 %s, %s, 1' % (s(sCnt), s(sCnt)))
        p('s_cmp_gt_u32 %s, %d' % (s(sCnt), SPIN_MAX * 4))
        p('s_cbranch_scc1 L_BAIL')
        p.raw('    buffer_load_dword %s, off, s[4:7], %s sc1' % (v(vKVf), s(sKVoff)))
        p.raw('    s_waitcnt vmcnt(0)')
        p.raw('    s_nop 0')
        p.raw('    v_readfirstlane_b32 %s, %s' % (s(sTmp), v(vKVf)))
        p.raw('    s_nop 1')
        p('s_cmp_ge_u32 %s, %s' % (s(sTmp), s(sKVneed)))
        p('s_cbranch_scc0 L_KVWAIT')
        p('s_mov_b32 %s, 0' % s(sCnt))
        p('s_branch L_KVOK')
    def countfail(inc):
        p('s_add_u32 %s, %s, 1' % (s(sCnt), s(sCnt)))
        p('s_add_u32 %s, %s, 0x%x' % (s(sNfail), s(sNfail), inc))
        p('s_cmp_lt_u32 %s, %d' % (s(sCnt), SPIN_MAX))
        p('s_cbranch_scc0 L_BAIL')
    if DG:
        p.label('L_GFAILA')
        p.forget()
        p('s_add_u32 %s, %s, 1' % (s(sNfail), s(sNfail)))
        p.label('L_GCHECKB')
        p.wait(vm=0)
        gcheck(GB, 'L_GFAILB')
        p('s_branch L_GOK')
        p.label('L_GFAILB')
        countfail(1)
        p('s_mov_b64 exec, vcc')
        gpoll(GB)
        p('s_mov_b64 exec, -1')
        p('s_branch L_GCHECKB')
    else:
        p.label('L_GFAIL')
        p.forget()
        countfail(1)
        p('s_mov_b64 exec, vcc')
        gpoll(G)
        p('s_mov_b64 exec, -1')
        p('s_branch L_GCHECK')
    if DP:
        p.label('L_PFAILA')
        p.forget()
        p('s_add_u32 %s, %s, 0x10000' % (s(sNfail), s(sNfail)))
        p.label('L_PCHECKB')
        p.wait(vm=0)
        p('s_nop 7')
        pcheck(PB, 'L_PFAILB')
        p('s_nop 3')
        p('s_branch L_POK')
        p.label('L_PFAILB')
        countfail(0x10000)
        p('s_mov_b64 exec, vcc')
        ppoll(PB)
        p('s_mov_b64 exec, -1')
        p('s_branch L_PCHECKB')
    else:
        p.label('L_PFAIL')
        p.forget()
        countfail(0x10000)
        p('s_mov_b64 exec, vcc')
        ppoll(PR)
        p('s_mov_b64 exec, -1')
        p('s_branch L_PCHECK')
```

```python
from asmlib import *
from layout import *

VX_L = 0
KX_L = 8192
M_IMG, M_RS = 16384, 1088
Q_IMG = 25088
K_IMG = 27136
W_L = 32768
CHAIN_LDS = W_L + 4 * 32768

vLane = 0
vL16, vIdxQ, vIdxO, vMrd, vWrd0, vWrd1, vQwr, vKwr, vQtr, vKtr, vVX, vPst, vMst, vMld, vMwr, vTouch, vPld, vNeg1, vDummy = range(1, 20)
vFlag = vDummy
vDummy2 = 20
vFlagOff = 21
vT0, vT1, vT2 = 22, 23, 20
MF = 24
LAND = 56
AQK = 104
AV = 120
WQK = 128

sW = 3
SRD_WS = 4
SRD_T = 8
sH, sStep, sTag = 12, 13, 15
sPst = 16
sPld = 20
sMrd, sMwr, sMpo = 21, 22, 23
sKX, sVX, sKXn = 24, 25, 26
sKM, sVM = 27, 28
sCnt = 29
sTmp, sTmp2, sTmp3 = 30, 31, 32
sScale = 33
sM0kx, sM0vx = 34, 35
sFlagOff = 36
sW10 = 37
sScale2 = 76
sNfail = 78
sExK = 92
sKVoff, sKVneed, sKVbase = 88, 89, 90
vKVf = 0
sTagN = 14
sMwrOld = 18
sMaskA = 8
sFlagVal = 79
sDBG = 38
sStamp = 40
sAcc = 44
SPIN_MAX = 200000

LDSCH = [0, 1, 6, 7]

def smf(p, acc, A, B, idx):
    p('v_smfmac_f32_16x16x64_bf16 %s, %s, %s, %s' % (v(acc, 4), v(A, 4), B, v(idx)))

def w_lds_addr(u, half):
    slot, T = u >> 2, u & 3
    off = slot * 32768 + T * 2048 + half * 1024
    return (vWrd0, off) if slot < 2 else (vWrd1, off - 65536)

def read_w(p, u, land, half):
    r, off = w_lds_addr(u, half)
    p('ds_read_b128 %s, %s offset:%d' % (v(LAND + land * 8 + half * 4, 4), v(r), off))

RAW = [60, 62, 64, 66, 68, 70, 72, 74, 80, 82, 84, 86, 94, 98, 100]
def lstamp(p, k, enable):
    if enable == 'light': p.raw('    s_memtime s[%d:%d]' % (RAW[k], RAW[k] + 1))
    if enable == 'real': p.raw('    s_memrealtime s[%d:%d]' % (RAW[k], RAW[k] + 1))
def lstamp_save(p, enable):
    if enable not in ('light', 'real'): return
    p.raw('    s_cmp_eq_u32 %s, 31' % s(sStep))
    for k in range(15): p.raw('    s_cselect_b32 %s, s%d, %s' % (s(sAcc + k), RAW[k], s(sAcc + k)))
def stamp(p, k, enable):
    if enable in ('light', 'real'): return
    if not enable or (enable == 'total' and k != 4): return
    if enable == 'abs':
        p.raw('    s_memtime %s' % s(sStamp + 2, 2))
        p.raw('    s_waitcnt lgkmcnt(0)')
        p.lgkm = []
        p.raw('    s_cmp_eq_u32 %s, 30' % s(sStep))
        p.raw('    s_cselect_b32 %s, %s, %s' % (s(sAcc + k), s(sStamp + 2), s(sAcc + k)))
        return
    if k > 4: return
    p.raw('    s_memtime %s' % s(sStamp + 2, 2))
    p.raw('    s_waitcnt lgkmcnt(0)')
    p.lgkm = []
    p.raw('    s_sub_u32 %s, %s, %s' % (s(sTmp3), s(sStamp + 2), s(sStamp)))
    p.raw('    s_add_u32 %s, %s, %s' % (s(sAcc + k), s(sAcc + k), s(sTmp3)))
    p.raw('    s_mov_b32 %s, %s' % (s(sStamp), s(sStamp + 2)))


def optint(opt, name, default):
    return int(opt[opt.index(name) + 1]) if name in opt else default
def delay(p, cycles):
    n = cycles // 4
    while n > 0:
        k = min(n, 16); p('s_nop %d' % (k - 1)); n -= k

def chain_setup(p):
    p('s_load_dwordx2 s[4:5], s[0:1], %d' % KA_WS)
    p('s_load_dwordx2 %s, s[0:1], %d' % (s(sDBG, 2), KA_DBG))
    p('v_lshrrev_b32 v1, 6, v0')
    p('v_readfirstlane_b32 %s, v1' % s(sW))
    p('v_and_b32 v0, 63, v0')
    p('s_waitcnt lgkmcnt(0)')
    p('s_mov_b32 s6, 0x%x' % WS_SIZE)
    p('s_mov_b32 s7, 0x20000')
    L = v(vLane)
    t0, t1, t2 = v(vT0), v(vT1), v(vT2)
    p('v_lshlrev_b32 %s, 4, %s' % (v(vL16), L))
    p('v_bfe_u32 %s, %s, 1, 1' % (t0, L))
    p('v_mov_b32 %s, 0x4444' % t1)
    p('v_mov_b32 %s, 0xeeee' % t2)
    p('v_cmp_eq_u32 vcc, 1, %s' % t0)
    p('v_cndmask_b32 %s, %s, %s, vcc' % (v(vIdxQ), t1, t2))
    p('v_bfe_u32 %s, %s, 3, 1' % (t0, L))
    p('v_cmp_eq_u32 vcc, 1, %s' % t0)
    p('v_cndmask_b32 %s, %s, %s, vcc' % (v(vIdxO), t1, t2))
    p('v_bfe_u32 %s, %s, 2, 2' % (t0, L))
    p('v_lshlrev_b32 %s, 1, %s' % (t0, t0))
    p('v_and_b32 %s, 1, %s' % (t1, L))
    p('v_add_u32 %s, %s, %s' % (t0, t0, t1))
    p('v_mul_u32_u24 %s, %d, %s' % (t0, M_RS, t0))
    p('v_lshrrev_b32 %s, 4, %s' % (t1, L))
    p('v_lshlrev_b32 %s, 5, %s' % (t1, t1))
    p('v_add_u32 %s, %s, %s' % (t0, t0, t1))
    p('v_bfe_u32 %s, %s, 1, 1' % (t1, L))
    p('v_lshlrev_b32 %s, 4, %s' % (t1, t1))
    p('v_add_u32 %s, %s, %s' % (t0, t0, t1))
    p('v_add_u32 %s, %d, %s' % (v(vMrd), M_IMG, t0))
    p('s_lshl_b32 %s, %s, 13' % (s(sTmp), s(sW)))
    p('s_add_u32 %s, %s, %d' % (s(sTmp), s(sTmp), W_L))
    p('v_add_u32 %s, %s, %s' % (v(vWrd0), s(sTmp), v(vL16)))
    p('v_add_u32 %s, 0x10000, %s' % (v(vWrd1), v(vWrd0)))
    p('v_and_b32 %s, 15, %s' % (t0, L))
    p('s_lshl_b32 %s, %s, 5' % (s(sTmp), s(sW)))
    p('v_add_u32 %s, %s, %s' % (t0, s(sTmp), t0))
    p('v_lshrrev_b32 %s, 4, %s' % (t1, L))
    p('v_lshlrev_b32 %s, 4, %s' % (t2, t0))
    p('v_lshl_add_u32 %s, %s, 2, %s' % (t2, t1, t2))
    p('v_add_u32 %s, %d, %s' % (v(vQwr), Q_IMG, t2))
    p('v_lshlrev_b32 %s, 5, %s' % (t2, t0))
    p('v_lshl_add_u32 %s, %s, 3, %s' % (t2, t1, t2))
    p('v_add_u32 %s, %d, %s' % (v(vKwr), K_IMG, t2))
    p('v_lshrrev_b32 %s, 2, %s' % (t0, L))
    p('v_and_b32 %s, 1, %s' % (t1, L))
    p('v_lshlrev_b32 %s, 4, %s' % (t2, t0))
    p('v_lshl_add_u32 %s, %s, 3, %s' % (t2, t1, t2))
    p('v_add_u32 %s, %d, %s' % (v(vQtr), Q_IMG, t2))
    p('v_and_b32 %s, 3, %s' % (t1, L))
    p('v_lshlrev_b32 %s, 5, %s' % (t2, t0))
    p('v_lshl_add_u32 %s, %s, 3, %s' % (t2, t1, t2))
    p('v_add_u32 %s, %d, %s' % (v(vKtr), K_IMG, t2))
    p('s_lshl_b32 %s, %s, 11' % (s(sTmp), s(sW)))
    p('s_add_u32 %s, %s, %d' % (s(sM0vx), s(sTmp), VX_L))
    p('s_add_u32 %s, %s, %d' % (s(sM0kx), s(sTmp), KX_L))
    p('v_add_u32 %s, %s, %s' % (v(vVX), s(sM0vx), v(vL16)))
    p('v_lshrrev_b32 %s, 5, %s' % (t0, L))
    p('v_lshlrev_b32 %s, 2, %s' % (t0, t0))
    p('v_bfe_u32 %s, %s, 2, 2' % (t1, L))
    p('v_add_u32 %s, %s, %s' % (t0, t0, t1))
    p('s_lshl_b32 %s, %s, 3' % (s(sTmp), s(sW)))
    p('v_add_u32 %s, %s, %s' % (t0, s(sTmp), t0))
    p('v_lshlrev_b32 %s, 13, %s' % (t0, t0))
    p('v_bfe_u32 %s, %s, 4, 1' % (t1, L))
    p('v_lshlrev_b32 %s, 2, %s' % (t1, t1))
    p('v_and_b32 %s, 3, %s' % (t2, L))
    p('v_add_u32 %s, %s, %s' % (t1, t1, t2))
    p('v_lshlrev_b32 %s, 4, %s' % (t1, t1))
    p('s_lshl_b32 %s, %s, 7' % (s(sTmp), s(sH)))
    p('v_add3_u32 %s, %s, %s, %s' % (v(vPst), t0, t1, s(sTmp)))
    p('v_bfe_u32 %s, %s, 2, 1' % (t0, L))
    p('s_and_b32 %s, %s, 2' % (s(sTmp), s(sW)))
    p('v_add_u32 %s, %s, %s' % (t0, s(sTmp), t0))
    p('v_lshlrev_b32 %s, 5, %s' % (t0, t0))
    p('v_add_u32 %s, %s, %s' % (t0, s(sH), t0))
    p('v_lshlrev_b32 %s, 6, %s' % (t0, t0))
    p('v_and_b32 %s, 3, %s' % (t1, L))
    p('v_lshlrev_b32 %s, 1, %s' % (t1, t1))
    p('s_and_b32 %s, %s, 1' % (s(sTmp), s(sW)))
    p('v_add_u32 %s, %s, %s' % (t1, s(sTmp), t1))
    p('v_lshl_add_u32 %s, %s, 3, %s' % (t0, t1, t0))
    p('v_bfe_u32 %s, %s, 4, 1' % (t1, L))
    p('v_lshl_add_u32 %s, %s, 2, %s' % (t0, t1, t0))
    p('v_and_b32 %s, 0x28, %s' % (t1, L))
    p('v_mov_b32 %s, 0x%x' % (t2, OOB))
    p('v_cmp_eq_u32 vcc, 0, %s' % t1)
    p('v_cndmask_b32 %s, %s, %s, vcc' % (v(vMst), t2, t0))
    p('v_lshrrev_b32 %s, 2, %s' % (t0, L))
    p('v_lshlrev_b32 %s, 7, %s' % (t0, t0))
    p('v_and_b32 %s, 3, %s' % (t1, L))
    p('v_lshl_add_u32 %s, %s, 4, %s' % (t0, t1, t0))
    p('s_and_b32 %s, %s, 1' % (s(sTmp), s(sW)))
    p('s_lshl_b32 %s, %s, 6' % (s(sTmp), s(sTmp)))
    p('v_add_u32 %s, %s, %s' % (v(vPld), s(sTmp), t0))
    p('s_lshl_b32 %s, %s, 11' % (s(sTmp), s(sW)))
    p('v_add_u32 %s, %s, %s' % (v(vMld), s(sTmp), v(vL16)))
    p('v_and_b32 %s, 3, %s' % (t0, L))
    p('v_mul_u32_u24 %s, %d, %s' % (t0, M_RS, t0))
    p('v_lshrrev_b32 %s, 2, %s' % (t1, L))
    p('v_lshl_add_u32 %s, %s, 3, %s' % (t0, t1, t0))
    p('s_lshl_b32 %s, %s, 8' % (s(sTmp), s(sW)))
    p('s_add_u32 %s, %s, %d' % (s(sTmp), s(sTmp), M_IMG))
    p('v_add_u32 %s, %s, %s' % (v(vMwr), s(sTmp), t0))
    p('v_and_b32 %s, 31, %s' % (t0, L))
    p('v_lshlrev_b32 %s, 6, %s' % (t0, t0))
    p('s_lshl_b32 %s, %s, 11' % (s(sTmp), s(sW)))
    p('v_add_u32 %s, %s, %s' % (t0, s(sTmp), t0))
    p('v_lshrrev_b32 %s, 5, %s' % (t1, L))
    p('v_mul_u32_u24 %s, 0x100, %s' % (t1, t1))
    p('v_lshlrev_b32 %s, 16, %s' % (t1, t1))
    p('v_add_u32 %s, %s, %s' % (v(vTouch), t0, t1))
    p('v_mov_b32 %s, -1' % v(vNeg1))
    p('s_mov_b32 %s, 0x3e0293ee' % s(sScale))
    p('s_mov_b32 %s, 0x3e0293ee' % s(sScale2))
    p('s_mov_b32 %s, 0x3e0293ee' % s(sScale2 + 1))
    p('s_mov_b32 %s, 0' % s(sNfail))

def chain_load_weights(p):
    vD = [24, 25, 26, 27]
    vE = [28, 29, 30, 31]
    vA0, vA1, vAo = 32, 33, 34
    L = v(vLane); t0, t1, t2 = v(vT0), v(vT1), v(vT2)
    p('s_load_dwordx4 s[48:51], s[0:1], %d' % KA_WQ)
    p('s_load_dwordx4 s[52:55], s[0:1], %d' % KA_WV)
    for q in range(4):
        p('v_bfe_u32 %s, %s, 4, 1' % (t0, L))
        p('v_lshlrev_b32 %s, 1, %s' % (t0, t0))
        p('v_and_b32 %s, 15, %s' % (t1, L))
        p('v_xor_b32 %s, %s, %s' % (t0, t0, t1))
        p('v_xor_b32 %s, %d, %s' % (t0, 4 * (q & 1) + 8 * (q >> 1), t0))
        p('v_lshlrev_b32 %s, 4, %s' % (t0, t0))
        p('v_lshrrev_b32 %s, 4, %s' % (t1, L))
        p('v_lshl_add_u32 %s, %s, 13, %s' % (v(vD[q]), t1, t0))
    p('s_lshr_b32 %s, %s, 1' % (s(sTmp), s(sW)))
    p('s_lshl_b32 %s, %s, 3' % (s(sTmp), s(sTmp)))
    for q in range(2):
        p('v_xor_b32 %s, %d, %s' % (t0, 4 * q, L))
        p('v_xor_b32 %s, %s, %s' % (t0, s(sTmp), t0))
        p('v_lshlrev_b32 %s, 4, %s' % (v(vE[q]), t0))
    for t, reg in ((0, vA0), (1, vA1)):
        p('v_bfe_u32 %s, %s, 5, 1' % (t0, L))
        p('v_lshlrev_b32 %s, 4, %s' % (t0, t0))
        p('v_bfe_u32 %s, %s, 4, 1' % (t1, L))
        p('v_lshl_add_u32 %s, %s, 2, %s' % (t0, t1, t0))
        p('v_bfe_u32 %s, %s, 3, 1' % (t1, L))
        p('v_lshl_add_u32 %s, %s, 3, %s' % (t0, t1, t0))
        p('v_bfe_u32 %s, %s, 2, 1' % (t1, L))
        p('v_add_u32 %s, %s, %s' % (t0, t0, t1))
        p('v_lshlrev_b32 %s, 8, %s' % (v(reg), t0))
        p('v_bfe_u32 %s, %s, 2, 1' % (t0, L))
        p('v_lshlrev_b32 %s, 1, %s' % (t0, t0))
        p('v_bfe_u32 %s, %s, 4, 1' % (t1, L))
        p('v_lshl_add_u32 %s, %s, 2, %s' % (t0, t1, t0))
        p('v_bfe_u32 %s, %s, 3, 1' % (t1, L))
        p('v_lshl_add_u32 %s, %s, 3, %s' % (t0, t1, t0))
        p('v_bfe_u32 %s, %s, 1, 1' % (t1, L))
        p('s_lshl_b32 %s, %s, 2' % (s(sTmp), s(sW)))
        p('s_add_u32 %s, %s, %d' % (s(sTmp), s(sTmp), 2 * t))
        p('v_add_u32 %s, %s, %s' % (t1, s(sTmp), t1))
        p('v_xor_b32 %s, %s, %s' % (t0, t0, t1))
        p('v_lshlrev_b32 %s, 4, %s' % (t0, t0))
        p('v_and_b32 %s, 1, %s' % (t1, L))
        p('v_lshl_add_u32 %s, %s, 3, %s' % (t0, t1, t0))
        p('v_add_u32 %s, %s, %s' % (v(reg), v(reg), t0))
    p('v_bfe_u32 %s, %s, 4, 1' % (t0, L))
    p('v_lshlrev_b32 %s, 4, %s' % (t0, t0))
    p('v_bfe_u32 %s, %s, 5, 1' % (t1, L))
    p('v_lshl_add_u32 %s, %s, 2, %s' % (t0, t1, t0))
    p('v_bfe_u32 %s, %s, 2, 1' % (t1, L))
    p('v_add_u32 %s, %s, %s' % (t0, t0, t1))
    p('v_lshlrev_b32 %s, 10, %s' % (v(vAo), t0))
    p('v_bfe_u32 %s, %s, 2, 1' % (t0, L))
    p('v_lshlrev_b32 %s, 2, %s' % (t0, t0))
    p('v_bfe_u32 %s, %s, 4, 1' % (t1, L))
    p('v_lshl_add_u32 %s, %s, 3, %s' % (t0, t1, t0))
    p('v_bfe_u32 %s, %s, 3, 1' % (t1, L))
    p('v_lshlrev_b32 %s, 1, %s' % (t1, t1))
    p('v_bfe_u32 %s, %s, 1, 1' % (t2, L))
    p('v_add_u32 %s, %s, %s' % (t1, t1, t2))
    p('s_lshl_b32 %s, %s, 2' % (s(sTmp), s(sW)))
    p('v_add_u32 %s, %s, %s' % (t1, s(sTmp), t1))
    p('v_xor_b32 %s, %s, %s' % (t0, t0, t1))
    p('v_lshlrev_b32 %s, 4, %s' % (t0, t0))
    p('v_and_b32 %s, 1, %s' % (t1, L))
    p('v_lshl_add_u32 %s, %s, 3, %s' % (t0, t1, t0))
    p('v_add_u32 %s, %s, %s' % (v(vAo), v(vAo), t0))
    p('s_waitcnt lgkmcnt(0)')
    for k, (lo, base) in enumerate(((48, 56), (50, 60), (52, 64), (54, 68))):
        p('s_mov_b32 s%d, s%d' % (base, lo))
        p('s_mov_b32 s%d, s%d' % (base + 1, lo + 1))
        p('s_mov_b32 s%d, 0x400000' % (base + 2))
        p('s_mov_b32 s%d, 0x20000' % (base + 3))
    p('s_cmp_lt_u32 %s, 2' % s(sW))
    p('s_cselect_b32 s72, s56, s60')
    p('s_cselect_b32 s73, s57, s61')
    p('s_mov_b32 s74, 0x400000')
    p('s_mov_b32 s75, 0x20000')
    slot_base = lambda n: [W_L + 3 * 32768, 0, W_L, W_L + 32768, W_L + 2 * 32768][n % 5]
    QKCH = [2, 3, 4, 5] + LDSCH
    def issue(n):
        base = slot_base(n)
        sOff, sM = sTmp, sTmp2
        if n < 4:
            p('s_lshl_b32 %s, %s, 5' % (s(sOff), s(sW)))
            p('s_add_u32 %s, %s, %d' % (s(sOff), s(sOff), 128 * n))
            p('s_lshl_b32 %s, %s, 13' % (s(sOff), s(sOff)))
            p('s_lshl_b32 %s, %s, 8' % (s(sTmp3), s(sH)))
            p('s_add_u32 %s, %s, %s' % (s(sOff), s(sOff), s(sTmp3)))
            p('s_lshl_b32 %s, %s, 13' % (s(sM), s(sW)))
            p('s_add_u32 %s, %s, %d' % (s(sM), s(sM), base))
            for k in range(8):
                p('s_mov_b32 m0, %s' % s(sM))
                p('s_add_u32 %s, %s, 1024' % (s(sM), s(sM)))
                p('buffer_load_dwordx4 %s, s[64:67], %s offen lds' % (v(vD[k & 3]), s(sOff)))
                p('s_add_u32 %s, %s, %d' % (s(sOff), s(sOff), 4 * 8192))
        elif n < 8:
            ec = n - 4
            p('s_lshl_b32 %s, %s, 7' % (s(sOff), s(sH)))
            p('s_lshl_b32 %s, %s, 3' % (s(sTmp3), s(sW)))
            p('s_add_u32 %s, %s, %s' % (s(sOff), s(sOff), s(sTmp3)))
            p('s_add_u32 %s, %s, %d' % (s(sOff), s(sOff), 32 * ec))
            p('s_lshl_b32 %s, %s, 10' % (s(sOff), s(sOff)))
            p('s_lshl_b32 %s, %s, 13' % (s(sM), s(sW)))
            p('s_add_u32 %s, %s, %d' % (s(sM), s(sM), base))
            for k in range(8):
                p('s_mov_b32 m0, %s' % s(sM))
                p('s_add_u32 %s, %s, 1024' % (s(sM), s(sM)))
                p('buffer_load_dwordx4 %s, s[68:71], %s offen lds' % (v(vE[k & 1]), s(sOff)))
                p('s_add_u32 %s, %s, 1024' % (s(sOff), s(sOff)))
        else:
            ch = QKCH[n - 8]
            p('s_and_b32 %s, %s, 1' % (s(sOff), s(sW)))
            p('s_lshl_b32 %s, %s, 5' % (s(sOff), s(sOff)))
            p('s_add_u32 %s, %s, %d' % (s(sOff), s(sOff), 64 * ch))
            p('s_lshl_b32 %s, %s, 13' % (s(sOff), s(sOff)))
            p('s_lshl_b32 %s, %s, 8' % (s(sTmp3), s(sH)))
            p('s_add_u32 %s, %s, %s' % (s(sOff), s(sOff), s(sTmp3)))
            p('s_lshl_b32 %s, %s, 13' % (s(sM), s(sW)))
            p('s_add_u32 %s, %s, %d' % (s(sM), s(sM), base))
            for k in range(8):
                p('s_mov_b32 m0, %s' % s(sM))
                p('s_add_u32 %s, %s, 1024' % (s(sM), s(sM)))
                p('buffer_load_dwordx4 %s, s[72:75], %s offen lds' % (v(vD[k & 3]), s(sOff)))
                p('s_add_u32 %s, %s, %d' % (s(sOff), s(sOff), 4 * 8192))
    def consume(n):
        base = slot_base(n)
        va0, va1, vao = 36, 37, 38
        if n < 4:
            p('v_add_u32 %s, %d, %s' % (v(va0), base, v(vA0)))
            p('v_add_u32 %s, %d, %s' % (v(va1), base, v(vA1)))
            for cc in range(2):
                c = 2 * n + cc
                for t in range(2):
                    for r in (0, 2, 4, 6):
                        off = (cc * 64 + 32 * (r >> 2) + 2 * ((r >> 1) & 1)) * 256
                        p('ds_read_b64_tr_b16 %s, %s offset:%d' % (a((c * 2 + t) * 8 + r, 2), v(va0 if t == 0 else va1), off))
        elif n < 8:
            ec = n - 4
            p('v_add_u32 %s, %d, %s' % (v(vao), base, v(vAo)))
            for wv in range(4):
                if wv < 3:
                    p('s_cmp_lg_u32 %s, %d' % (s(sW), wv))
                    p('s_cbranch_scc1 L_WO%d_%d' % (ec, wv + 1))
                for pp in range(4):
                    for r in (0, 2, 4, 6):
                        off = (8 * (r >> 2) + 2 * ((r >> 1) & 1)) * 1024 + pp * 256
                        p('ds_read_b64_tr_b16 %s, %s offset:%d' % (a(128 + (pp * 4 + (ec ^ wv)) * 8 + r, 2), v(vao), off))
                if wv < 3:
                    p('s_branch L_WO%d_E' % ec)
                    p.label('L_WO%d_%d' % (ec, wv + 1))
            p.label('L_WO%d_E' % ec)
        else:
            p('v_add_u32 %s, %d, %s' % (v(va0), base, v(vA0)))
            p('v_add_u32 %s, %d, %s' % (v(va1), base, v(vA1)))
            j = n - 8
            for T in range(4):
                mat, t = T >> 1, T & 1
                for r in (0, 2, 4, 6):
                    off = (mat * 64 + 32 * (r >> 2) + 2 * ((r >> 1) & 1)) * 256
                    dst = WQK + (j * 4 + T) * 8 + r if j < 4 else LAND + T * 8 + r
                    p('ds_read_b64_tr_b16 %s, %s offset:%d' % (v(dst, 2), v(va0 if t == 0 else va1), off))
    for n in range(5): issue(n)
    for n in range(16):
        inflight = min(16, n + 5) - n - 1
        p.wait(vm=8 * inflight)
        p('s_barrier')
        consume(n)
        p.wait(lgkm=0)
        p('s_barrier')
        if n >= 12:
            slot = n - 12
            r = vWrd0 if slot < 2 else vWrd1
            for T in range(4):
                for half in range(2):
                    off = slot * 32768 + T * 2048 + half * 1024 - (0 if slot < 2 else 65536)
                    p('ds_write_b128 %s, %s offset:%d' % (v(r), v(LAND + T * 8 + half * 4, 4), off))
        if n + 5 < 16: issue(n + 5)
    p.wait(lgkm=0)


def chain_init_globals(p):
    L = v(vLane); t0, t1, t2 = v(vT0), v(vT1), v(vT2)
    for r in range(4): p('v_mov_b32 %s, 0' % v(MF + r))
    p('s_lshl_b32 %s, %s, 13' % (s(sTmp), s(sH)))
    p('s_lshl_b32 %s, %s, 11' % (s(sTmp2), s(sW)))
    p('s_add_u32 %s, %s, %s' % (s(sTmp), s(sTmp), s(sTmp2)))
    p('s_add_u32 %s, %s, 0x%x' % (s(sTmp), s(sTmp), WS_PART))
    p('s_add_u32 %s, %s, 0x40000' % (s(sTmp2), s(sTmp)))
    for k in range(2):
        p('buffer_store_dwordx4 %s, %s, s[4:7], %s offen offset:%d' % (v(MF, 4), v(vL16), s(sTmp), k * 1024))
        p('buffer_store_dwordx4 %s, %s, s[4:7], %s offen offset:%d' % (v(MF, 4), v(vL16), s(sTmp2), k * 1024))
    for slot in range(3):
        p('s_mov_b32 %s, 0x%x' % (s(sTmp), WS_M + slot * 8192))
        p('buffer_store_dword %s, %s, s[4:7], %s offen' % (v(vNeg1), v(vMst), s(sTmp)))

def chain_init_mem0(p):
    L = v(vLane); t0, t1, t2 = v(vT0), v(vT1), v(vT2)
    p('s_load_dwordx2 s[48:49], s[0:1], %d' % KA_MEM0)
    p('v_lshrrev_b32 %s, 3, %s' % (t0, L))
    p('v_and_b32 %s, 7, %s' % (t1, L))
    p('v_lshlrev_b32 %s, 4, %s' % (t1, t1))
    p('s_lshl_b32 %s, %s, 8' % (s(sTmp), s(sW)))
    p('v_add_u32 %s, %s, %s' % (t1, s(sTmp), t1))
    p('v_lshl_add_u32 %s, %s, 10, %s' % (t2, t0, t1))
    p('v_mul_u32_u24 %s, %d, %s' % (t0, M_RS, t0))
    p('v_add_u32 %s, %s, %s' % (t0, t0, t1))
    p('v_add_u32 %s, %d, %s' % (t0, M_IMG, t0))
    p('s_waitcnt lgkmcnt(0)')
    p('s_mov_b32 s50, 8192')
    p('s_mov_b32 s51, 0x20000')
    p('buffer_load_dwordx4 %s, %s, s[48:51], 0 offen' % (v(MF + 4, 4), t2))
    p('buffer_load_dwordx4 %s, %s, s[48:51], 0 offen offset:128' % (v(MF + 8, 4), t2))
    p('ds_write_b128 %s, %s' % (t0, v(MF + 4, 4)))
    p('ds_write_b128 %s, %s offset:128' % (t0, v(MF + 8, 4)))
    p.wait(vm=0, lgkm=0)

def chain_init_comm(p):
    chain_init_globals(p)
    chain_init_mem0(p)

def chain_loop(p, nsteps=64, stamps=False, opt=()):
    L = v(vLane); t0, t1, t2 = v(vT0), v(vT1), v(vT2)
    SC = '' if 'nosc1' in opt else ' sc1'
    p('s_mov_b32 %s, 0' % s(sStep))
    p('s_mov_b32 %s, 0' % s(sFlagVal))
    p('s_mov_b32 %s, 1' % s(sTag))
    for P in range(2):
        p('s_mov_b32 %s, 0x%x' % (s(sPst + P), WS_PART + P * 4096))
    p('s_lshl_b32 %s, %s, 13' % (s(sPld), s(sH)))
    p('s_lshr_b32 %s, %s, 1' % (s(sTmp), s(sW)))
    p('s_lshl_b32 %s, %s, 12' % (s(sTmp), s(sTmp)))
    p('s_add_u32 %s, %s, %s' % (s(sPld), s(sPld), s(sTmp)))
    p('s_add_u32 %s, %s, 0x%x' % (s(sPld), s(sPld), WS_PART))
    p('s_mov_b32 %s, 0x%x' % (s(sMrd), WS_M))
    p('s_mov_b32 %s, 0x%x' % (s(sMwr), WS_M + 8192))
    p('s_mov_b32 %s, 0x%x' % (s(sMpo), WS_M + 16384))
    p('s_lshl_b32 %s, %s, 13' % (s(sTmp), s(sH)))
    p('s_lshl_b32 %s, %s, 11' % (s(sTmp2), s(sW)))
    p('s_add_u32 %s, %s, %s' % (s(sKX), s(sTmp), s(sTmp2)))
    p('s_add_u32 %s, %s, 0x%x' % (s(sVX), s(sKX), WS_VX))
    p('s_add_u32 %s, %s, 0x%x' % (s(sKXn), s(sTmp), 32 * 8192))
    p('s_lshl_b32 %s, %s, 12' % (s(sTmp), s(sH)))
    p('s_lshl_b32 %s, %s, 10' % (s(sTmp2), s(sW)))
    p('s_add_u32 %s, %s, %s' % (s(sTmp), s(sTmp), s(sTmp2)))
    LAG = 0 if 'pubW7' in opt else 32 * 4096
    p('s_add_u32 %s, %s, 0x%x' % (s(sKM), s(sTmp), WS_KM - LAG))
    p('s_add_u32 %s, %s, 0x%x' % (s(sVM), s(sTmp), WS_VM - LAG))
    p('s_lshl_b32 %s, %s, 7' % (s(sTmp), s(sH)))
    p('s_add_u32 %s, %s, 0x%x' % (s(sFlagOff), s(sTmp), WS_FLAG))
    p('s_lshl_b32 %s, %s, 10' % (s(sW10), s(sW)))
    p('v_or_b32 %s, %s, %s' % (t0, s(sW), L))
    p('v_mov_b32 %s, 0x%x' % (t1, OOB))
    p('v_cmp_eq_u32 vcc, 0, %s' % t0)
    p('v_cndmask_b32 %s, %s, 0, vcc' % (v(vFlagOff), t1))
    if 'kvflags' in opt:
        p('s_lshl_b32 %s, %s, 9' % (s(sTmp), s(sH)))
        p('s_add_u32 %s, %s, 0x%x' % (s(sKVbase), s(sTmp), WS_QFLAG))
        for tg in range(2):
            p('s_add_u32 %s, %s, %d' % (s(sKVoff), s(sKVbase), 128 * tg))
            p('s_mov_b32 %s, 0' % s(sCnt))
            p.label('L_KV0%d' % tg)
            p('buffer_load_dword %s, off, s[4:7], %s sc1' % (v(vKVf), s(sKVoff)))
            p.wait(vm=0)
            p('v_readfirstlane_b32 %s, %s' % (s(sTmp), v(vKVf)))
            p('s_add_u32 %s, %s, 1' % (s(sCnt), s(sCnt)))
            p('s_cmp_gt_u32 %s, %d' % (s(sCnt), SPIN_MAX * 4))
            p('s_cbranch_scc1 L_BAIL')
            p('s_cmp_lt_u32 %s, 1' % s(sTmp))
            p('s_cbranch_scc1 L_KV0%d' % tg)
            p.forget()
        p('s_add_u32 %s, %s, 256' % (s(sKVoff), s(sKVbase)))
        p('s_mov_b32 %s, 1' % s(sKVneed))
        p('s_mov_b32 %s, 0' % s(sCnt))
    p('s_mov_b32 m0, %s' % s(sM0kx))
    p('s_nop 0')
    p('buffer_load_dwordx4 %s, s[4:7], %s offen lds' % (v(vL16), s(sKX)))
    p('buffer_load_dwordx4 %s, s[4:7], %s offen offset:1024 lds' % (v(vL16), s(sKX)))
    PRE = [(0, 0), (0, 1), (0, 2), (0, 3), (1, 0), (1, 1)]
    if 'qfirst' in opt: PRE = [(0, 0), (0, 1), (1, 0), (1, 1), (2, 0), (2, 1)]
    REF = [(2, 0), (2, 1), (3, 0), (3, 1), (1, 2), (1, 3), (2, 2), (2, 3), (3, 2), (3, 3)]
    def rd_w(st, land, half): read_w(p, st[0] * 4 + st[1], land, half)
    for u in range(6):
        rd_w(PRE[u], u, 0); rd_w(PRE[u], u, 1)
    for r in range(0, 24, 2): p('v_mov_b64 %s, 0' % v(AQK + r, 2))
    p.wait(vm=0, lgkm=0)
    if stamps:
        for k in range(15): p('s_mov_b32 %s, 0' % s(sAcc + k))
        p.raw('    s_memtime %s' % s(sStamp, 2)); p.raw('    s_waitcnt lgkmcnt(0)')
    p('s_barrier')
    p('s_branch L_T0')
    p.label('L_STEP', align=6)
    p.forget()
    PUB = MF + 16
    VA = MF + 20
    G = MF; GB = MF + 24
    def gpoll(R):
        p('buffer_load_dwordx4 %s, %s, s[4:7], %s offen sc1' % (v(R, 4), v(vMld), s(sMrd)))
        p('buffer_load_dwordx4 %s, %s, s[4:7], %s offen offset:1024 sc1' % (v(R + 4, 4), v(vMld), s(sMrd)))
    def gcheck(R, fail):
        for k in range(2):
            for hh in range(2):
                p('ds_write_b64 %s, %s offset:%d' % (v(vMwr), v(R + 4 * k + 2 * hh, 2), hh * 4 * M_RS + k * 128))
        p('v_max3_u32 %s, %s, %s, %s' % (t0, v(R), v(R + 1), v(R + 2)))
        p('v_max3_u32 %s, %s, %s, %s' % (t1, v(R + 3), v(R + 4), v(R + 5)))
        p('v_max3_u32 %s, %s, %s, %s' % (t0, t0, v(R + 6), v(R + 7)))
        p('v_max_u32 %s, %s, %s' % (t0, t0, t1))
        p('v_cmp_eq_u32 vcc, -1, %s' % t0)
        p('s_cbranch_vccnz %s' % fail)
    DG = optint(opt, 'dg', 0)
    gpoll(G)
    for r in range(0, 24, 2): p('v_mov_b64 %s, 0' % v(AQK + r, 2))
    if DG:
        delay(p, DG - 48)
        gpoll(GB)
        p.wait(vm=2)
        gcheck(G, 'L_GFAILA')
    else:
        p.label('L_GCHECK')
        p.wait(vm=0)
        gcheck(G, 'L_GFAIL')
    p.label('L_GOK')
    lstamp(p, 14, stamps)
    def pub():
        p('buffer_store_dwordx4 %s, %s, s[4:7], %s offen%s' % (v(PUB, 4), v(vL16), s(sKM), SC))
        p('buffer_store_dwordx4 %s, %s, s[4:7], %s offen%s' % (v(VA, 4), v(vL16), s(sVM), SC))
    if 'nopub' not in opt and 'pubT0' not in opt and 'pubW7' not in opt: pub()
    p.wait(lgkm=0)
    stamp(p, 0, stamps)
    p('s_barrier')
    p.label('L_T0')
    p.forget()
    lstamp_save(p, stamps)
    lstamp(p, 0, stamps)
    if 'qfirst' not in opt:
        def rd_m(c): p('ds_read_b128 %s, %s offset:%d' % (v(MF + 4 * c, 4), v(vMrd), c * 128))
        DGx = optint(opt, 'dg', 0)
        for c in ((0, 1, 2, 3) if DGx else (0, 1, 2, 6)): rd_m(c)
        p('s_mov_b32 m0, %s' % s(sM0vx))
        p('v_mov_b32 %s, %s' % (v(vFlag), s(sFlagVal)))
        p('buffer_load_dwordx4 %s, s[4:7], %s offen lds' % (v(vL16), s(sVX)))
        p('buffer_load_dwordx4 %s, s[4:7], %s offen offset:1024 lds' % (v(vL16), s(sVX)))
        def far_loads():
            if 'samekv' in opt: pass
            elif 'notouch' not in opt: p('buffer_load_dword %s, %s, s[4:7], %s offen' % (v(vDummy2), v(vTouch), s(sKXn)))
            if 'kvflags' in opt: p('buffer_load_dword %s, off, s[4:7], %s sc1' % (v(vKVf), s(sKVoff)))
        if 'touchT0' in opt: far_loads()
        if 'pubT0' in opt: pub()
        lstamp(p, 1, stamps)
        def U(i): return (LDSCH[PRE[i][0]], PRE[i][1], v(LAND + i * 8, 8))
        def F(i): return (LDSCH[REF[i][0]], REF[i][1], v(LAND + (i % 6) * 8, 8))
        def R(c, T): return (c, T, v(WQK + ((c - 2) * 4 + T) * 8, 8))
        order = [U(0), U(1), U(2), U(3), U(4), U(5), R(2, 0), R(2, 1), F(0), R(3, 0), F(1), R(3, 1), F(2), R(4, 0), R(4, 1), F(3),
                 R(5, 0), R(5, 1), F(4), R(2, 2), F(5), R(2, 3), F(6), R(3, 2), F(7), R(3, 3), F(8), R(4, 2), F(9), R(5, 2), R(4, 3), R(5, 3)]
        def refill(j, half):
            def rf(): rd_w(REF[j], j % 6, half)
            return rf
        def rd_m_late():
            if DGx:
                p.wait(vm=len(p.vm))
                rd_m(6)
            else: rd_m(3)
        fill = [refill(0, 0), refill(0, 1), rd_m_late, refill(1, 0), refill(1, 1), lambda: rd_m(7),
                refill(2, 0), refill(2, 1), lambda: rd_m(4), refill(3, 0), refill(3, 1), lambda: rd_m(5)]
        for j in range(4, 10): fill += [refill(j, 0), refill(j, 1)]
        def fold_add(T): p('v_pk_add_f32 %s, %s, %s' % (v(AQK + 4 * T, 2), v(AQK + 4 * T, 2), v(AQK + 4 * T + 2, 2)))
        def fold_cvt(T): p('v_cvt_pk_bf16_f32 %s, %s, %s' % (v(AQK + 4 * T), v(AQK + 4 * T), v(AQK + 4 * T + 1)))
        def fold_wr(T):
            if T < 2: p('ds_write_b32 %s, %s offset:%d' % (v(vQwr), v(AQK + 4 * T), T * 256))
            else: p('ds_write2_b32 %s, %s, %s offset0:%d offset1:%d' % (v(vKwr), v(AQK + 4 * T), v(AQK + 4 * T), (T - 2) * 128, (T - 2) * 128 + 1))
        XFr = [LAND + 32, LAND + 40, LAND + 0, LAND + 8]
        QR = LAND + 16
        KR = LAND + 24
        def rd_x(ks, jt): p('ds_read_b128 %s, %s offset:%d' % (v(XFr[ks] + 4 * jt, 4), v(vL16), KX_L + jt * 4096 + ks * 1024))
        fill += [lambda: rd_x(0, 0), lambda: rd_x(0, 1), lambda: rd_x(1, 0), lambda: rd_x(1, 1),
                 lambda: fold_add(0), lambda: fold_add(1), lambda: fold_cvt(0), lambda: fold_cvt(1)]
        for n, (c, T, B) in enumerate(order):
            smf(p, AQK + 4 * T, MF + 4 * c, B, vIdxQ)
            if n < len(fill): fill[n]()
        stamp(p, 6, stamps)
        lstamp(p, 2, stamps)
        vq = [(c, t) for c in range(8) for t in range(2)]
        def vs(k=1):
            for _ in range(k):
                if vq and 'nov' in opt: vq.pop(0)
                elif vq:
                    c, t = vq.pop(0)
                    smf(p, AV + 4 * t, MF + 4 * c, a((c * 2 + t) * 8, 8), vIdxQ)
        fold_wr(0); fold_wr(1)
        p('buffer_store_dword %s, %s, s[4:7], %s offen%s' % (v(vFlag), v(vFlagOff), s(sFlagOff), SC))
        fold_add(2); fold_cvt(2); fold_wr(2)
        fold_add(3); fold_cvt(3); fold_wr(3)
        def small_vmem():
            if 'poisA' not in opt and 'poisB' not in opt: p('buffer_store_dword %s, %s, s[4:7], %s offen' % (v(vNeg1), v(vMst), s(sMpo)))
            if 'touchT0' not in opt: far_loads()
        if 'smallS' not in opt: small_vmem()
        vs(optint(opt, 'v3', 3))
        lstamp(p, 3, stamps)
        p.wait(lgkm=0)
        stamp(p, 1, stamps)
        p('s_barrier')
        lstamp(p, 4, stamps)
        SA = AQK
        def rd_q(ks):
            for hh in range(2): p('ds_read_b64_tr_b16 %s, %s offset:%d' % (v(QR + 4 * (ks & 1) + 2 * hh, 2), v(vQtr), ks * 512 + hh * 256))
        def rd_k(ks):
            for hh in range(2): p('ds_read_b64_tr_b16 %s, %s offset:%d' % (v(KR + 4 * (ks & 1) + 2 * hh, 2), v(vKtr), ks * 1024 + hh * 512))
        Q3 = [QR, QR + 4, AQK + 12, QR]
        K3 = [KR, KR + 4, KR, KR + 4]
        def rq(ks, hh): p('ds_read_b64_tr_b16 %s, %s offset:%d' % (v(Q3[ks] + 2 * hh, 2), v(vQtr), ks * 512 + hh * 256))
        def rk(ks, hh): p('ds_read_b64_tr_b16 %s, %s offset:%d' % (v(K3[ks] + 2 * hh, 2), v(vKtr), ks * 1024 + hh * 512))
        rq(0, 0); rq(0, 1); rk(0, 0); rk(0, 1); rq(1, 0); rq(1, 1); rk(1, 0); rk(1, 1); rq(2, 0); rq(2, 1)
        vs(optint(opt, 'v4', 2))
        VXF = LAND + 32
        def mx_(ks, jt): p('v_mfma_f32_16x16x32_bf16 %s, %s, %s, %s' % (v(SA + 4 * jt, 4), v(XFr[ks] + 4 * jt, 4), v(Q3[ks], 4), '0' if ks == 0 else v(SA + 4 * jt, 4)))
        def mm_(ks): p('v_mfma_f32_16x16x32_bf16 %s, %s, %s, %s' % (v(SA + 8, 4), v(K3[ks], 4), v(Q3[ks], 4), '0' if ks == 0 else v(SA + 8, 4)))
        rd_x(2, 0)
        mx_(0, 0); rd_x(2, 1)
        mx_(0, 1); rd_x(3, 0)
        mm_(0); rd_x(3, 1)
        mx_(1, 0); rk(2, 0); rk(2, 1)
        mx_(1, 1)
        rq(3, 0); rq(3, 1)
        mm_(1); rk(3, 0); rk(3, 1)
        mx_(2, 0)
        if 'smallS' in opt: small_vmem()
        mx_(2, 1)
        p.wait(vm=len(p.vm) - 2 - (0 if 'smallS' not in opt else 0))
        mm_(2)
        for t in range(2): p('ds_read_b128 %s, %s offset:%d' % (v(VXF + 4 * t, 4), v(vVX), t * 1024))
        mx_(3, 0); mx_(3, 1); mm_(3)
        stamp(p, 7, stamps)
        lstamp(p, 5, stamps)
        if 'pubW7' in opt:
            PUB = LAND + 24
            p('v_add_u32 %s, %s, %s' % (t2, s(sW10), v(vKtr)))
            for hh in range(2): p('ds_read_b64_tr_b16 %s, %s offset:%d' % (v(PUB + 2 * hh, 2), t2, hh * 512))
        vs(2)
    else:
        def rd_m(c): p('ds_read_b128 %s, %s offset:%d' % (v(MF + 4 * c, 4), v(vMrd), c * 128))
        for c in (0, 1, 6, 2): rd_m(c)
        p('s_mov_b32 m0, %s' % s(sM0vx))
        p('v_mov_b32 %s, %s' % (v(vFlag), s(sFlagVal)))
        p('buffer_load_dwordx4 %s, s[4:7], %s offen lds' % (v(vL16), s(sVX)))
        p('buffer_load_dwordx4 %s, s[4:7], %s offen offset:1024 lds' % (v(vL16), s(sVX)))
        vxn = p.vmissued
        if 'pubT0' in opt: pub()
        lstamp(p, 1, stamps)
        Ls = [LAND + 8 * k for k in range(6)]
        slot_of = {0: 0, 1: 1, 6: 2, 7: 3}
        def Lop(c, T, land): return (c, T, v(Ls[land], 8))
        def R(c, T): return (c, T, v(WQK + ((c - 2) * 4 + T) * 8, 8))
        def rw(c, T, land, half): return lambda: read_w(p, slot_of[c] * 4 + T, land, half)
        order = [Lop(0, 0, 0), Lop(0, 1, 1), Lop(1, 0, 2), Lop(1, 1, 3), Lop(6, 0, 4), Lop(6, 1, 5),
                 R(2, 0), R(2, 1), R(3, 0), R(3, 1), R(4, 0), R(4, 1), R(5, 0), R(5, 1), Lop(7, 0, 0), Lop(7, 1, 1),
                 Lop(0, 2, 2), Lop(0, 3, 3), Lop(1, 2, 4), Lop(1, 3, 5)] + [R(c, T) for c in range(2, 6) for T in (2, 3)] + \
                [Lop(6, 2, 0), Lop(6, 3, 1), Lop(7, 2, 2), Lop(7, 3, 3)]
        def fold_add(T): p('v_pk_add_f32 %s, %s, %s' % (v(AQK + 4 * T, 2), v(AQK + 4 * T, 2), v(AQK + 4 * T + 2, 2)))
        def fold_cvt(T): p('v_cvt_pk_bf16_f32 %s, %s, %s' % (v(AQK + 4 * T), v(AQK + 4 * T), v(AQK + 4 * T + 1)))
        def fold_wr(T):
            if T < 2: p('ds_write_b32 %s, %s offset:%d' % (v(vQwr), v(AQK + 4 * T), T * 256))
            else: p('ds_write2_b32 %s, %s, %s offset0:%d offset1:%d' % (v(vKwr), v(AQK + 4 * T), v(AQK + 4 * T), (T - 2) * 128, (T - 2) * 128 + 1))
        QF = Ls[4]
        XFr = [AQK, Ls[0], Ls[1], AQK]
        SA = Ls[2]
        K3 = [AQK + 8, AQK + 12, Ls[3] + 4, AQK + 8]
        def rd_x(ks, jt): p('ds_read_b128 %s, %s offset:%d' % (v(XFr[ks] + 4 * jt, 4), v(vL16), KX_L + jt * 4096 + ks * 1024))
        def rq(ks, hh): p('ds_read_b64_tr_b16 %s, %s offset:%d' % (v(QF + 4 * ks + 2 * hh, 2), v(vQtr), ks * 512 + hh * 256))
        def rk(ks, hh): p('ds_read_b64_tr_b16 %s, %s offset:%d' % (v(K3[ks] + 2 * hh, 2), v(vKtr), ks * 1024 + hh * 512))
        mark = {}
        def wr_q(T):
            fold_wr(T); mark['q'] = len(p.lgkm) - 1; mark['n'] = 0
        def b2a():
            n_after = mark['cnt']()
            p.wait(lgkm=n_after)
            p('s_barrier')
        lg_issued = [0]
        fill = {0: [lambda: rd_m(3)], 1: [lambda: rd_m(4)], 2: [rw(7, 0, 0, 0)], 3: [rw(7, 0, 0, 1)], 4: [lambda: rd_m(5)],
                5: [rw(7, 1, 1, 0)], 6: [rw(7, 1, 1, 1)], 7: [lambda: rd_m(7)],
                8: [rw(0, 2, 2, 0)], 9: [rw(0, 2, 2, 1)], 10: [rw(0, 3, 3, 0)], 11: [rw(0, 3, 3, 1)],
                12: [rw(1, 2, 4, 0)], 13: [rw(1, 2, 4, 1)], 14: [rw(1, 3, 5, 0)], 15: [rw(1, 3, 5, 1)],
                16: [rw(6, 2, 0, 0)], 17: [rw(6, 2, 0, 1)], 18: [rw(6, 3, 1, 0)], 19: [rw(6, 3, 1, 1), lambda: fold_add(0)],
                20: [rw(7, 2, 2, 0), lambda: fold_add(1)], 21: [rw(7, 2, 2, 1), lambda: fold_cvt(0)], 22: [rw(7, 3, 3, 0), lambda: fold_cvt(1)],
                23: [rw(7, 3, 3, 1)], 24: [lambda: fold_wr(0), lambda: fold_wr(1)],
                25: [lambda: rd_x(0, 0)], 26: [lambda: rd_x(0, 1)],
                28: ['B2A'], 29: [lambda: rq(0, 0), lambda: rq(0, 1)], 30: [lambda: rq(1, 0), lambda: rq(1, 1)], 31: [lambda: rd_x(1, 0), lambda: rd_x(1, 1)]}
        for n, (c, T, B) in enumerate(order):
            smf(p, AQK + 4 * T, MF + 4 * c, B, vIdxQ)
            for f in fill.get(n, []):
                if f == 'B2A':
                    p.wait(lgkm=2)
                    p('s_barrier')
                else: f()
        stamp(p, 6, stamps)
        lstamp(p, 2, stamps)
        vq = [(c, t) for c in range(8) for t in range(2)]
        def vs(k=1):
            for _ in range(k):
                if vq:
                    c, t = vq.pop(0)
                    smf(p, AV + 4 * t, MF + 4 * c, a((c * 2 + t) * 8, 8), vIdxQ)
        def mx_(ks, jt): p('v_mfma_f32_16x16x32_bf16 %s, %s, %s, %s' % (v(SA + 4 * jt, 4), v(XFr[ks] + 4 * jt, 4), v(QF + 4 * ks, 4), '0' if ks == 0 else v(SA + 4 * jt, 4)))
        def mm_(ks): p('v_mfma_f32_16x16x32_bf16 %s, %s, %s, %s' % (v(SA + 8, 4), v(K3[ks], 4), v(QF + 4 * ks, 4), '0' if ks == 0 else v(SA + 8, 4)))
        rq(2, 0); rq(2, 1); rq(3, 0); rq(3, 1); rd_x(2, 0); rd_x(2, 1)
        p('buffer_store_dword %s, %s, s[4:7], %s offen%s' % (v(vFlag), v(vFlagOff), s(sFlagOff), SC))
        mx_(0, 0); fold_add(2); fold_add(3)
        mx_(0, 1); fold_cvt(2); fold_cvt(3)
        fold_wr(2); fold_wr(3)
        rd_x(3, 0); rd_x(3, 1)
        mx_(1, 0); mx_(1, 1)
        p('buffer_store_dword %s, %s, s[4:7], %s offen' % (v(vNeg1), v(vMst), s(sMpo)))
        mx_(2, 0)
        if 'samekv' in opt: pass
        elif 'notouch' not in opt: p('buffer_load_dword %s, %s, s[4:7], %s offen' % (v(vDummy), v(vTouch), s(sKXn)))
        mx_(2, 1)
        if 'kvflags' in opt: p('buffer_load_dword %s, off, s[4:7], %s sc1' % (v(vKVf), s(sKVoff)))
        lstamp(p, 3, stamps)
        p.wait(lgkm=2)
        stamp(p, 1, stamps)
        p('s_barrier')
        lstamp(p, 4, stamps)
        rk(0, 0); rk(0, 1); rk(1, 0); rk(1, 1); rk(2, 0); rk(2, 1)
        mx_(3, 0); mx_(3, 1)
        VXF = Ls[0]
        p.wait(vm=p.vmissued - vxn)
        for t in range(2): p('ds_read_b128 %s, %s offset:%d' % (v(VXF + 4 * t, 4), v(vVX), t * 1024))
        vs(optint(opt, 'v4', 2))
        mm_(0); rk(3, 0); rk(3, 1)
        mm_(1); mm_(2); mm_(3)
        stamp(p, 7, stamps)
        lstamp(p, 5, stamps)
        vs(2)
    X = SA
    mx = vT0
    WA = MF
    p('v_max3_f32 %s, %s, %s, %s' % (v(mx), v(X), v(X + 1), v(X + 2)))
    p('v_max3_f32 %s, %s, %s, %s' % (v(vT1), v(X + 3), v(X + 4), v(X + 5)))
    p('v_max3_f32 %s, %s, %s, %s' % (v(mx), v(mx), v(X + 6), v(X + 7)))
    p('v_max3_f32 %s, %s, %s, %s' % (v(vT1), v(vT1), v(X + 8), v(X + 9)))
    p('v_max_f32 %s, %s, %s' % (v(mx), v(mx), v(vT1)))
    p('v_mov_b32 %s, %s' % (v(vT1), v(mx)))
    vs(1)
    p('v_permlane16_swap_b32 %s, %s' % (v(vT1), v(mx)))
    p('v_max_f32 %s, %s, %s' % (v(mx), v(mx), v(vT1)))
    p('v_mov_b32 %s, %s' % (v(vT1), v(mx)))
    vs(1)
    p('v_permlane32_swap_b32 %s, %s' % (v(vT1), v(mx)))
    p('v_max_f32 %s, %s, %s' % (v(mx), v(mx), v(vT1)))
    p('v_mul_f32 %s, %s, %s' % (v(mx), s(sScale), v(mx)))
    for r in range(0, 10, 2):
        p('v_pk_fma_f32 %s, %s, %s, %s op_sel_hi:[1,0,0] neg_lo:[0,0,1] neg_hi:[0,0,1]' % (v(X + r, 2), v(X + r, 2), s(sScale2, 2), v(mx, 2)))
    vs(len(vq))
    lstamp(p, 6, stamps)
    QFI = 'qfirst' in opt
    PX = LAND + (32 if QFI else 16)
    PM = PX + 4
    for r in range(0, 8): p('v_exp_f32 %s, %s' % (v(X + r), v(X + r)))
    for r in range(4): p('v_cvt_pk_bf16_f32 %s, %s, %s' % (v(PX + r), v(X + 2 * r), v(X + 2 * r + 1)))
    OA = LAND + (8 if QFI else 0)
    p('v_mfma_f32_16x16x32_bf16 %s, %s, %s, 0' % (v(OA, 4), v(VXF, 4), v(PX, 4)))
    p('v_exp_f32 %s, %s' % (v(X + 8), v(X + 8)))
    p('v_mfma_f32_16x16x32_bf16 %s, %s, %s, 0' % (v(OA + 4, 4), v(VXF + 4, 4), v(PX, 4)))
    p('v_exp_f32 %s, %s' % (v(X + 9), v(X + 9)))
    for t in range(2):
        p('v_cvt_pk_bf16_f32 %s, %s, %s' % (v(VA + 2 * t), v(AV + 4 * t), v(AV + 4 * t + 1)))
        p('v_cvt_pk_bf16_f32 %s, %s, %s' % (v(VA + 2 * t + 1), v(AV + 4 * t + 2), v(AV + 4 * t + 3)))
    p('v_cvt_pk_bf16_f32 %s, %s, %s' % (v(PM), v(X + 8), v(X + 9)))
    p('v_cvt_pk_bf16_f32 %s, %s, %s' % (v(PM + 1), v(X + 8), v(X + 9)))
    stamp(p, 8, stamps)
    lstamp(p, 7, stamps)
    p('v_pk_add_f32 %s, %s, %s' % (v(X, 2), v(X, 2), v(X + 2, 2)))
    p('v_pk_add_f32 %s, %s, %s' % (v(X + 4, 2), v(X + 4, 2), v(X + 6, 2)))
    p('v_mfma_f32_16x16x16_bf16 %s, %s, %s, %s' % (v(OA, 4), v(VA, 2), v(PM, 2), v(OA, 4)))
    p('v_pk_add_f32 %s, %s, %s' % (v(X, 2), v(X, 2), v(X + 8, 2)))
    p('v_pk_add_f32 %s, %s, %s' % (v(X, 2), v(X, 2), v(X + 4, 2)))
    p('v_mfma_f32_16x16x16_bf16 %s, %s, %s, %s' % (v(OA + 4, 4), v(VA + 2, 2), v(PM, 2), v(OA + 4, 4)))
    p('v_add_f32 %s, %s, %s' % (v(X), v(X), v(X + 1)))
    p('v_mov_b32 %s, %s' % (v(X + 1), v(X)))
    p('v_mov_b64 %s, 0' % v(WA + 0, 2)); p('v_mov_b64 %s, 0' % v(WA + 2, 2))
    p('v_permlane16_swap_b32 %s, %s' % (v(X + 1), v(X)))
    p('v_add_f32 %s, %s, %s' % (v(X), v(X), v(X + 1)))
    p('v_mov_b32 %s, %s' % (v(X + 1), v(X)))
    p('v_mov_b64 %s, 0' % v(WA + 4, 2)); p('v_mov_b64 %s, 0' % v(WA + 6, 2))
    p('v_permlane32_swap_b32 %s, %s' % (v(X + 1), v(X)))
    p('v_add_f32 %s, %s, %s' % (v(X), v(X), v(X + 1)))
    p('v_rcp_f32 %s, %s' % (v(vT0), v(X)))
    p('v_mov_b64 %s, 0' % v(WA + 8, 2))
    OF = LAND + 32
    for t in range(2):
        for hh in range(2):
            p('v_pk_mul_f32 %s, %s, %s op_sel_hi:[1,0]' % (v(OA + 4 * t + 2 * hh, 2), v(OA + 4 * t + 2 * hh, 2), v(vT0, 2)))
    for t in range(2):
        for hh in range(2):
            p('v_cvt_pk_bf16_f32 %s, %s, %s' % (v(OF + 2 * t + hh), v(OA + 4 * t + 2 * hh), v(OA + 4 * t + 2 * hh + 1)))
    p('ds_write_b128 %s, %s' % (v(vVX), v(OF, 4)))
    lstamp(p, 8, stamps)
    XA = LAND + (0 if QFI else 8)
    p('v_mov_b64 %s, 0' % v(WA + 10, 2)); p('v_mov_b64 %s, 0' % v(WA + 12, 2)); p('v_mov_b64 %s, 0' % v(WA + 14, 2))
    smf(p, WA + 0, OF, a(128 + 0 * 32, 8), vIdxO)
    p('v_xor_b32 %s, 0x800, %s' % (v(XA), v(vVX)))
    smf(p, WA + 4, OF, a(128 + 1 * 32, 8), vIdxO)
    p('v_xor_b32 %s, 0x1000, %s' % (v(XA + 1), v(vVX)))
    smf(p, WA + 8, OF, a(128 + 2 * 32, 8), vIdxO)
    p('v_xor_b32 %s, 0x1800, %s' % (v(XA + 2), v(vVX)))
    if 'pubW7' in opt:
        p('buffer_store_dwordx4 %s, %s, s[4:7], %s offen%s' % (v(PUB, 4), v(vL16), s(sKM), SC))
        p('buffer_store_dwordx4 %s, %s, s[4:7], %s offen%s' % (v(VA, 4), v(vL16), s(sVM), SC))
    else: p('v_add_u32 %s, %s, %s' % (v(XA + 3), s(sW10), v(vKtr)))
    p('s_cmp_eq_u32 %s, %d' % (s(sStep), nsteps - 1))
    p.wait(lgkm=0)
    stamp(p, 2, stamps)
    p('s_barrier')
    lstamp(p, 9, stamps)
    for j in range(1, 4): p('ds_read_b128 %s, %s' % (v(OF + 4 * j, 4), v(XA + j - 1)))
    if 'pubW7' not in opt:
        for hh in range(2): p('ds_read_b64_tr_b16 %s, %s offset:%d' % (v(PUB + 2 * hh, 2), v(XA + 3), hh * 512))
    p('s_cbranch_scc1 L_DONE')
    smf(p, WA + 12, OF, a(128 + 3 * 32, 8), vIdxO)
    def kxdma():
        if 'samekv' not in opt: p('s_add_u32 %s, %s, %d' % (s(sKX), s(sKX), 32 * 8192))
        p('s_mov_b32 m0, %s' % s(sM0kx))
        if 'samekv' not in opt: p('s_add_u32 %s, %s, %d' % (s(sVX), s(sVX), 32 * 8192))
        if 'nokxdma' not in opt:
            p('buffer_load_dwordx4 %s, s[4:7], %s offen lds' % (v(vL16), s(sKX)))
            p('buffer_load_dwordx4 %s, s[4:7], %s offen offset:1024 lds' % (v(vL16), s(sKX)))
    if 'kxlate' not in opt: kxdma()
    E = LAND + (8 if QFI else 16)
    def pack(P, k):
        q = 2 * P + (k >> 1); hh = k & 1
        p('v_cvt_pk_bf16_f32 %s, %s, %s' % (v(E + 4 * P + k), v(WA + 4 * q + 2 * hh), v(WA + 4 * q + 2 * hh + 1)))
    for j in range(1, 4):
        for q in (0, 1): smf(p, WA + 4 * q, OF + 4 * j, a(128 + (q * 4 + j) * 8, 8), vIdxO)
    pend = [lambda k=k: pack(0, k) for k in range(4)]
    pend += [lambda: p('v_bfi_b32 %s, 1, %s, %s' % (v(E), s(sTag), v(E))),
             lambda: p('buffer_store_dwordx4 %s, %s, s[4:7], %s offen' % (v(E, 4), v(vPst), s(sPst)))]
    seq = [(q, j) for j in range(1, 4) for q in (2, 3)]
    for n, (q, j) in enumerate(seq):
        smf(p, WA + 4 * q, OF + 4 * j, a(128 + (q * 4 + j) * 8, 8), vIdxO)
        if n >= 3: pend.pop(0)()
    while pend: pend.pop(0)()
    for k in range(4): pack(1, k)
    p('v_bfi_b32 %s, 1, %s, %s' % (v(E + 4), s(sTag), v(E + 4)))
    p('buffer_store_dwordx4 %s, %s, s[4:7], %s offen' % (v(E + 4, 4), v(vPst), s(sPst + 1)))
    stamp(p, 3, stamps)
    lstamp(p, 10, stamps)
    PR = MF
    SEL = MF + 8
    RA = MF + 12
    def gen_sel():
        p('v_bfe_u32 %s, %s, 4, 4' % (t0, v(vL16)))
        p('v_and_b32 %s, 16, %s' % (t1, v(vL16)))
        p('v_mov_b32 %s, 0x3f80' % t2)
        p('v_lshlrev_b32 %s, %s, %s' % (t2, t1, t2))
        p('v_lshrrev_b32 %s, 1, %s' % (t0, t0))
        for q in range(4):
            p('v_cmp_eq_u32 %s, %d, %s' % (s(sMaskA + 2 * (q & 1), 2), q, t0))
            p('v_mov_b32 %s, 0' % v(SEL + q))
            if q & 1:
                p('v_cndmask_b32 %s, %s, %s, %s' % (v(SEL + q - 1), v(SEL + q - 1), t2, s(sMaskA, 2)))
                p('v_cndmask_b32 %s, %s, %s, %s' % (v(SEL + q), v(SEL + q), t2, s(sMaskA + 2, 2)))
    if 'kxlate' in opt: kxdma()
    gen_sel()
    if 'landlate' not in opt:
        for u in range(6):
            rd_w(PRE[u], u, 0); rd_w(PRE[u], u, 1)
    delay(p, optint(opt, 'd1', 0))
    if optint(opt, 'd1s', 0):
        p('s_cmp_lt_u32 %s, 2' % s(sW))
        p('s_cbranch_scc1 L_D1S')
        delay(p, optint(opt, 'd1s', 0))
        p.label('L_D1S')
    lstamp(p, 11, stamps)
    PB = MF + 24
    DP = optint(opt, 'dp', 0)
    def ppoll(R):
        for k in range(2):
            p('buffer_load_dwordx4 %s, %s, s[4:7], %s offen offset:%d sc1' % (v(R + 4 * k, 4), v(vPld), s(sPld), k * 2048))
    def pcheck(R, fail):
        p('v_mfma_f32_16x16x32_bf16 %s, %s, %s, 0' % (v(RA, 4), v(R, 4), v(SEL, 4)))
        p('v_bitop3_b32 %s, -1, %s, %s bitop3:0x90' % (t0, v(R), s(sTag)))
        p('v_bitop3_b32 %s, %s, %s, %s bitop3:0x90' % (t0, t0, v(R + 4), s(sTag)))
        p('v_mfma_f32_16x16x32_bf16 %s, %s, %s, %s' % (v(RA, 4), v(R + 4, 4), v(SEL, 4), v(RA, 4)))
        p('v_and_b32 %s, 1, %s' % (t0, t0))
        p('v_cmp_eq_u32 vcc, 0, %s' % t0)
        p('s_cbranch_vccnz %s' % fail)
    ppoll(PR)
    if 'landlate' in opt:
        for u in range(6):
            rd_w(PRE[u], u, 0); rd_w(PRE[u], u, 1)
    if 'kvflags' in opt:
        p('v_readfirstlane_b32 %s, %s' % (s(sTmp), v(vKVf)))
        p('s_cmp_ge_u32 %s, %s' % (s(sTmp), s(sKVneed)))
        p('s_cbranch_scc0 L_KVWAIT')
        p.label('L_KVOK')
        p('s_add_u32 %s, %s, 3' % (s(sTmp), s(sStep)))
        p('s_lshr_b32 %s, %s, 2' % (s(sKVneed), s(sTmp)))
        p('s_add_u32 %s, %s, 1' % (s(sKVneed), s(sKVneed)))
        p('s_cmp_lt_u32 %s, 64' % s(sTmp))
        p('s_cselect_b32 %s, %s, 0' % (s(sKVneed), s(sKVneed)))
        p('s_and_b32 %s, %s, 3' % (s(sTmp), s(sTmp)))
        p('s_lshl_b32 %s, %s, 7' % (s(sTmp), s(sTmp)))
        p('s_add_u32 %s, %s, %s' % (s(sKVoff), s(sKVbase), s(sTmp)))
    if 'pubW7' not in opt: p('s_mov_b32 %s, %s' % (s(sFlagVal), s(sStep)))
    p('s_add_u32 %s, %s, 1' % (s(sStep), s(sStep)))
    if 'pubW7' in opt: p('s_mov_b32 %s, %s' % (s(sFlagVal), s(sStep)))
    p('s_lshr_b32 %s, %s, 1' % (s(sTmp), s(sStep)))
    p('s_and_b32 %s, %s, 1' % (s(sTmp), s(sTmp)))
    p('s_xor_b32 %s, %s, 1' % (s(sTagN), s(sTmp)))
    for P in range(2): p('s_xor_b32 %s, %s, 0x40000' % (s(sPst + P), s(sPst + P)))
    p('s_mov_b32 %s, %s' % (s(sTmp), s(sMrd)))
    p('s_mov_b32 %s, %s' % (s(sMrd), s(sMwr)))
    p('s_mov_b32 %s, %s' % (s(sMwrOld), s(sMwr)))
    p('s_mov_b32 %s, %s' % (s(sMwr), s(sMpo)))
    p('s_mov_b32 %s, %s' % (s(sMpo), s(sTmp)))
    p('s_add_u32 %s, %s, %d' % (s(sKXn), s(sKXn), 32 * 8192))
    p('s_add_u32 %s, %s, %d' % (s(sKM), s(sKM), 32 * 4096))
    p('s_add_u32 %s, %s, %d' % (s(sVM), s(sVM), 32 * 4096))
    p('s_mov_b32 %s, 0' % s(sCnt))
    if 'steprt' in opt:
        if 'early' in opt:
            p.raw('    s_sub_u32 s80, %s, 1' % s(sStep))
            p.raw('    s_cmp_lt_u32 s80, 6')
            p.raw('    s_cbranch_scc0 L_STEPRT')
        else:
            p.raw('    s_ff1_i32_b32 s80, %s' % s(sStep))
            p.raw('    s_lshl_b32 s81, 1, s80')
            p.raw('    s_cmp_eq_u32 s81, %s' % s(sStep))
            p.raw('    s_cbranch_scc0 L_STEPRT')
        p.raw('    s_or_b32 s81, %s, %s' % (s(sH), s(sW)))
        p.raw('    s_cmp_eq_u32 s81, 0')
        p.raw('    s_cbranch_scc0 L_STEPRT')
        p.raw('    s_memrealtime s[82:83]')
        p.raw('    s_load_dwordx2 s[84:85], s[0:1], %d' % KA_DBG)
        p.raw('    s_waitcnt lgkmcnt(0)')
        p.raw('    s_lshl_b32 s80, s80, 2')
        p.raw('    s_add_u32 s80, s80, 36')
        p.raw('    v_mov_b32 %s, s82' % t0)
        p.raw('    v_mov_b32 %s, s80' % t1)
        p.raw('    global_store_dword %s, %s, s[84:85]' % (t1, t0))
        p.raw('L_STEPRT:')
    if DP:
        delay(p, max(DP - 130, 0))
        ppoll(PB)
        p.wait(vm=2)
        pcheck(PR, 'L_PFAILA')
    else:
        p.label('L_PCHECK')
        p.wait(vm=0)
        pcheck(PR, 'L_PFAIL')
    p.label('L_POK')
    stamp(p, 11, stamps)
    lstamp(p, 12, stamps)
    if 'poisA' in opt: p('buffer_store_dword %s, %s, s[4:7], %s offen' % (v(vNeg1), v(vMst), s(sMwr)))
    p('s_mov_b32 %s, %s' % (s(sTag), s(sTagN)))
    p('s_xor_b32 %s, %s, 0x40000' % (s(sPld), s(sPld)))
    p('v_permlane32_swap_b32 %s, %s' % (v(RA), v(RA + 1)))
    p('v_permlane32_swap_b32 %s, %s' % (v(RA + 2), v(RA + 3)))
    p('v_add_f32 %s, %s, %s' % (v(RA), v(RA), v(RA + 1)))
    p('v_add_f32 %s, %s, %s' % (v(RA + 2), v(RA + 2), v(RA + 3)))
    p('v_permlane16_swap_b32 %s, %s' % (v(RA), v(RA + 2)))
    p('v_add_f32 %s, %s, %s' % (v(RA), v(RA), v(RA + 2)))
    p('v_mov_b32 %s, %s' % (v(RA + 1), v(RA)))
    p('v_permlane32_swap_b32 %s, %s' % (v(RA), v(RA + 1)))
    p('v_cvt_pk_bf16_f32 %s, %s, %s' % (v(RA), v(RA), v(RA + 1)))
    p('v_min_u32 %s, 0xfffffffe, %s' % (v(RA), v(RA)))
    p('buffer_store_dword %s, %s, s[4:7], %s offen' % (v(RA), v(vMst), s(sMwrOld)))
    if 'poisB' in opt: p('buffer_store_dword %s, %s, s[4:7], %s offen' % (v(vNeg1), v(vMst), s(sMwr)))
    stamp(p, 4, stamps)
    lstamp(p, 13, stamps)
    delay(p, optint(opt, 'd2', 0))
    if optint(opt, 'd2s', 0):
        p('s_cmp_lt_u32 %s, 2' % s(sW))
        p('s_cbranch_scc1 L_STEP')
        delay(p, optint(opt, 'd2s', 0))
    p('s_branch L_STEP')
    if 'kvflags' in opt:
        p.label('L_KVWAIT')
        p('s_add_u32 %s, %s, 1' % (s(sCnt), s(sCnt)))
        p('s_cmp_gt_u32 %s, %d' % (s(sCnt), SPIN_MAX * 4))
        p('s_cbranch_scc1 L_BAIL')
        p.raw('    buffer_load_dword %s, off, s[4:7], %s sc1' % (v(vKVf), s(sKVoff)))
        p.raw('    s_waitcnt vmcnt(0)')
        p.raw('    s_nop 0')
        p.raw('    v_readfirstlane_b32 %s, %s' % (s(sTmp), v(vKVf)))
        p.raw('    s_nop 1')
        p('s_cmp_ge_u32 %s, %s' % (s(sTmp), s(sKVneed)))
        p('s_cbranch_scc0 L_KVWAIT')
        p('s_mov_b32 %s, 0' % s(sCnt))
        p('s_branch L_KVOK')
    def countfail(inc):
        p('s_add_u32 %s, %s, 1' % (s(sCnt), s(sCnt)))
        p('s_add_u32 %s, %s, 0x%x' % (s(sNfail), s(sNfail), inc))
        p('s_cmp_lt_u32 %s, %d' % (s(sCnt), SPIN_MAX))
        p('s_cbranch_scc0 L_BAIL')
    if DG:
        p.label('L_GFAILA')
        p.forget()
        p('s_add_u32 %s, %s, 1' % (s(sNfail), s(sNfail)))
        p.label('L_GCHECKB')
        p.wait(vm=0)
        gcheck(GB, 'L_GFAILB')
        p('s_branch L_GOK')
        p.label('L_GFAILB')
        countfail(1)
        p('s_mov_b64 exec, vcc')
        gpoll(GB)
        p('s_mov_b64 exec, -1')
        p('s_branch L_GCHECKB')
    else:
        p.label('L_GFAIL')
        p.forget()
        countfail(1)
        p('s_mov_b64 exec, vcc')
        gpoll(G)
        p('s_mov_b64 exec, -1')
        p('s_branch L_GCHECK')
    if DP:
        p.label('L_PFAILA')
        p.forget()
        p('s_add_u32 %s, %s, 0x10000' % (s(sNfail), s(sNfail)))
        p.label('L_PCHECKB')
        p.wait(vm=0)
        p('s_nop 7')
        pcheck(PB, 'L_PFAILB')
        p('s_nop 3')
        p('s_branch L_POK')
        p.label('L_PFAILB')
        countfail(0x10000)
        p('s_mov_b64 exec, vcc')
        ppoll(PB)
        p('s_mov_b64 exec, -1')
        p('s_branch L_PCHECKB')
    else:
        p.label('L_PFAIL')
        p.forget()
        countfail(0x10000)
        p('s_mov_b64 exec, vcc')
        ppoll(PR)
        p('s_mov_b64 exec, -1')
        p('s_branch L_PCHECK')
```

```python
import sys
from common import *
import chain, ln1, qkv, p2
NAME = 'sequential_preLN__memory_aug_recurrent_mem_tr__glu_gated_bilinear__prompt_kernel'
HEADER = open('sequential_preLN__memory_aug_recurrent_mem_tr__glu_gated_bilinear__prompt.s.ref').read().split('; Override launch')[0]
DBG_REG, DBG_LNA, DBG_LNB, DBG_BAIL = 192, 196, 200, 208
sXCC, sTK = 92, 93
SPIN = 2000000

def wait_dbg(p, off, need, tag, cnt=94, vr=120):
    p('s_load_dwordx2 s[96:97], s[0:1], %d' % KA_DBG)
    p('v_mov_b32 v%d, %d' % (vr, off))
    p('s_mov_b32 s%d, 0' % cnt)
    p('s_waitcnt lgkmcnt(0)')
    p.label('L_WD' + tag)
    p('global_load_dword v%d, v%d, s[96:97] sc1' % (vr + 1, vr))
    p.wait(vm=0)
    p('v_readfirstlane_b32 s95, v%d' % (vr + 1))
    p('s_add_u32 s%d, s%d, 1' % (cnt, cnt))
    p('s_cmp_gt_u32 s%d, %d' % (cnt, SPIN))
    p('s_cbranch_scc1 L_GBAIL')
    p('s_cmp_ge_u32 s95, %d' % need)
    p('s_cbranch_scc1 L_WDOK' + tag)
    p('s_sleep 4')
    p('s_branch L_WD' + tag)
    p.label('L_WDOK' + tag)
    p.forget()

def add_dbg(p, off, tag, wait=True):
    if wait:
        p.wait(vm=0)
        p('s_barrier')
    p('s_load_dwordx2 s[96:97], s[0:1], %d' % KA_DBG)
    p('v_mov_b32 v120, %d' % off)
    p('v_mov_b32 v121, 1')
    p('v_or_b32 v122, s3, v0')
    p('s_waitcnt lgkmcnt(0)')
    p('v_cmp_eq_u32 vcc, 0, v122')
    p('s_and_saveexec_b64 s[98:99], vcc')
    p('s_cbranch_execz L_AD' + tag)
    p('global_atomic_add v120, v121, s[96:97]')
    p.label('L_AD' + tag)
    p('s_mov_b64 exec, s[98:99]')

def zero_p2_flags(p):
    p('s_lshl_b32 s20, s%d, 22' % p2.sX)
    p('s_add_u32 s20, s20, 0x%x' % (WS_P2 + P2_FL))
    p('s_lshl_b32 s21, s%d, 2' % p2.sC)
    p('s_add_u32 s20, s20, s21')
    p('v_lshlrev_b32 v120, 7, v0')
    p('v_mov_b32 v121, 0x%x' % OOB)
    p('v_cmp_gt_u32 vcc, 3, v0')
    p('v_cndmask_b32 v120, v121, v120, vcc')
    p('v_mov_b32 v121, 0')
    p('buffer_store_dword v121, v120, s[4:7], s20 offen')

RT = False
RTD = False
def rtd(p, word, cond_xcc, cond_tk=0):
    if not RTD: return
    lab = 'L_RTD%d' % word
    p.raw('    s_cmp_eq_u32 s%d, %d' % (sXCC, cond_xcc))
    p.raw('    s_cbranch_scc0 %s' % lab)
    p.raw('    s_cmp_eq_u32 s%d, %d' % (sTK, cond_tk))
    p.raw('    s_cbranch_scc0 %s' % lab)
    p.raw('    s_memrealtime s[84:85]')
    p.raw('    s_load_dwordx2 s[86:87], s[0:1], %d' % KA_DBG)
    p.raw('    s_waitcnt lgkmcnt(0)')
    p.raw('    v_mov_b32 v123, s84')
    p.raw('    v_mov_b32 v124, %d' % (4 * word))
    p.raw('    global_store_dword v124, v123, s[86:87]')
    p.raw('%s:' % lab)
def rts(p, k):
    if not RT: return
    p.raw('    s_memrealtime s[84:85]')
    p.raw('    s_waitcnt lgkmcnt(0)')
    p.raw('    s_lshl_b32 s83, s%d, 5' % sXCC)
    p.raw('    s_add_u32 s83, s83, s%d' % sTK)
    p.raw('    s_lshl_b32 s83, s83, 6')
    p.raw('    s_add_u32 s83, s83, 0x%x' % (WS_FLAG + 8192 + 4 * k))
    p.raw('    v_mov_b32 v123, s84')
    p.raw('    buffer_store_dword v123, off, s[4:7], s83')
def build(opt=(), stamps=False):
    global RT, RTD
    RT = 'rt' in opt
    RTD = 'rtdbg' in opt
    p2.rtd = rtd if 'steprt' not in opt else (lambda pp, w, x, t=0: rtd(pp, 15, x, t) if w == 10 else None)
    p2.rts = rts
    p2.WBL2 = 'wbl2' in opt
    p2.PST = 'pst' in opt
    p = Prog()
    p.raw(HEADER.rstrip('\n'))
    p.raw('; @launch grid=(256,1,1) block=(256,1,1) lds=163840')
    p.raw('.amdgcn_target "amdgcn-amd-amdhsa--gfx950"\n.text\n.globl %s\n.p2align 8\n.type %s,@function\n%s:' % (NAME, NAME, NAME))
    p('s_cmp_ge_u32 s2, 256')
    p('s_cbranch_scc1 L_EXIT')
    p('s_getreg_b32 s%d, hwreg(HW_REG_XCC_ID, 0, 4)' % sXCC)
    p('s_load_dwordx2 s[8:9], s[0:1], %d' % KA_DBG)
    p('s_and_b32 s%d, s%d, 7' % (sXCC, sXCC))
    p('s_add_u32 s10, s%d, 2' % sXCC)
    p('s_mul_i32 s11, s10, 43')
    p('s_lshr_b32 s11, s11, 7')
    p('s_mul_i32 s12, s11, 3')
    p('s_sub_u32 s10, s10, s12')
    p('s_lshl_b32 s10, s10, 2')
    p('s_lshl_b32 s11, s11, 6')
    p('s_add_u32 s10, s10, s11')
    p('s_cmp_eq_u32 s%d, 0' % sXCC)
    p('s_cselect_b32 s10, 0, s10')
    p('s_cmp_eq_u32 s%d, 7' % sXCC)
    p('s_cselect_b32 s10, 4, s10')
    p('v_mov_b32 v2, s10')
    p('v_mov_b32 v3, 1')
    p('s_waitcnt lgkmcnt(0)')
    p('v_cmp_eq_u32 vcc, 0, v0')
    p('s_and_saveexec_b64 s[10:11], vcc')
    p('s_cbranch_execz L_NOTICKET')
    p('global_atomic_add v4, v2, v3, s[8:9] sc0')
    p.wait(vm=0)
    p('v_mov_b32 v2, 0')
    p('ds_write_b32 v2, v4')
    p.wait(lgkm=0)
    p.label('L_NOTICKET')
    p('s_mov_b64 exec, s[10:11]')
    p('s_barrier')
    p('v_mov_b32 v2, 0')
    p('ds_read_b32 v4, v2')
    p.wait(lgkm=0)
    p('v_readfirstlane_b32 s%d, v4' % sTK)
    p('s_barrier')
    p('s_cmp_ge_u32 s%d, 32' % sTK)
    p('s_cbranch_scc1 L_EXIT')
    p('s_cmp_eq_u32 s%d, 0' % sXCC)
    p('s_cbranch_scc0 L_WORKER')
    p('s_mov_b32 s%d, s%d' % (chain.sH, sTK))
    chain.chain_setup(p)
    rts(p, 0)
    rtd(p, 2, 0)
    p('s_lshl_b32 s30, s%d, 7' % chain.sH)
    p('s_add_u32 s30, s30, 0x%x' % WS_FLAG)
    p('v_mov_b32 v120, 0')
    p('buffer_store_dword v120, off, s[4:7], s30 sc1')
    chain.chain_init_globals(p)
    add_dbg(p, DBG_REG, 'C')
    chain.chain_load_weights(p)
    rts(p, 1)
    rtd(p, 3, 0)
    chain.chain_init_mem0(p)
    wait_dbg(p, DBG_REG, 256, 'C')
    p('s_barrier')
    rts(p, 2)
    rtd(p, 4, 0)
    if RTD: p.raw('    s_memtime s[82:83]\n    s_waitcnt lgkmcnt(0)')
    chain.chain_loop(p, stamps=('light' if 'light' in opt else stamps), opt=tuple(opt) + ('kvflags',))
    p.label('L_DONE')
    p.forget()
    p.raw('    s_waitcnt lgkmcnt(0)')
    if 'pubW7' not in opt:
        p('s_add_u32 %s, %s, %d' % (s(chain.sKM), s(chain.sKM), 32 * 4096))
        p('s_add_u32 %s, %s, %d' % (s(chain.sVM), s(chain.sVM), 32 * 4096))
        p('buffer_store_dwordx4 %s, %s, s[4:7], %s offen sc1' % (v(chain.MF + 16, 4), v(chain.vL16), s(chain.sKM)))
        p('buffer_store_dwordx4 %s, %s, s[4:7], %s offen sc1' % (v(chain.MF + 20, 4), v(chain.vL16), s(chain.sVM)))
    p.wait(vm=0)
    p('s_barrier')
    p('v_mov_b32 %s, 64' % v(chain.vFlag))
    p('buffer_store_dword %s, %s, s[4:7], %s offen sc1' % (v(chain.vFlag), v(chain.vFlagOff), s(chain.sFlagOff)))
    if 'light' in opt:
        p('s_lshl_b32 s30, %s, 2' % s(chain.sH))
        p('s_add_u32 s30, s30, s3')
        p('s_lshl_b32 s30, s30, 6')
        p('s_add_u32 s30, s30, 0x%x' % (WS_FLAG + 4096))
        for k in range(15):
            p('v_mov_b32 v123, %s' % s(chain.sAcc + k))
            p('buffer_store_dword v123, off, s[4:7], s30 offset:%d' % (4 * k))
    rts(p, 3)
    rtd(p, 5, 0)
    if RTD and 'steprt' not in opt:
        p.raw('    s_memtime s[84:85]\n    s_load_dwordx2 s[86:87], s[0:1], %d\n    s_waitcnt lgkmcnt(0)' % KA_DBG)
        p.raw('    s_sub_u32 s84, s84, s82')
        p.raw('    s_cmp_eq_u32 s%d, 0\n    s_cbranch_scc0 L_RTDX' % sTK)
        p.raw('    v_mov_b32 v123, s84\n    v_mov_b32 v124, 48\n    global_store_dword v124, v123, s[86:87]')
        p.raw('    v_mov_b32 v123, s%d\n    s_lshl_b32 s84, s3, 2\n    s_add_u32 s84, s84, 52\n    v_mov_b32 v124, s84' % chain.sNfail)
        p.raw('    s_cmp_lt_u32 s3, 3\n    s_cbranch_scc0 L_RTDX\n    global_store_dword v124, v123, s[86:87]')
        p.raw('L_RTDX:')
    p.wait(vm=0)
    p('s_endpgm')
    p.label('L_BAIL')
    p('s_load_dwordx2 s[96:97], s[0:1], %d' % KA_DBG)
    p('v_mov_b32 v120, 0x100')
    p('v_or_b32 v120, %s, v120' % s(chain.sStep))
    p('v_mov_b32 v121, %d' % DBG_BAIL)
    p('s_waitcnt lgkmcnt(0)')
    p('global_store_dword v121, v120, s[96:97]')
    p.wait(vm=0)
    p('s_endpgm')
    p.label('L_WORKER')
    p.forget()
    ws_srd(p)
    p('s_sub_u32 s%d, s%d, 1' % (80, sXCC))
    p('s_mov_b32 s81, s%d' % sTK)
    p('s_mov_b32 s%d, s80' % p2.sX)
    p('s_mov_b32 s%d, s81' % p2.sC)
    rts(p, 0)
    zero_p2_flags(p)
    p('s_cmp_eq_u32 s80, 6')
    p('s_cbranch_scc1 L_LN')
    p('s_lshl_b32 s%d, s80, 3' % qkv.sCG)
    p('s_lshr_b32 s20, s81, 2')
    p('s_add_u32 s%d, s%d, s20' % (qkv.sCG, qkv.sCG))
    p('s_and_b32 s%d, s81, 3' % qkv.sTG)
    p('s_lshl_b32 s20, s%d, 2' % qkv.sCG)
    p('s_add_u32 s20, s20, s%d' % qkv.sTG)
    p('s_lshl_b32 s20, s20, 7')
    p('s_add_u32 s20, s20, 0x%x' % WS_QFLAG)
    p('v_mov_b32 v120, 0')
    p('buffer_store_dword v120, off, s[4:7], s20 sc1')
    add_dbg(p, DBG_REG, 'Q')
    if 'qlate' in opt:
        p('s_cmp_lt_u32 s%d, 32' % qkv.sCG)
        p('s_cbranch_scc1 L_QNOW')
        wait_dbg(p, DBG_LNA, 32, 'QE')
        p.label('L_QNOW')
    qkv.qkv_load_weights(p)
    rts(p, 1)
    wait_dbg(p, DBG_REG, 256, 'Q')
    wait_dbg(p, DBG_LNA, 32, 'QL')
    rts(p, 2)
    rtd(p, 6, 1)
    import main_hooks
    main_hooks.wait_dbg_fn[0] = lambda pp, tag: wait_dbg(pp, DBG_LNB, 32, 'QLB' + tag, vr=6)
    qkv.qkv_main(p, flags=True, wait_b=True)
    rts(p, 3)
    rtd(p, 7, 1)
    p('s_branch L_P2')
    p.label('L_LN')
    p.forget()
    add_dbg(p, DBG_REG, 'L')
    make_srd(p, 8, KA_X, 2048 * 1024)
    p('s_mov_b32 s12, s81')
    ln1.ln1_load(p, 12, 0)
    p('s_add_u32 s13, s81, 32')
    ln1.ln1_load(p, 13, 1)
    ln1.ln1_compute(p, 12, 0, nvm_after=8)
    ln1.ln1_compute(p, 13, 1, nvm_after=8)
    p.wait(vm=8)
    p('s_barrier')
    add_dbg(p, DBG_LNA, 'LN0', wait=False)
    add_dbg(p, DBG_LNB, 'LN1')
    rts(p, 3)
    wait_dbg(p, DBG_REG, 256, 'L')
    if 'p2late' in opt:
        p('s_mov_b32 s27, 0x%x' % WS_FLAG)
        p('s_mov_b32 s26, 1')
        p2.poll_one(p, 27, 26, 'LATE')
    p.label('L_P2')
    p.forget()
    p('s_barrier')
    p('s_mov_b32 s%d, s80' % p2.sX)
    p('s_mov_b32 s%d, s81' % p2.sC)
    p2.p2_init(p)
    p2.p2_load_weights(p)
    p2.p2_setup(p)
    rts(p, 4)
    rtd(p, 8, 1)
    p2.p2_segment_loop(p, xflags=True, rt=('rt' in opt))
    p.label('L_GBAIL')
    p.label('L_EXIT')
    p('s_endpgm')
    p.raw('''.section .rodata,"a"
.p2align 6
.amdhsa_kernel %s
  .amdhsa_next_free_vgpr 512
  .amdhsa_next_free_sgpr 102
  .amdhsa_accum_offset 256
  .amdhsa_group_segment_fixed_size 0
  .amdhsa_kernarg_size 112
  .amdhsa_user_sgpr_count 2
  .amdhsa_user_sgpr_kernarg_segment_ptr 1
  .amdhsa_system_sgpr_workgroup_id_x 1
.end_amdhsa_kernel''' % NAME)
    return p
def rt_out(p, k): pass
if __name__ == '__main__':
    out = sys.argv[1]
    p = build(opt=tuple(sys.argv[2:]))
    open(out, 'w').write(p.text())
    print('insts', p.count, 'nop states', p.nops, 'bytes', len(p.text()))
```
